```python
import torch

def _softmax(x, axis=-1):
    return torch.softmax(x, dim=axis)
def _gelu(x):
    return torch.nn.functional.gelu(x, approximate="tanh")
def _silu(x):
    return torch.nn.functional.silu(x)
def _sigmoid(x):
    return torch.sigmoid(x)
def _layernorm(x, axis=-1, eps=1e-5):
    m = x.mean(dim=axis, keepdim=True)
    v = x.var(dim=axis, keepdim=True, unbiased=False)
    return (x - m) / torch.sqrt(v + eps)
def _scatter_add(tgt, idx, src, axis=0):
    return tgt.clone().index_add_(axis, idx, src)
def _segment_sum(src, seg, n):
    out = torch.zeros((n,) + src.shape[1:], dtype=src.dtype)
    return out.index_add_(0, seg, src)
def _pad(x, pw):
    flat = tuple(v for pair in reversed(pw) for v in pair)
    return torch.nn.functional.pad(x, flat)

kernel_name = 'sequential_preLN__mha_block_cached__dense_activation_gelu__decode'

def setup_inputs():

    _w = (lambda a: (lambda t: t.to(torch.bfloat16) if t.is_floating_point() else t)(torch.as_tensor(a)))
    def _A_setup():
        B, Sq, D = 2, 1, 512
        H, Sk, Dh = 32, 4096, 128
        return {
            "x": _w((lambda *s: torch.randn(*s, dtype=torch.bfloat16) * 0.1)(B, Sq, D)),
            "k_cache": _w((lambda *s: torch.randn(*s, dtype=torch.bfloat16) * 1.6)(B, H, Sk, Dh)),
            "v_cache": _w((lambda *s: torch.randn(*s, dtype=torch.bfloat16) * 1.6)(B, H, Sk, Dh)),
            "wq": _w((lambda *s: torch.randn(*s, dtype=torch.bfloat16) * 1.6)(D, H * Dh) * (D ** -0.5)),
            "wo": _w((lambda *s: torch.randn(*s, dtype=torch.bfloat16) * 1.6)(H * Dh, D) * ((H * Dh) ** -0.5)),
        }
    _A_in = _A_setup()

    def _B_setup():
        B, S, D, F = 2, 1, 512, 1376
        return {
            "x": _w((lambda *s: torch.randn(*s, dtype=torch.bfloat16) * 0.1)(B, S, D)),
            "w1": _w((lambda *s: torch.randn(*s, dtype=torch.bfloat16) * 3.2)(D, F) * (D ** -0.5)),
            "b1": _w((lambda *s: torch.randn(*s, dtype=torch.bfloat16) * 3.2)(F) * 0.01),
            "w2": _w((lambda *s: torch.randn(*s, dtype=torch.bfloat16) * 3.2)(F, D) * (F ** -0.5)),
            "b2": _w((lambda *s: torch.randn(*s, dtype=torch.bfloat16) * 3.2)(D) * 0.01),
        }
    _B_in = _B_setup()

    return {
        "A_x": _A_in["x"],
        "A_k_cache": _A_in["k_cache"],
        "A_v_cache": _A_in["v_cache"],
        "A_wq": _A_in["wq"],
        "A_wo": _A_in["wo"],
        "B_x": _B_in["x"],
        "B_w1": _B_in["w1"],
        "B_b1": _B_in["b1"],
        "B_w2": _B_in["w2"],
        "B_b2": _B_in["b2"],
    }

def reference(A_x, A_k_cache, A_v_cache, A_wq, A_wo, B_x, B_w1, B_b1, B_w2, B_b2):
    def _A_ref(x, k_cache, v_cache, wq, wo):
        B, Sq, D = x.shape
        H, Dh = 32, 128
        q = (lambda x, *d: x.permute(*d))((x @ wq).reshape(B, Sq, H, Dh), 0, 2, 1, 3)
        scores = torch.einsum("bhqd,bhkd->bhqk", q, k_cache) * (Dh ** -0.5)
        p = _softmax(scores, axis=-1)
        o = torch.einsum("bhqk,bhkd->bhqd", p, v_cache)
        return (lambda x, *d: x.permute(*d))(o, 0, 2, 1, 3).reshape(B, Sq, H * Dh) @ wo

    def _B_ref(x, w1, b1, w2, b2):
        h = torch.einsum("bsd,df->bsf", x, w1) + b1
        h = _gelu(h)
        return torch.einsum("bsf,fd->bsd", h, w2) + b2

    x = A_x
    h = x + _A_ref(_layernorm(x, axis=-1), A_k_cache, A_v_cache, A_wq, A_wo)
    h2 = h + _B_ref(_layernorm(h, axis=-1), B_w1, B_b1, B_w2, B_b2)
    return h2
```

```python
import sys, struct

NAME = "sequential_preLN__mha_block_cached__dense_activation_gelu__decode"

def f32(x):
    return "0x%08x" % struct.unpack("<I", struct.pack("<f", x))[0]

WS_QP = 0x00000
WS_OP = 0x40000
WS_ST = 0x60000
WS_AP = 0x64000
WS_G = 0x68000
WS_TK = 0x70000
WS_TS = 0x100000
WS_BYTES = 0x10000000

LQ = 0
LQF = 8192
LML = 8704
LCS = 8960
LR = 9728
LST = 11776
LC = 16384
LW = 32768
LDS_BYTES = 32768 + 49152 + 4096

POLL_LIMIT = 1 << 18


class G:
    def __init__(self, opt):
        self.L = []
        self.opt = opt
        self.nlab = 0
        self.nts = 0

    def __call__(self, s):
        self.L.append("    " + s)

    def lab(self, name):
        self.L.append(name + ":")

    def newlab(self, base):
        self.nlab += 1
        return "L_%s_%d" % (base, self.nlab)

    def nop(self, n):
        while n > 0:
            k = min(n, 16)
            self("s_nop %d" % (k - 1))
            n -= k

    def ts(self, idx):
        if self.opt.get("ts"):
            self("s_memrealtime s[%d:%d]" % (76, 77))
            self("s_waitcnt lgkmcnt(0)")
            self("s_mov_b32 s%d, s76" % (80 + idx))


def vr(a, n=1):
    return "v%d" % a if n == 1 else "v[%d:%d]" % (a, a + n - 1)


DPPALL = "row_mask:0xf bank_mask:0xf"


def gen(opt):
    g = G(opt)
    A = g
    NT = opt.get("nt", "nt")
    WNT = opt.get("wnt", "nt")
    vLane, vI, vG = 1, 2, 3
    vKX, vKY, vV = 4, 5, 6
    vTkA = 7
    vMask = 8
    vQ0, vQ1 = 12, 16
    vAcc = 20
    vM, vL = 24, 25
    T = list(range(26, 48))
    vBa, vBb = 48, 52
    vTk = 56
    vX0 = 57
    vW = 64
    vU = 88
    SB = 128
    sW, sH, sT, sGW = 3, 4, 5, 6
    sTmp, sTmp2 = 7, 8
    sCur, sNext, sOff = 9, 10, 11
    sHB = 12
    sCnt = 13
    sRole = 14
    sRA, sRB = 15, 42
    pX, pK, pV, pWQ, pWO, pW1, pB1, pW2, pB2, pOUT, pDBG, pWS = 16, 18, 20, 22, 24, 28, 30, 32, 34, 36, 38, 40
    rK, rV, rWS, rA, rB, rDBG = 44, 48, 52, 56, 60, 64
    sScale, sL2E = 68, 69
    sTkOff = 70
    sM8 = 72
    sMg1 = 74

    def srd(r):
        return "s[%d:%d]" % (r, r + 3)

    def mk_srd(r, p, nbytes):
        A("s_mov_b32 s%d, s%d" % (r, p))
        A("s_and_b32 s%d, s%d, 0xffff" % (r + 1, p + 1))
        A("s_mov_b32 s%d, 0x%x" % (r + 2, nbytes))
        A("s_mov_b32 s%d, 0x20000" % (r + 3))

    def exec_set(lo, hi=0):
        A("s_mov_b32 exec_lo, 0x%x" % lo)
        A("s_mov_b32 exec_hi, 0x%x" % hi)

    def exec_all():
        A("s_mov_b64 exec, -1")

    def bf16_round(dst, src):
        A("v_cvt_pk_bf16_f32 v%d, v%d, v%d" % (dst, src, src))
        A("v_and_b32 v%d, 0xffff0000, v%d" % (dst, dst))

    def dpp(op, dst, src0, src1, ctrl, bank="0xf"):
        A("%s_dpp v%d, v%d, v%d %s row_mask:0xf bank_mask:%s" % (op, dst, src0, src1, ctrl, bank))

    def xrow16(op, x, t):
        A("v_mov_b32 v%d, v%d" % (t, x))
        g.nop(2)
        A("v_permlane16_swap_b32 v%d, v%d" % (x, t))
        g.nop(1)
        A("%s v%d, v%d, v%d" % (op, x, x, t))

    def xrow32(op, x, t):
        A("v_mov_b32 v%d, v%d" % (t, x))
        g.nop(2)
        A("v_permlane32_swap_b32 v%d, v%d" % (x, t))
        g.nop(1)
        A("%s v%d, v%d, v%d" % (op, x, x, t))

    def multi_xrow(kind, op, xs, ts):
        ins = "v_permlane16_swap_b32" if kind == 16 else "v_permlane32_swap_b32"
        for x, t in zip(xs, ts):
            A("v_mov_b32 v%d, v%d" % (t, x))
        g.nop(2)
        for x, t in zip(xs, ts):
            A("%s v%d, v%d" % (ins, x, t))
        g.nop(1)
        for x, t in zip(xs, ts):
            A("%s v%d, v%d, v%d" % (op, x, x, t))

    hdr = []
    hdr.append("; @launch grid=(256,1,1) block=(512,1,1) lds=%d" % LDS_BYTES)
    hdr.append('.amdgcn_target "amdgcn-amd-amdhsa--gfx950"')
    hdr.append(".text")
    hdr.append(".globl %s_kernel" % NAME)
    hdr.append(".p2align 8")
    hdr.append(".type %s_kernel,@function" % NAME)
    hdr.append("%s_kernel:" % NAME)

    A("s_cmp_ge_u32 s2, 256")
    A("s_cbranch_scc1 L_end")
    A("s_load_dwordx16 s[16:31], s[0:1], 0")
    A("s_load_dwordx8 s[32:39], s[0:1], 64")
    A("s_load_dwordx2 s[40:41], s[0:1], 96")
    if opt.get("ts"):
        A("s_memrealtime s[78:79]")
    A("v_and_b32 v%d, 63, v0" % vLane)
    A("v_lshrrev_b32 v%d, 6, v0" % T[0])
    A("v_and_b32 v%d, 15, v0" % vI)
    A("v_readfirstlane_b32 s%d, v%d" % (sW, T[0]))
    A("v_bfe_u32 v%d, v0, 4, 2" % vG)
    A("v_lshlrev_b32 v%d, 4, v%d" % (vV, vLane))
    A("v_and_b32 v%d, 8, v0" % T[1])
    A("v_lshlrev_b32 v%d, 8, v%d" % (T[1], T[1]))
    A("v_add_u32 v%d, v%d, v%d" % (vKX, vV, T[1]))
    A("v_sub_u32 v%d, v%d, v%d" % (vKY, vV, T[1]))
    A("v_add_u32 v%d, 0x800, v%d" % (vKY, vKY))
    A("s_lshr_b32 s%d, s2, 3" % sH)
    A("s_and_b32 s%d, s2, 7" % sT)
    A("s_lshl_b32 s%d, s%d, 3" % (sGW, sT))
    A("s_add_u32 s%d, s%d, s%d" % (sGW, sGW, sW))
    A("s_lshl_b32 s%d, s%d, 20" % (sHB, sH))
    A("s_mov_b32 s%d, %s" % (sScale, f32(128 ** -0.5)))
    A("s_mov_b32 s%d, %s" % (sL2E, f32(1.4426950408889634)))
    lr1, lr2, lrd = g.newlab("r1"), g.newlab("r2"), g.newlab("rd")
    A("s_mov_b32 s%d, 0" % sRole)
    A("s_mov_b32 s%d, 0" % sRA)
    A("s_mov_b32 s%d, 0" % sRB)
    A("s_cmp_ge_u32 s2, 128")
    A("s_cbranch_scc1 %s" % lr1)
    A("s_mov_b32 s%d, 1" % sRole)
    A("s_and_b32 s%d, s%d, 3" % (sRA, sH))
    A("s_lshl_b32 s%d, s%d, 2" % (sTmp, sT))
    A("s_add_u32 s%d, s%d, s%d" % (sRA, sRA, sTmp))
    A("s_lshr_b32 s%d, s2, 5" % sRB)
    A("s_branch %s" % lrd)
    g.lab(lr1)
    A("s_cmp_ge_u32 s2, 214")
    A("s_cbranch_scc1 %s" % lr2)
    A("s_mov_b32 s%d, 2" % sRole)
    A("s_mul_i32 s%d, s%d, 11" % (sRA, sT))
    A("s_sub_u32 s%d, s%d, 16" % (sTmp, sH))
    A("s_add_u32 s%d, s%d, s%d" % (sRA, sRA, sTmp))
    A("s_cmp_eq_u32 s%d, 7" % sT)
    A("s_cselect_b32 s%d, 1, 0" % sTmp)
    A("s_sub_u32 s%d, s%d, s%d" % (sRA, sRA, sTmp))
    A("s_branch %s" % lrd)
    g.lab(lr2)
    A("s_cmp_lt_u32 s2, 224")
    A("s_cbranch_scc1 %s" % lrd)
    A("s_mov_b32 s%d, 3" % sRole)
    A("s_lshl_b32 s%d, s%d, 2" % (sRA, sT))
    A("s_sub_u32 s%d, s%d, 28" % (sTmp, sH))
    A("s_add_u32 s%d, s%d, s%d" % (sRA, sRA, sTmp))
    g.lab(lrd)
    A("v_cmp_lt_u32 s[%d:%d], 7, v%d" % (sM8, sM8 + 1, vI))
    A("v_and_b32 v%d, 1, v%d" % (T[2], vG))
    A("v_cmp_eq_u32 s[%d:%d], 1, v%d" % (sMg1, sMg1 + 1, T[2]))
    A("v_and_b32 v%d, 1, v0" % T[3])
    A("v_lshlrev_b32 v%d, 4, v%d" % (T[3], T[3]))
    A("v_mov_b32 v%d, 0xffff" % T[4])
    A("v_lshlrev_b32 v%d, v%d, v%d" % (T[4], T[3], T[4]))
    A("v_bfe_u32 v%d, v0, 1, 2" % T[5])
    for d in range(4):
        A("v_cmp_eq_u32 vcc, %d, v%d" % (d, T[5]))
        g.nop(2)
        A("v_cndmask_b32 v%d, 0, v%d, vcc" % (vMask + d, T[4]))
    A("v_cmp_eq_u32 vcc, 0, v%d" % vLane)
    A("v_mov_b32 v%d, 0x%x" % (T[6], WS_BYTES))
    g.nop(1)
    A("v_cndmask_b32 v%d, v%d, 0, vcc" % (vTkA, T[6]))
    A("s_lshl_b32 s%d, s%d, 8" % (sTkOff, sH))
    A("s_add_u32 s%d, s%d, 0x%x" % (sTkOff, sTkOff, WS_TK))
    A("s_waitcnt lgkmcnt(0)")
    if opt.get("ts"):
        A("s_mov_b32 s80, s78")
        for k in range(81, 92):
            A("s_mov_b32 s%d, 0" % k)
    mk_srd(rK, pK, 64 << 20)
    mk_srd(rV, pV, 64 << 20)
    mk_srd(rWS, pWS, WS_BYTES)
    mk_srd(rDBG, pDBG, 256)
    mk_srd(rA, pX, 2048)
    mk_srd(rB, pWQ, 4 << 20)

    lsk = g.newlab("skipclr")
    A("s_cmp_lg_u32 s%d, 7" % sW)
    A("s_cbranch_scc1 %s" % lsk)
    for k in range(4):
        A("v_mov_b32 v%d, -1" % (vU + k))
    A("v_mov_b32 v%d, 0" % (vU + 4))
    A("s_lshl_b32 s%d, s2, 10" % sTmp)
    A("buffer_store_dwordx4 %s, v%d, %s, s%d offen sc1" % (vr(vU, 4), vV, srd(rWS), sTmp))
    A("v_lshlrev_b32 v%d, 11, v%d" % (T[0], vG))
    A("v_lshl_add_u32 v%d, v%d, 4, v%d" % (T[0], vI, T[0]))
    A("s_lshl_b32 s%d, s%d, 12" % (sTmp, sH))
    A("s_lshl_b32 s%d, s%d, 8" % (sTmp2, sT))
    A("s_add_u32 s%d, s%d, s%d" % (sTmp, sTmp, sTmp2))
    A("s_add_u32 s%d, s%d, 0x%x" % (sTmp, sTmp, WS_OP))
    exec_set(0xffffffff, 0)
    A("buffer_store_dwordx4 %s, v%d, %s, s%d offen sc1" % (vr(vU, 4), T[0], srd(rWS), sTmp))
    exec_all()
    A("v_lshlrev_b32 v%d, 7, v%d" % (T[1], vLane))
    A("s_lshl_b32 s%d, s%d, 8" % (sTmp, sH))
    A("s_lshl_b32 s%d, s%d, 4" % (sTmp2, sT))
    A("s_add_u32 s%d, s%d, s%d" % (sTmp, sTmp, sTmp2))
    A("s_add_u32 s%d, s%d, 0x%x" % (sTmp, sTmp, WS_ST))
    exec_set(3)
    A("buffer_store_dwordx4 %s, v%d, %s, s%d offen sc1" % (vr(vU, 4), T[1], srd(rWS), sTmp))
    exec_all()
    l1 = g.newlab("ntk")
    A("s_cmp_lg_u32 s%d, 0" % sT)
    A("s_cbranch_scc1 %s" % l1)
    A("buffer_store_dword v%d, v%d, %s, s%d offen sc1" % (vU + 4, vTkA, srd(rWS), sTkOff))
    g.lab(l1)
    l2 = g.newlab("nap")
    A("s_cmp_lg_u32 s%d, 1" % sRole)
    A("s_cbranch_scc1 %s" % l2)
    A("v_lshrrev_b32 v%d, 2, v%d" % (T[2], vLane))
    A("v_lshlrev_b32 v%d, 11, v%d" % (T[2], T[2]))
    A("v_and_b32 v%d, 3, v%d" % (T[3], vLane))
    A("v_lshl_add_u32 v%d, v%d, 4, v%d" % (T[2], T[3], T[2]))
    A("s_lshl_b32 s%d, s%d, 12" % (sTmp, sRB))
    A("s_lshl_b32 s%d, s%d, 6" % (sTmp2, sRA))
    A("s_add_u32 s%d, s%d, s%d" % (sTmp, sTmp, sTmp2))
    A("s_add_u32 s%d, s%d, 0x%x" % (sTmp, sTmp, WS_AP))
    exec_set(0xff)
    A("buffer_store_dwordx4 %s, v%d, %s, s%d offen sc1" % (vr(vU, 4), T[2], srd(rWS), sTmp))
    exec_all()
    g.lab(l2)
    l3 = g.newlab("ng")
    A("s_cmp_lg_u32 s%d, 2" % sRole)
    A("s_cbranch_scc1 %s" % l3)
    A("v_lshrrev_b32 v%d, 1, v%d" % (T[2], vLane))
    A("v_lshlrev_b32 v%d, 6, v%d" % (T[2], T[2]))
    A("v_and_b32 v%d, 1, v%d" % (T[3], vLane))
    A("v_lshl_add_u32 v%d, v%d, 4, v%d" % (T[2], T[3], T[2]))
    A("s_lshr_b32 s%d, s%d, 1" % (sTmp, sRA))
    A("s_lshl_b32 s%d, s%d, 7" % (sTmp, sTmp))
    A("s_and_b32 s%d, s%d, 1" % (sTmp2, sRA))
    A("s_lshl_b32 s%d, s%d, 5" % (sTmp2, sTmp2))
    A("s_add_u32 s%d, s%d, s%d" % (sTmp, sTmp, sTmp2))
    A("s_add_u32 s%d, s%d, 0x%x" % (sTmp, sTmp, WS_G))
    exec_set(0xf)
    A("buffer_store_dwordx4 %s, v%d, %s, s%d offen sc1" % (vr(vU, 4), T[2], srd(rWS), sTmp))
    exec_all()
    g.lab(l3)
    g.nop(2)
    g.lab(lsk)

    vXA = vU + 8
    vXE = vU + 16
    vWQ = vU + 20
    A("v_lshlrev_b32 v%d, 5, v%d" % (T[0], vLane))
    A("buffer_load_dwordx4 %s, v%d, %s, 0 offen" % (vr(vXA, 4), T[0], srd(rA)))
    A("buffer_load_dwordx4 %s, v%d, %s, 0 offen offset:16" % (vr(vXA + 4, 4), T[0], srd(rA)))
    A("v_lshrrev_b32 v%d, 3, v%d" % (T[1], vI))
    A("v_lshlrev_b32 v%d, 10, v%d" % (T[1], T[1]))
    A("v_lshl_add_u32 v%d, v%d, 1, v%d" % (T[1], vG, T[1]))
    A("s_lshl_b32 s%d, s%d, 4" % (sTmp, sGW))
    A("buffer_load_ushort v%d, v%d, %s, s%d offen" % (vXE, T[1], srd(rA), sTmp))
    A("buffer_load_ushort v%d, v%d, %s, s%d offen offset:8" % (vXE + 1, T[1], srd(rA), sTmp))
    A("v_lshlrev_b32 v%d, 13, v%d" % (T[2], vG))
    A("v_lshl_add_u32 v%d, v%d, 4, v%d" % (T[2], vI, T[2]))
    A("s_lshl_b32 s%d, s%d, 16" % (sTmp, sGW))
    A("s_lshl_b32 s%d, s%d, 8" % (sTmp2, sH))
    A("s_add_u32 s%d, s%d, s%d" % (sTmp, sTmp, sTmp2))
    A("s_add_u32 s%d, s%d, 0x8000" % (sTmp2, sTmp))
    A("buffer_load_dwordx4 %s, v%d, %s, s%d offen %s" % (vr(vWQ, 4), T[2], srd(rB), sTmp, WNT))
    A("buffer_load_dwordx4 %s, v%d, %s, s%d offen %s" % (vr(vWQ + 4, 4), T[2], srd(rB), sTmp2, WNT))

    def issue_K(kb, soff):
        A("buffer_load_dwordx4 %s, v%d, %s, s%d offen %s" % (vr(kb, 4), vKX, srd(rK), soff, NT))
        A("buffer_load_dwordx4 %s, v%d, %s, s%d offen offset:1024 %s" % (vr(kb + 4, 4), vKX, srd(rK), soff, NT))
        A("buffer_load_dwordx4 %s, v%d, %s, s%d offen %s" % (vr(kb + 8, 4), vKY, srd(rK), soff, NT))
        A("buffer_load_dwordx4 %s, v%d, %s, s%d offen offset:1024 %s" % (vr(kb + 12, 4), vKY, srd(rK), soff, NT))

    def issue_V(vb, soff):
        for j in range(4):
            A("buffer_load_dwordx4 %s, v%d, %s, s%d offen offset:%d %s" % (vr(vb + 4 * j, 4), vV, srd(rV), soff, 1024 * j, NT))

    def issue_static(k):
        A("s_add_u32 s%d, s%d, %d" % (sOff, sGW, 64 * k))
        A("s_lshl_b32 s%d, s%d, 12" % (sOff, sOff))
        A("s_add_u32 s%d, s%d, s%d" % (sOff, sOff, sHB))
        issue_K(SB + 32 * k, sOff)
        issue_V(SB + 32 * k + 16, sOff)

    issue_static(0)

    vXR = vX0
    vXR = 58
    vBias = 62
    vXs = 63
    lw1, lw2, lw3, lwd = g.newlab("w1"), g.newlab("w2"), g.newlab("w3"), g.newlab("wd")
    A("v_lshrrev_b32 v%d, 1, v%d" % (T[3], vLane))
    A("v_and_b32 v%d, 1, v%d" % (T[4], vLane))
    A("v_lshlrev_b32 v%d, 4, v%d" % (T[4], T[4]))
    A("v_mov_b32 v%d, 0x%x" % (T[7], 0x7ffffff0))
    A("s_cmp_lg_u32 s%d, 1" % sRole)
    A("s_cbranch_scc1 %s" % lw1)
    mk_srd(rB, pWO, 4 << 20)
    A("v_lshl_add_u32 v%d, v%d, 10, v%d" % (T[5], T[3], T[4]))
    A("s_lshl_b32 s%d, s%d, 3" % (sTmp, sRB))
    A("s_add_u32 s%d, s%d, s%d" % (sTmp, sTmp, sW))
    A("s_lshl_b32 s%d, s%d, 17" % (sTmp, sTmp))
    A("s_lshl_b32 s%d, s%d, 5" % (sTmp2, sRA))
    A("s_add_u32 s%d, s%d, s%d" % (sTmp, sTmp, sTmp2))
    for j in range(4):
        A("buffer_load_dwordx4 %s, v%d, %s, s%d offen %s" % (vr(vW + 4 * j, 4), T[5], srd(rB), sTmp, WNT))
        if j < 3:
            A("s_add_u32 s%d, s%d, 0x8000" % (sTmp, sTmp))
    for j in range(4):
        A("buffer_load_dword v%d, v%d, %s, 0 offen" % (126, T[7], srd(rB)))
    A("s_branch %s" % lwd)
    g.lab(lw1)
    A("s_cmp_lg_u32 s%d, 2" % sRole)
    A("s_cbranch_scc1 %s" % lw2)
    mk_srd(rB, pW1, 512 * 2752)
    A("v_mul_u32_u24 v%d, 2752, v%d" % (T[5], T[3]))
    A("v_add_u32 v%d, v%d, v%d" % (T[5], T[5], T[4]))
    A("s_mul_i32 s%d, s%d, %d" % (sTmp, sW, 64 * 2752))
    A("s_lshl_b32 s%d, s%d, 5" % (sTmp2, sRA))
    A("s_add_u32 s%d, s%d, s%d" % (sTmp, sTmp, sTmp2))
    A("buffer_load_dwordx4 %s, v%d, %s, s%d offen %s" % (vr(vW, 4), T[5], srd(rB), sTmp, WNT))
    A("s_add_u32 s%d, s%d, %d" % (sTmp, sTmp, 32 * 2752))
    A("buffer_load_dwordx4 %s, v%d, %s, s%d offen %s" % (vr(vW + 4, 4), T[5], srd(rB), sTmp, WNT))
    A("v_and_b32 v%d, 1, v%d" % (T[5], vI))
    A("v_lshlrev_b32 v%d, 10, v%d" % (T[5], T[5]))
    A("v_bfe_u32 v%d, v%d, 1, 1" % (T[6], vI))
    A("v_lshl_add_u32 v%d, v%d, 6, v%d" % (T[6], T[6], T[5]))
    A("v_lshl_add_u32 v%d, v%d, 4, v%d" % (T[6], vG, T[6]))
    A("s_lshl_b32 s%d, s%d, 7" % (sTmp, sW))
    A("buffer_load_dwordx4 %s, v%d, %s, s%d offen" % (vr(vXR, 4), T[6], srd(rA), sTmp))
    A("buffer_load_ushort v%d, v%d, %s, 0 offen" % (vXs, T[5], srd(rA)))
    mk_srd(rB, pB1, 2752)
    A("v_lshlrev_b32 v%d, 1, v%d" % (T[5], vI))
    A("s_lshl_b32 s%d, s%d, 5" % (sTmp, sRA))
    A("buffer_load_ushort v%d, v%d, %s, s%d offen" % (vBias, T[5], srd(rB), sTmp))
    for j in range(3):
        A("buffer_load_dword v%d, v%d, %s, 0 offen" % (126, T[7], srd(rB)))
    A("s_branch %s" % lwd)
    g.lab(lw2)
    A("s_cmp_lg_u32 s%d, 3" % sRole)
    A("s_cbranch_scc1 %s" % lw3)
    mk_srd(rB, pW2, 1376 * 1024)
    A("v_lshl_add_u32 v%d, v%d, 10, v%d" % (T[5], T[3], T[4]))
    A("s_lshl_b32 s%d, s%d, 15" % (sTmp, sW))
    A("s_lshl_b32 s%d, s%d, 5" % (sTmp2, sRA))
    A("s_add_u32 s%d, s%d, s%d" % (sTmp, sTmp, sTmp2))
    for k in range(6):
        A("buffer_load_dwordx4 %s, v%d, %s, s%d offen %s" % (vr(vW + 4 * k, 4), T[5], srd(rB), sTmp, WNT))
        if k < 5:
            A("s_add_u32 s%d, s%d, 0x40000" % (sTmp, sTmp))
    A("v_and_b32 v%d, 1, v%d" % (T[5], vG))
    A("v_lshlrev_b32 v%d, 10, v%d" % (T[5], T[5]))
    A("v_lshl_add_u32 v%d, v%d, 1, v%d" % (T[5], vI, T[5]))
    A("s_lshl_b32 s%d, s%d, 5" % (sTmp, sRA))
    A("buffer_load_ushort v%d, v%d, %s, s%d offen" % (vXs, T[5], srd(rA), sTmp))
    mk_srd(rB, pB2, 1024)
    A("v_lshlrev_b32 v%d, 1, v%d" % (T[5], vI))
    A("buffer_load_ushort v%d, v%d, %s, s%d offen" % (vBias, T[5], srd(rB), sTmp))
    A("s_branch %s" % lwd)
    g.lab(lw3)
    for j in range(8):
        A("buffer_load_dword v%d, v%d, %s, 0 offen" % (126, T[7], srd(rB)))
    g.lab(lwd)

    A("s_waitcnt vmcnt(20)")
    lf = g.newlab("noflag")
    A("s_cmp_lg_u32 s%d, 7" % sW)
    A("s_cbranch_scc1 %s" % lf)
    A("v_mov_b32 v%d, 1" % T[0])
    A("buffer_store_byte v%d, v%d, %s, s2 offen sc1" % (T[0], vTkA, srd(rDBG)))
    g.lab(lf)
    F = [SB + 96 + k for k in range(16)]
    for k in range(8):
        A("v_lshlrev_b32 v%d, 16, v%d" % (F[2 * k], vXA + k))
        A("v_and_b32 v%d, 0xffff0000, v%d" % (F[2 * k + 1], vXA + k))
    S = T[0:8]
    for k in range(8):
        A("v_add_f32 v%d, v%d, v%d" % (S[k], F[2 * k], F[2 * k + 1]))
    for st in (4, 2, 1):
        for k in range(st):
            A("v_add_f32 v%d, v%d, v%d" % (S[k], S[k], S[k + st]))

    def reduce32_add(x, t):
        for ctrl in ("quad_perm:[1,0,3,2]", "quad_perm:[2,3,0,1]", "row_half_mirror", "row_mirror"):
            g.nop(2)
            dpp("v_add_f32", x, x, x, ctrl)
        xrow16("v_add_f32", x, t)

    vMean, vVar = T[8], T[9]
    reduce32_add(S[0], T[10])
    A("v_mul_f32 v%d, %s, v%d" % (vMean, f32(1.0 / 512), S[0]))
    for k in range(16):
        A("v_sub_f32 v%d, v%d, v%d" % (F[k], F[k], vMean))
    for k in range(4):
        A("v_mul_f32 v%d, v%d, v%d" % (S[k], F[k], F[k]))
    for k in range(4, 16):
        A("v_fmac_f32 v%d, v%d, v%d" % (S[k & 3], F[k], F[k]))
    A("v_add_f32 v%d, v%d, v%d" % (S[0], S[0], S[1]))
    A("v_add_f32 v%d, v%d, v%d" % (S[2], S[2], S[3]))
    A("v_add_f32 v%d, v%d, v%d" % (S[0], S[0], S[2]))
    reduce32_add(S[0], T[10])
    A("v_mul_f32 v%d, %s, v%d" % (vVar, f32(1.0 / 512), S[0]))

    def ln_scalars(vmean, vvar):
        bf16_round(vmean, vmean)
        bf16_round(vvar, vvar)
        A("v_add_f32 v%d, %s, v%d" % (vvar, f32(1e-5), vvar))
        bf16_round(vvar, vvar)
        A("v_sqrt_f32 v%d, v%d" % (vvar, vvar))
        g.nop(1)
        bf16_round(vvar, vvar)

    ln_scalars(vMean, vVar)
    A("v_mov_b32 v%d, v%d" % (T[10], vMean))
    A("v_mov_b32 v%d, v%d" % (T[11], vVar))
    g.nop(2)
    A("v_permlane32_swap_b32 v%d, v%d" % (vMean, T[10]))
    A("v_permlane32_swap_b32 v%d, v%d" % (vVar, T[11]))
    g.nop(1)
    A("v_cndmask_b32 v%d, v%d, v%d, s[%d:%d]" % (vMean, vMean, T[10], sM8, sM8 + 1))
    A("v_cndmask_b32 v%d, v%d, v%d, s[%d:%d]" % (vVar, vVar, T[11], sM8, sM8 + 1))
    A("v_rcp_f32 v%d, v%d" % (T[12], vVar))
    A("s_waitcnt vmcnt(18)")

    def div_refined(q, a, b, rb, t):
        A("v_mul_f32 v%d, v%d, v%d" % (q, a, rb))
        A("v_fma_f32 v%d, -v%d, v%d, v%d" % (t, q, b, a))
        A("v_fmac_f32 v%d, v%d, v%d" % (q, t, rb))

    for j in range(2):
        A("v_lshlrev_b32 v%d, 16, v%d" % (T[13], vXE + j))
        A("v_sub_f32 v%d, v%d, v%d" % (T[13], T[13], vMean))
        bf16_round(T[13], T[13])
        div_refined(T[14], T[13], vVar, T[12], T[15])
        A("v_cvt_pk_bf16_f32 v%d, v%d, v%d" % (T[14], T[14], T[14]))
        B = vBa if j == 0 else vBb
        for d in range(4):
            A("v_and_b32 v%d, v%d, v%d" % (B + d, T[14], vMask + d))
    A("s_waitcnt vmcnt(16)")
    g.nop(1)
    A("v_mfma_f32_16x16x32_bf16 %s, %s, %s, 0" % (vr(vAcc, 4), vr(vWQ, 4), vr(vBa, 4)))
    A("v_mfma_f32_16x16x32_bf16 %s, %s, %s, %s" % (vr(vAcc, 4), vr(vWQ + 4, 4), vr(vBb, 4), vr(vAcc, 4)))
    A("s_lshl_b32 s%d, s%d, 10" % (sTmp, sW))
    A("v_add_u32 v%d, s%d, v%d" % (T[0], sTmp, vV))
    g.nop(8)
    A("ds_write_b128 v%d, %s offset:%d" % (T[0], vr(vAcc, 4), LQ))
    A("s_waitcnt lgkmcnt(0)")
    A("s_barrier")
    lq = g.newlab("noqp")
    A("s_cmp_lg_u32 s%d, 0" % sW)
    A("s_cbranch_scc1 %s" % lq)
    R = SB + 96
    for k in range(8):
        A("ds_read_b128 %s, v%d offset:%d" % (vr(R + 4 * k, 4), vV, LQ + 1024 * k))
    A("s_waitcnt lgkmcnt(0)")
    for st in (4, 2, 1):
        for k in range(st):
            for r in range(4):
                A("v_add_f32 v%d, v%d, v%d" % (R + 4 * k + r, R + 4 * k + r, R + 4 * (k + st) + r))
    for r in range(4):
        A("v_min_u32 v%d, -2, v%d" % (R + r, R + r))
    A("s_lshl_b32 s%d, s2, 10" % sTmp)
    A("buffer_store_dwordx4 %s, v%d, %s, s%d offen sc1" % (vr(R, 4), vV, srd(rWS), sTmp))
    g.nop(2)
    g.lab(lq)
    g.ts(1)

    vFl = T[0]
    vQP = vU
    vFA = T[2]
    vQA = T[3]
    A("v_lshlrev_b32 v%d, 2, v%d" % (vFA, vLane))
    A("v_lshrrev_b32 v%d, 3, v%d" % (vQA, vLane))
    A("v_lshlrev_b32 v%d, 10, v%d" % (vQA, vQA))
    A("v_and_b32 v%d, 7, v%d" % (T[4], vLane))
    A("v_lshl_add_u32 v%d, v%d, 4, v%d" % (vQA, T[4], vQA))
    A("s_lshl_b32 s%d, s%d, 7" % (sTmp, sW))
    A("v_add_u32 v%d, s%d, v%d" % (vQA, sTmp, vQA))
    sQOff = sNext
    A("s_lshl_b32 s%d, s%d, 13" % (sQOff, sH))
    A("s_mov_b32 s%d, %d" % (sCnt, POLL_LIMIT))

    def flagload():
        A("buffer_load_dword v%d, v%d, %s, 0 offen sc1" % (vFl, vFA, srd(rDBG)))

    def flagcheck(lab_ok):
        A("v_cmp_ne_u32 vcc, 0x01010101, v%d" % vFl)
        A("s_cbranch_vccz %s" % lab_ok)

    def qload():
        A("buffer_load_dwordx4 %s, v%d, %s, s%d offen sc1" % (vr(vQP, 4), vQA, srd(rWS), sQOff))

    def qcheck(lab_ok):
        A("v_max3_u32 v%d, v%d, v%d, v%d" % (T[5], vQP, vQP + 1, vQP + 2))
        A("v_max_u32 v%d, v%d, v%d" % (T[5], T[5], vQP + 3))
        A("v_cmp_eq_u32 vcc, -1, v%d" % T[5])
        A("s_cbranch_vccz %s" % lab_ok)

    lfok, lfl = g.newlab("fok"), g.newlab("floop")
    flagload()
    issue_static(1)
    A("s_waitcnt vmcnt(8)")
    flagcheck(lfok)
    g.lab(lfl)
    flagload()
    A("s_waitcnt vmcnt(0)")
    flagcheck(lfok)
    A("s_sub_u32 s%d, s%d, 1" % (sCnt, sCnt))
    A("s_cmp_lg_u32 s%d, 0" % sCnt)
    A("s_cbranch_scc1 %s" % lfl)
    g.lab(lfok)
    g.ts(2)

    def issue_ticket():
        A("v_mov_b32 v%d, 1" % vTk)
        A("buffer_atomic_add v%d, v%d, %s, s%d offen sc0 sc1" % (vTk, vTkA, srd(rWS), sTkOff))

    lq2, lqok, lql = g.newlab("q2"), g.newlab("qok"), g.newlab("qloop")
    qload()
    issue_ticket()
    issue_static(2)
    A("s_waitcnt vmcnt(9)")
    qcheck(lq2)
    qload()
    issue_static(3)
    A("s_waitcnt vmcnt(8)")
    qcheck(lqok)
    g.lab(lql)
    qload()
    A("s_waitcnt vmcnt(0)")
    qcheck(lqok)
    A("s_sub_u32 s%d, s%d, 1" % (sCnt, sCnt))
    A("s_cmp_lg_u32 s%d, 0" % sCnt)
    A("s_cbranch_scc1 %s" % lql)
    A("s_branch %s" % lqok)
    g.lab(lq2)
    issue_static(3)
    g.lab(lqok)
    for r in range(4):
        dpp("v_add_f32", vQP + r, vQP + r, vQP + r, "row_ror:8")
    multi_xrow(16, "v_add_f32", [vQP + r for r in range(4)], [T[6 + r] for r in range(4)])
    multi_xrow(32, "v_add_f32", [vQP + r for r in range(4)], [T[6 + r] for r in range(4)])
    A("v_cvt_pk_bf16_f32 v%d, v%d, v%d" % (T[6], vQP, vQP + 1))
    A("v_cvt_pk_bf16_f32 v%d, v%d, v%d" % (T[7], vQP + 2, vQP + 3))
    A("s_and_b32 s%d, s%d, 1" % (sTmp, sW))
    A("s_lshl_b32 s%d, s%d, 8" % (sTmp, sTmp))
    A("s_lshr_b32 s%d, s%d, 1" % (sTmp2, sW))
    A("s_lshl_b32 s%d, s%d, 6" % (sTmp2, sTmp2))
    A("s_add_u32 s%d, s%d, s%d" % (sTmp, sTmp, sTmp2))
    A("v_lshlrev_b32 v%d, 1, v%d" % (T[4], T[4]))
    A("v_add_u32 v%d, s%d, v%d" % (T[4], sTmp, T[4]))
    A("ds_write_b16 v%d, v%d offset:%d" % (T[4], T[6], LQF))
    A("ds_write_b16_d16_hi v%d, v%d offset:%d" % (T[4], T[6], LQF + 16))
    A("ds_write_b16 v%d, v%d offset:%d" % (T[4], T[7], LQF + 32))
    A("ds_write_b16_d16_hi v%d, v%d offset:%d" % (T[4], T[7], LQF + 48))
    A("s_waitcnt lgkmcnt(0)")
    A("s_barrier")
    A("v_lshlrev_b32 v%d, 4, v%d" % (T[4], vI))
    A("ds_read_b128 %s, v%d offset:%d" % (vr(vQ0, 4), T[4], LQF))
    A("ds_read_b128 %s, v%d offset:%d" % (vr(vQ1, 4), T[4], LQF + 256))

    def reset_state():
        for r in range(4):
            A("v_mov_b32 v%d, 0" % (vAcc + r))
        A("v_mov_b32 v%d, 0xff7fffff" % vM)
        A("v_mov_b32 v%d, 0" % vL)

    reset_state()
    A("s_waitcnt lgkmcnt(0)")
    g.ts(3)

    def body(kb, vb, q, kwait, vwait_base, nxt):
        tX0, tX1, tY0, tY1 = T[0], T[1], T[2], T[3]
        r0, r1, u = T[4], T[5], T[6]
        sv, mx, tm, al, p, pd, ps = T[7], T[8], T[9], T[10], T[11], T[12], T[13]
        if kwait is not None:
            A("s_waitcnt vmcnt(%d)" % kwait)
        accs = [tX0, tX1, tY0, tY1]
        for e in range(4):
            for a in range(4):
                c = "0" if e == 0 else "v%d" % accs[a]
                A("v_dot2_f32_bf16 v%d, v%d, v%d, %s" % (accs[a], kb + 4 * a + e, q + e, c))
        if nxt is not None:
            kbn, vbn, tkwait = nxt
            if tkwait is not None:
                A("s_waitcnt vmcnt(%d)" % tkwait)
            A("v_readfirstlane_b32 s%d, v%d" % (sNext, vTk))
            g.nop(2)
            dpp("v_add_f32", r0, tY0, tX0, "row_ror:8")
            dpp("v_add_f32", r1, tY1, tX1, "row_ror:8")
            A("s_lshl_b32 s%d, s%d, 12" % (sOff, sNext))
            A("s_add_u32 s%d, s%d, s%d" % (sOff, sOff, sHB))
            A("s_add_u32 s%d, s%d, 0x2000000" % (sOff, sOff))
            A("s_cmp_lt_u32 s%d, 256" % sNext)
            A("s_cselect_b32 s%d, s%d, 0x4000000" % (sOff, sOff))
            issue_K(kbn, sOff)
            issue_ticket()
        else:
            g.nop(3)
            dpp("v_add_f32", r0, tY0, tX0, "row_ror:8")
            dpp("v_add_f32", r1, tY1, tX1, "row_ror:8")
            g.nop(1)
        dpp("v_add_f32", u, r0, r0, "row_shl:4", "0x5")
        dpp("v_add_f32", u, r1, r1, "row_shr:4", "0xa")
        g.nop(2)
        dpp("v_add_f32", u, u, u, "quad_perm:[2,3,0,1]")
        g.nop(2)
        dpp("v_add_f32", u, u, u, "quad_perm:[1,0,3,2]")
        bf16_round(sv, u)
        A("v_mul_f32 v%d, s%d, v%d" % (sv, sScale, sv))
        bf16_round(sv, sv)
        g.nop(2)
        dpp("v_max_f32", mx, sv, sv, "row_ror:4")
        g.nop(2)
        dpp("v_max_f32", mx, mx, mx, "row_ror:8")
        xrow16("v_max_f32", mx, tm)
        xrow32("v_max_f32", mx, tm)
        A("v_max_f32 v%d, v%d, v%d" % (mx, mx, vM))
        A("v_sub_f32 v%d, v%d, v%d" % (p, sv, mx))
        A("v_sub_f32 v%d, v%d, v%d" % (al, vM, mx))
        A("v_mul_f32 v%d, s%d, v%d" % (p, sL2E, p))
        A("v_mul_f32 v%d, s%d, v%d" % (al, sL2E, al))
        A("v_exp_f32 v%d, v%d" % (p, p))
        A("v_exp_f32 v%d, v%d" % (al, al))
        A("v_mov_b32 v%d, v%d" % (vM, mx))
        A("v_cvt_pk_bf16_f32 v%d, v%d, v%d" % (pd, p, p))
        for r in range(4):
            A("v_mul_f32 v%d, v%d, v%d" % (vAcc + r, vAcc + r, al))
        dpp("v_add_f32", ps, p, p, "row_ror:4")
        for j in range(4):
            B = vBa if j % 2 == 0 else vBb
            for d in range(4):
                dpp("v_and_b32", B + d, pd, vMask + d, "row_newbcast:%d" % (4 * j))
            if j == 0:
                dpp("v_add_f32", ps, ps, ps, "row_ror:8")
            elif j == 1:
                A("v_mov_b32 v%d, v%d" % (tm, ps))
            elif j == 2:
                A("v_permlane16_swap_b32 v%d, v%d" % (ps, tm))
            elif j == 3:
                A("v_add_f32 v%d, v%d, v%d" % (ps, ps, tm))
            if vwait_base is not None:
                A("s_waitcnt vmcnt(%d)" % (vwait_base + 3 - j))
            else:
                g.nop(1)
            A("v_mfma_f32_16x16x32_bf16 %s, %s, %s, %s" % (vr(vAcc, 4), vr(vb + 4 * j, 4), vr(B, 4), vr(vAcc, 4)))
        if nxt is not None:
            issue_V(nxt[1], sOff)
        xrow32("v_add_f32", ps, tm)
        A("v_fma_f32 v%d, v%d, v%d, v%d" % (vL, vL, al, ps))

    def dump_state(b):
        A("s_lshl_b32 s%d, s%d, 10" % (sTmp, sW))
        A("v_add_u32 v%d, s%d, v%d" % (T[0], sTmp, vV))
        A("s_lshl_b32 s%d, s%d, 3" % (sTmp, sW))
        A("v_mov_b32 v%d, s%d" % (T[1], sTmp))
        A("ds_write_b128 v%d, %s offset:%d" % (T[0], vr(vAcc, 4), LC + 8192 * b))
        A("ds_write_b64 v%d, %s offset:%d" % (T[1], vr(vM, 2), LML + 64 * b))

    body(SB + 0, SB + 16, vQ0, None, None, None)
    body(SB + 32, SB + 48, vQ0, None, None, None)
    body(SB + 64, SB + 80, vQ0, 12, 8, None)
    body(SB + 96, SB + 112, vQ0, 4, 5, (SB + 0, SB + 16, None))
    A("s_mov_b32 s%d, s%d" % (sCur, sNext))
    dump_state(0)
    g.ts(4)

    A("s_mul_i32 s%d, s%d, 6144" % (sTmp, sW))
    A("v_add_u32 v%d, s%d, v%d" % (T[2], sTmp, vV))
    for k in range(6):
        A("ds_write_b128 v%d, %s offset:%d" % (T[2], vr(vW + 4 * k, 4), LW + 1024 * k))
    A("v_bfe_u32 v%d, v%d, 2, 2" % (T[3], vLane))
    A("v_and_b32 v%d, 3, v%d" % (T[4], vLane))
    A("v_lshl_add_u32 v%d, v%d, 3, v%d" % (T[5], vG, T[3]))
    A("v_lshlrev_b32 v%d, 1, v%d" % (T[6], vG))
    A("v_lshl_add_u32 v%d, v%d, 3, v%d" % (T[6], T[3], T[6]))
    A("s_cmp_eq_u32 s%d, 1" % sRole)
    A("s_cselect_b64 vcc, -1, 0")
    A("s_cselect_b32 s%d, 32, 128" % sTmp2)
    g.nop(1)
    A("v_cndmask_b32 v%d, v%d, v%d, vcc" % (T[5], T[5], T[6]))
    A("v_lshlrev_b32 v%d, 5, v%d" % (T[5], T[5]))
    A("v_lshl_add_u32 v%d, v%d, 3, v%d" % (T[5], T[4], T[5]))
    A("v_add_u32 v%d, s%d, v%d" % (T[5], sTmp, T[5]))
    A("v_add_u32 v%d, s%d, v%d" % (T[6], sTmp2, T[5]))
    A("s_waitcnt lgkmcnt(0)")
    for k in range(6):
        A("ds_read_b64_tr_b16 %s, v%d offset:%d" % (vr(vW + 4 * k, 2), T[5], LW + 1024 * k))
        A("ds_read_b64_tr_b16 %s, v%d offset:%d" % (vr(vW + 4 * k + 2, 2), T[6], LW + 1024 * k))
    A("s_waitcnt lgkmcnt(0)")
    lcs = g.newlab("nocs")
    A("s_cmp_lg_u32 s%d, 2" % sRole)
    A("s_cbranch_scc1 %s" % lcs)
    for d in range(4):
        A("v_mov_b32 v%d, 0x3f803f80" % (vBa + d))
    g.nop(2)
    A("v_mfma_f32_16x16x32_bf16 %s, %s, %s, 0" % (vr(vU, 4), vr(vBa, 4), vr(vW, 4)))
    A("v_mfma_f32_16x16x32_bf16 %s, %s, %s, %s" % (vr(vU, 4), vr(vBa, 4), vr(vW + 4, 4), vr(vU, 4)))
    A("s_lshl_b32 s%d, s%d, 2" % (sTmp, sW))
    A("v_lshlrev_b32 v%d, 5, v%d" % (T[2], vI))
    A("v_add_u32 v%d, s%d, v%d" % (T[2], sTmp, T[2]))
    g.nop(8)
    A("ds_write_b32 v%d, v%d offset:%d" % (T[2], vU, LCS))
    A("s_waitcnt lgkmcnt(0)")
    g.lab(lcs)
    reset_state()

    lloop, lexit = g.newlab("loop"), g.newlab("exit")
    g.lab(lloop)
    A("s_cmp_ge_u32 s%d, 256" % sCur)
    A("s_cbranch_scc1 %s" % lexit)
    body(SB + 0, SB + 16, vQ1, 5, 5, (SB + 0, SB + 16, 4))
    A("s_mov_b32 s%d, s%d" % (sCur, sNext))
    A("s_branch %s" % lloop)
    g.lab(lexit)
    g.ts(5)
    dump_state(1)
    A("s_waitcnt lgkmcnt(0)")
    A("s_barrier")

    lnc = g.newlab("nocomb")
    A("s_cmp_ge_u32 s%d, 2" % sW)
    A("s_cbranch_scc1 %s" % lnc)
    C = SB + 64
    A("v_and_b32 v%d, 7, v%d" % (T[0], vI))
    A("v_lshl_add_u32 v%d, v%d, 4, v%d" % (T[1], vG, T[0]))
    A("v_lshlrev_b32 v%d, 4, v%d" % (T[1], T[1]))
    A("v_lshrrev_b32 v%d, 3, v%d" % (T[2], vI))
    A("v_lshl_add_u32 v%d, v%d, 12, v%d" % (T[1], T[2], T[1]))
    A("s_lshl_b32 s%d, s%d, 13" % (sTmp, sW))
    A("v_add_u32 v%d, s%d, v%d" % (T[1], sTmp, T[1]))
    A("s_lshl_b32 s%d, s%d, 6" % (sTmp, sW))
    A("v_lshlrev_b32 v%d, 5, v%d" % (T[3], T[2]))
    A("v_add_u32 v%d, s%d, v%d" % (T[3], sTmp, T[3]))
    A("v_xor_b32 v%d, 32, v%d" % (T[4], T[3]))
    A("ds_read_b128 %s, v%d offset:%d" % (vr(C + 16, 4), T[3], LML))
    A("ds_read_b128 %s, v%d offset:%d" % (vr(C + 20, 4), T[3], LML + 16))
    A("ds_read_b128 %s, v%d offset:%d" % (vr(C + 24, 4), T[4], LML))
    A("ds_read_b128 %s, v%d offset:%d" % (vr(C + 28, 4), T[4], LML + 16))
    for k in range(4):
        A("ds_read_b128 %s, v%d offset:%d" % (vr(C + 4 * k, 4), T[1], LC + 1024 * k))
    A("v_lshl_add_u32 v%d, v%d, 3, v%d" % (T[5], vG, T[0]))
    A("v_lshlrev_b32 v%d, 3, v%d" % (T[5], T[5]))
    A("s_lshl_b32 s%d, s%d, 12" % (sTmp, sH))
    A("s_lshl_b32 s%d, s%d, 3" % (sTmp2, sW))
    A("s_add_u32 s%d, s%d, s%d" % (sTmp2, sTmp2, sT))
    A("s_lshl_b32 s%d, s%d, 8" % (sOff, sTmp2))
    A("s_add_u32 s%d, s%d, s%d" % (sTmp, sTmp, sOff))
    A("s_add_u32 s%d, s%d, 0x%x" % (sTmp, sTmp, WS_OP))
    A("s_lshl_b32 s%d, s%d, 4" % (sTmp2, sTmp2))
    A("s_lshl_b32 s%d, s%d, 8" % (sOff, sH))
    A("s_add_u32 s%d, s%d, s%d" % (sTmp2, sTmp2, sOff))
    A("s_add_u32 s%d, s%d, 0x%x" % (sTmp2, sTmp2, WS_ST))
    A("s_waitcnt lgkmcnt(4)")
    Mx, Ls = T[6], T[7]
    A("v_max3_f32 v%d, v%d, v%d, v%d" % (Mx, C + 16, C + 18, C + 20))
    A("v_max3_f32 v%d, v%d, v%d, v%d" % (T[8], C + 22, C + 24, C + 26))
    A("v_max3_f32 v%d, v%d, v%d, v%d" % (Mx, Mx, C + 28, C + 30))
    A("v_max_f32 v%d, v%d, v%d" % (Mx, Mx, T[8]))
    Fk = T[8:12]
    for k in range(4):
        A("v_sub_f32 v%d, v%d, v%d" % (Fk[k], C + 16 + 2 * k, Mx))
    for k in range(4):
        A("v_mul_f32 v%d, s%d, v%d" % (Fk[k], sL2E, Fk[k]))
    for k in range(4):
        A("v_exp_f32 v%d, v%d" % (Fk[k], Fk[k]))
    A("s_waitcnt lgkmcnt(0)")
    A("v_mul_f32 v%d, v%d, v%d" % (Ls, Fk[0], C + 17))
    O = T[12:16]
    for r in range(4):
        A("v_mul_f32 v%d, v%d, v%d" % (O[r], Fk[0], C + r))
    for k in range(1, 4):
        A("v_fmac_f32 v%d, v%d, v%d" % (Ls, Fk[k], C + 17 + 2 * k))
        for r in range(4):
            A("v_fmac_f32 v%d, v%d, v%d" % (O[r], Fk[k], C + 4 * k + r))
    dpp("v_add_f32", Ls, Ls, Ls, "row_ror:8")
    g.nop(1)
    for r in range(4):
        dpp("v_add_f32", O[r], O[r], O[r], "row_ror:8")
    P0 = T[16]
    A("v_cvt_pk_bf16_f32 v%d, v%d, v%d" % (P0, O[0], O[1]))
    A("v_cvt_pk_bf16_f32 v%d, v%d, v%d" % (P0 + 1, O[2], O[3]))
    A("v_min_u32 v%d, -2, v%d" % (P0, P0))
    A("v_min_u32 v%d, -2, v%d" % (P0 + 1, P0 + 1))
    A("buffer_store_dwordx2 %s, v%d, %s, s%d offen sc1" % (vr(P0, 2), T[5], srd(rWS), sTmp))
    A("v_min_u32 v%d, -2, v%d" % (Mx, Mx))
    A("v_min_u32 v%d, -2, v%d" % (Ls, Ls))
    A("buffer_store_dwordx2 %s, v%d, %s, s%d offen sc1" % (vr(Mx, 2), vTkA, srd(rWS), sTmp2))
    g.lab(lnc)
    g.ts(6)

    lW, lF1, lF2, lfin = g.newlab("roleW"), g.newlab("roleF1"), g.newlab("roleF2"), g.newlab("fin")
    A("s_cmp_eq_u32 s%d, 0" % sRole)
    A("s_cbranch_scc1 %s" % lfin)
    A("s_mov_b32 s%d, %d" % (sCnt, POLL_LIMIT))
    A("s_cmp_eq_u32 s%d, 2" % sRole)
    A("s_cbranch_scc1 %s" % lF1)
    A("s_cmp_eq_u32 s%d, 3" % sRole)
    A("s_cbranch_scc1 %s" % lF2)

    def sentinel_check(regs, t, lab_ok):
        regs = list(regs)
        first = True
        cur = None
        while regs:
            if cur is None:
                if len(regs) >= 3:
                    A("v_max3_u32 v%d, v%d, v%d, v%d" % (t, regs[0], regs[1], regs[2]))
                    regs = regs[3:]
                elif len(regs) == 2:
                    A("v_max_u32 v%d, v%d, v%d" % (t, regs[0], regs[1]))
                    regs = []
                else:
                    A("v_mov_b32 v%d, v%d" % (t, regs[0]))
                    regs = []
                cur = t
            else:
                if len(regs) >= 2:
                    A("v_max3_u32 v%d, v%d, v%d, v%d" % (t, t, regs[0], regs[1]))
                    regs = regs[2:]
                else:
                    A("v_max_u32 v%d, v%d, v%d" % (t, t, regs[0]))
                    regs = []
        A("v_cmp_eq_u32 vcc, -1, v%d" % t)
        A("s_cbranch_vccz %s" % lab_ok)

    def poll_tail(lab):
        A("s_sub_u32 s%d, s%d, 1" % (sCnt, sCnt))
        A("s_cmp_lg_u32 s%d, 0" % sCnt)
        A("s_cbranch_scc1 %s" % lab)

    P = SB + 64
    g.lab(lW)
    A("v_lshlrev_b32 v%d, 8, v%d" % (T[0], vI))
    A("v_lshl_add_u32 v%d, v%d, 4, v%d" % (T[0], vG, T[0]))
    A("s_lshl_b32 s%d, s%d, 3" % (sTmp, sRB))
    A("s_add_u32 s%d, s%d, s%d" % (sTmp, sTmp, sW))
    A("s_lshl_b32 s%d, s%d, 8" % (sTmp2, sTmp))
    A("s_add_u32 s%d, s%d, 0x%x" % (sTmp2, sTmp2, WS_ST))
    A("s_lshl_b32 s%d, s%d, 12" % (sTmp, sTmp))
    A("s_add_u32 s%d, s%d, 0x%x" % (sTmp, sTmp, WS_OP))
    A("v_and_b32 v%d, 7, v%d" % (T[1], vI))
    A("v_and_b32 v%d, 1, v%d" % (T[2], vG))
    A("v_lshlrev_b32 v%d, 2, v%d" % (T[2], T[2]))
    A("v_xor_b32 v%d, v%d, v%d" % (T[1], T[1], T[2]))
    A("v_lshlrev_b32 v%d, 4, v%d" % (T[1], T[1]))
    A("v_lshrrev_b32 v%d, 1, v%d" % (T[2], vG))
    A("v_lshl_add_u32 v%d, v%d, 7, v%d" % (T[1], T[2], T[1]))
    A("s_lshl_b32 s%d, s%d, 2" % (sOff, sW))
    A("v_lshlrev_b32 v%d, 5, v%d" % (T[3], vLane))
    A("v_add_u32 v%d, s%d, v%d" % (T[4], sOff, T[3]))
    lp, lok = g.newlab("wp"), g.newlab("wok")
    g.lab(lp)
    for j in range(4):
        A("buffer_load_dwordx4 %s, v%d, %s, s%d offen offset:%d sc1" % (vr(P + 4 * j, 4), T[0], srd(rWS), sTmp, 64 * j))
    A("buffer_load_dwordx2 %s, v%d, %s, s%d offen sc1" % (vr(P + 16, 2), T[1], srd(rWS), sTmp2))
    A("s_waitcnt vmcnt(0)")
    sentinel_check(range(P, P + 18), T[5], lok)
    poll_tail(lp)
    g.lab(lok)
    g.ts(7)
    D = T[6]
    A("v_mfma_f32_16x16x32_bf16 %s, %s, %s, 0" % (vr(D, 4), vr(P, 4), vr(vW, 4)))
    for j in range(1, 4):
        A("v_mfma_f32_16x16x32_bf16 %s, %s, %s, %s" % (vr(D, 4), vr(P + 4 * j, 4), vr(vW + 4 * j, 4), vr(D, 4)))
    mm, ee, ll = T[10], T[11], T[12]
    dpp("v_max_f32", mm, P + 16, P + 16, "quad_perm:[1,0,3,2]")
    g.nop(2)
    dpp("v_max_f32", mm, mm, mm, "quad_perm:[2,3,0,1]")
    g.nop(2)
    dpp("v_max_f32", mm, mm, mm, "row_half_mirror")
    A("v_sub_f32 v%d, v%d, v%d" % (ee, P + 16, mm))
    A("v_mul_f32 v%d, s%d, v%d" % (ee, sL2E, ee))
    A("v_exp_f32 v%d, v%d" % (ee, ee))
    g.nop(1)
    A("v_mul_f32 v%d, v%d, v%d" % (ll, ee, P + 17))
    g.nop(2)
    dpp("v_add_f32", ll, ll, ll, "quad_perm:[1,0,3,2]")
    g.nop(2)
    dpp("v_add_f32", ll, ll, ll, "quad_perm:[2,3,0,1]")
    g.nop(2)
    dpp("v_add_f32", ll, ll, ll, "row_half_mirror")
    A("v_rcp_f32 v%d, v%d" % (ll, ll))
    g.nop(1)
    A("v_mul_f32 v%d, v%d, v%d" % (ee, ee, ll))
    g.nop(2)
    y = T[13]
    dpp("v_mul_f32", y, ee, D + 0, "row_newbcast:0")
    for r in range(1, 4):
        dpp("v_fmac_f32", y, ee, D + r, "row_newbcast:%d" % r)
    A("ds_write_b32 v%d, v%d offset:%d" % (T[4], y, LR))
    A("s_waitcnt lgkmcnt(0)")
    A("s_barrier")
    A("s_cmp_lg_u32 s%d, 0" % sW)
    A("s_cbranch_scc1 %s" % lfin)
    A("ds_read_b128 %s, v%d offset:%d" % (vr(P, 4), T[3], LR))
    A("ds_read_b128 %s, v%d offset:%d" % (vr(P + 4, 4), T[3], LR + 16))
    A("v_lshrrev_b32 v%d, 1, v%d" % (T[0], vG))
    A("v_lshlrev_b32 v%d, 11, v%d" % (T[0], T[0]))
    A("v_lshl_add_u32 v%d, v%d, 2, v%d" % (T[0], vI, T[0]))
    A("s_lshl_b32 s%d, s%d, 12" % (sTmp, sRB))
    A("s_lshl_b32 s%d, s%d, 6" % (sTmp2, sRA))
    A("s_add_u32 s%d, s%d, s%d" % (sTmp, sTmp, sTmp2))
    A("s_add_u32 s%d, s%d, 0x%x" % (sTmp, sTmp, WS_AP))
    A("s_waitcnt lgkmcnt(0)")
    for st in (4, 2, 1):
        for k in range(st):
            A("v_add_f32 v%d, v%d, v%d" % (P + k, P + k, P + k + st))
    xrow16("v_add_f32", P, T[1])
    A("v_min_u32 v%d, -2, v%d" % (P, P))
    A("buffer_store_dword v%d, v%d, %s, s%d offen sc1" % (P, T[0], srd(rWS), sTmp))
    g.ts(8)
    A("s_branch %s" % lfin)

    g.lab(lF1)
    A("v_lshrrev_b32 v%d, 2, v%d" % (T[0], vI))
    A("v_lshlrev_b32 v%d, 12, v%d" % (T[0], T[0]))
    A("v_and_b32 v%d, 1, v%d" % (T[1], vI))
    A("v_lshl_add_u32 v%d, v%d, 11, v%d" % (T[1], T[1], T[0]))
    A("v_bfe_u32 v%d, v%d, 1, 1" % (T[2], vI))
    A("v_lshl_add_u32 v%d, v%d, 7, v%d" % (T[0], T[2], T[1]))
    A("v_lshl_add_u32 v%d, v%d, 5, v%d" % (T[0], vG, T[0]))
    A("s_lshl_b32 s%d, s%d, 8" % (sTmp, sW))
    A("s_add_u32 s%d, s%d, 0x%x" % (sTmp, sTmp, WS_AP))
    A("s_mov_b32 s%d, 0x%x" % (sTmp2, WS_AP))
    XF = vU
    for k in range(4):
        A("v_lshlrev_b32 v%d, 16, v%d" % (XF + 2 * k, vXR + k))
        A("v_and_b32 v%d, 0xffff0000, v%d" % (XF + 2 * k + 1, vXR + k))
    A("v_lshlrev_b32 v%d, 16, v%d" % (vXs, vXs))
    A("v_lshlrev_b32 v%d, 16, v%d" % (vBias, vBias))
    A("v_and_b32 v%d, 31, v%d" % (T[3], vLane))
    A("v_lshlrev_b32 v%d, 5, v%d" % (T[3], T[3]))
    A("s_lshl_b32 s%d, s%d, 2" % (sOff, sW))
    A("v_add_u32 v%d, s%d, v%d" % (T[4], sOff, T[3]))
    A("v_and_b32 v%d, 1, v%d" % (T[5], vI))
    A("v_lshlrev_b32 v%d, 6, v%d" % (T[5], T[5]))
    A("s_lshl_b32 s%d, s%d, 3" % (sOff, sW))
    A("v_add_u32 v%d, s%d, v%d" % (T[5], sOff, T[5]))
    vCS = vU + 8
    A("v_lshlrev_b32 v%d, 5, v%d" % (T[6], vI))
    A("ds_read_b128 %s, v%d offset:%d" % (vr(P, 4), T[6], LCS))
    A("ds_read_b128 %s, v%d offset:%d" % (vr(P + 4, 4), T[6], LCS + 16))
    A("s_waitcnt lgkmcnt(0)")
    for st in (4, 2, 1):
        for k in range(st):
            A("v_add_f32 v%d, v%d, v%d" % (P + k, P + k, P + k + st))
    A("v_mov_b32 v%d, v%d" % (vCS, P))
    lp, lok = g.newlab("f1p"), g.newlab("f1ok")
    g.lab(lp)
    A("buffer_load_dwordx4 %s, v%d, %s, s%d offen sc1" % (vr(P, 4), T[0], srd(rWS), sTmp))
    A("buffer_load_dwordx4 %s, v%d, %s, s%d offen offset:16 sc1" % (vr(P + 4, 4), T[0], srd(rWS), sTmp))
    A("buffer_load_dword v%d, v%d, %s, s%d offen sc1" % (P + 8, T[1], srd(rWS), sTmp2))
    A("s_waitcnt vmcnt(0)")
    sentinel_check(range(P, P + 9), T[6], lok)
    poll_tail(lp)
    g.lab(lok)
    g.ts(7)
    for k in range(9):
        dpp("v_add_f32", P + k, P + k, P + k, "row_ror:4")
    for k in range(9):
        dpp("v_add_f32", P + k, P + k, P + k, "row_ror:8")
    HP = T[6]
    AP_ = T[10]
    for k in range(4):
        A("v_cvt_pk_bf16_f32 v%d, v%d, v%d" % (AP_ + k, P + 2 * k, P + 2 * k + 1))
    bf16_round(P + 8, P + 8)
    for k in range(4):
        A("v_lshlrev_b32 v%d, 16, v%d" % (P + 2 * k, AP_ + k))
        A("v_and_b32 v%d, 0xffff0000, v%d" % (P + 2 * k + 1, AP_ + k))
    A("v_add_f32 v%d, v%d, v%d" % (P + 8, P + 8, vXs))
    for k in range(8):
        A("v_add_f32 v%d, v%d, v%d" % (P + k, P + k, XF + k))
    for k in range(4):
        A("v_cvt_pk_bf16_f32 v%d, v%d, v%d" % (HP + k, P + 2 * k, P + 2 * k + 1))
    bf16_round(P + 8, P + 8)
    D0, D1 = P + 12, P + 16
    A("v_mfma_f32_16x16x32_bf16 %s, %s, %s, 0" % (vr(D0, 4), vr(HP, 4), vr(vW, 4)))
    A("v_mfma_f32_16x16x32_bf16 %s, %s, %s, 0" % (vr(D1, 4), vr(HP, 4), vr(vW + 4, 4)))
    for k in range(4):
        A("v_lshlrev_b32 v%d, 16, v%d" % (P + 2 * k, HP + k))
        A("v_and_b32 v%d, 0xffff0000, v%d" % (P + 2 * k + 1, HP + k))
    for k in range(8):
        A("v_sub_f32 v%d, v%d, v%d" % (P + k, P + k, P + 8))
    SS, QQ = T[14], T[15]
    A("v_add_f32 v%d, v%d, v%d" % (SS, P, P + 1))
    A("v_mul_f32 v%d, v%d, v%d" % (QQ, P, P))
    A("v_add_f32 v%d, v%d, v%d" % (T[16], P + 2, P + 3))
    A("v_mul_f32 v%d, v%d, v%d" % (T[17], P + 1, P + 1))
    A("v_add_f32 v%d, v%d, v%d" % (SS, SS, P + 4))
    A("v_fmac_f32 v%d, v%d, v%d" % (QQ, P + 2, P + 2))
    A("v_add_f32 v%d, v%d, v%d" % (T[16], T[16], P + 5))
    A("v_fmac_f32 v%d, v%d, v%d" % (T[17], P + 3, P + 3))
    A("v_add_f32 v%d, v%d, v%d" % (SS, SS, P + 6))
    A("v_fmac_f32 v%d, v%d, v%d" % (QQ, P + 4, P + 4))
    A("v_add_f32 v%d, v%d, v%d" % (T[16], T[16], P + 7))
    A("v_fmac_f32 v%d, v%d, v%d" % (T[17], P + 5, P + 5))
    A("v_fmac_f32 v%d, v%d, v%d" % (QQ, P + 6, P + 6))
    A("v_fmac_f32 v%d, v%d, v%d" % (T[17], P + 7, P + 7))
    A("v_add_f32 v%d, v%d, v%d" % (SS, SS, T[16]))
    A("v_add_f32 v%d, v%d, v%d" % (QQ, QQ, T[17]))
    A("v_add_f32 v%d, v%d, v%d" % (T[18], D0, D1 + 2))
    A("v_add_f32 v%d, v%d, v%d" % (T[19], D0 + 1, D1 + 3))
    dpp("v_add_f32", SS, SS, SS, "quad_perm:[2,3,0,1]")
    dpp("v_add_f32", QQ, QQ, QQ, "quad_perm:[2,3,0,1]")
    A("v_cndmask_b32 v%d, v%d, v%d, s[%d:%d]" % (T[18], T[18], T[19], sMg1, sMg1 + 1))
    A("ds_write_b32 v%d, v%d offset:%d" % (T[4], T[18], LR))
    multi_xrow(16, "v_add_f32", [SS, QQ], [T[16], T[17]])
    multi_xrow(32, "v_add_f32", [SS, QQ], [T[16], T[17]])
    exec_set(3)
    A("ds_write_b64 v%d, %s offset:%d" % (T[5], vr(SS, 2), LST))
    exec_all()
    A("s_waitcnt lgkmcnt(0)")
    A("s_barrier")
    A("s_cmp_lg_u32 s%d, 0" % sW)
    A("s_cbranch_scc1 %s" % lfin)
    A("v_and_b32 v%d, 1, v%d" % (T[0], vG))
    A("v_lshlrev_b32 v%d, 6, v%d" % (T[0], T[0]))
    Z = P + 0
    SQ = P + 12
    A("ds_read_b128 %s, v%d offset:%d" % (vr(SQ, 4), T[0], LST))
    A("ds_read_b128 %s, v%d offset:%d" % (vr(SQ + 4, 4), T[0], LST + 16))
    A("ds_read_b128 %s, v%d offset:%d" % (vr(SQ + 8, 4), T[0], LST + 32))
    A("ds_read_b128 %s, v%d offset:%d" % (vr(SQ + 12, 4), T[0], LST + 48))
    cc = T[1]
    A("v_mov_b32_dpp v%d, v%d row_newbcast:0 %s" % (cc, P + 8, DPPALL))
    A("v_mov_b32_dpp v%d, v%d row_newbcast:1 %s" % (T[2], P + 8, DPPALL))
    A("ds_read_b128 %s, v%d offset:%d" % (vr(Z, 4), T[3], LR))
    A("ds_read_b128 %s, v%d offset:%d" % (vr(Z + 4, 4), T[3], LR + 16))
    A("v_cndmask_b32 v%d, v%d, v%d, s[%d:%d]" % (cc, cc, T[2], sMg1, sMg1 + 1))
    A("v_lshrrev_b32 v%d, 1, v%d" % (T[4], vI))
    A("v_lshl_add_u32 v%d, v%d, 2, v%d" % (T[4], T[4], T[0]))
    A("s_lshr_b32 s%d, s%d, 1" % (sTmp, sRA))
    A("s_lshl_b32 s%d, s%d, 7" % (sTmp, sTmp))
    A("s_and_b32 s%d, s%d, 1" % (sTmp2, sRA))
    A("s_lshl_b32 s%d, s%d, 5" % (sTmp2, sTmp2))
    A("s_add_u32 s%d, s%d, s%d" % (sTmp, sTmp, sTmp2))
    A("s_add_u32 s%d, s%d, 0x%x" % (sTmp, sTmp, WS_G))
    A("s_waitcnt lgkmcnt(2)")
    for st in (8, 4, 2):
        for k in range(st):
            A("v_add_f32 v%d, v%d, v%d" % (SQ + k, SQ + k, SQ + k + st))
    mean, var = T[5], T[6]
    A("v_mul_f32 v%d, %s, v%d" % (mean, f32(1.0 / 512), SQ))
    A("v_mul_f32 v%d, %s, v%d" % (var, f32(1.0 / 512), SQ + 1))
    A("v_fma_f32 v%d, -v%d, v%d, v%d" % (var, mean, mean, var))
    A("v_max_f32 v%d, 0, v%d" % (var, var))
    A("v_add_f32 v%d, v%d, v%d" % (mean, mean, cc))
    ln_scalars(mean, var)
    A("v_rcp_f32 v%d, v%d" % (T[7], var))
    A("s_waitcnt lgkmcnt(0)")
    for st in (4, 2, 1):
        for k in range(st):
            A("v_add_f32 v%d, v%d, v%d" % (Z + k, Z + k, Z + k + st))
    A("v_fma_f32 v%d, -v%d, v%d, v%d" % (Z, mean, vCS, Z))
    div_refined(T[8], Z, var, T[7], T[9])
    bf16_round(T[8], T[8])
    A("v_add_f32 v%d, v%d, v%d" % (T[8], T[8], vBias))
    bf16_round(T[8], T[8])
    kk = 2.0 * 0.7978845608028654 * 1.4426950408889634
    A("v_mul_f32 v%d, v%d, v%d" % (T[9], T[8], T[8]))
    A("v_mov_b32 v%d, %s" % (T[10], f32(-kk)))
    A("v_mul_f32 v%d, %s, v%d" % (T[9], f32(-kk * 0.044715), T[9]))
    A("v_add_f32 v%d, v%d, v%d" % (T[9], T[9], T[10]))
    A("v_mul_f32 v%d, v%d, v%d" % (T[9], T[9], T[8]))
    A("v_exp_f32 v%d, v%d" % (T[9], T[9]))
    g.nop(1)
    A("v_add_f32 v%d, 1.0, v%d" % (T[9], T[9]))
    A("v_rcp_f32 v%d, v%d" % (T[9], T[9]))
    g.nop(1)
    A("v_mul_f32 v%d, v%d, v%d" % (T[8], T[8], T[9]))
    g.nop(2)
    A("v_mov_b32_dpp v%d, v%d quad_perm:[0,0,2,2] %s" % (T[9], T[8], DPPALL))
    A("v_mov_b32_dpp v%d, v%d quad_perm:[1,1,3,3] %s" % (T[10], T[8], DPPALL))
    A("v_cvt_pk_bf16_f32 v%d, v%d, v%d" % (T[9], T[9], T[10]))
    A("v_min_u32 v%d, -2, v%d" % (T[9], T[9]))
    A("buffer_store_dword v%d, v%d, %s, s%d offen sc1" % (T[9], T[4], srd(rWS), sTmp))
    g.ts(8)
    A("s_branch %s" % lfin)

    g.lab(lF2)
    A("s_add_u32 s%d, s%d, 0x%x" % (rB, pWS, WS_G))
    A("s_addc_u32 s%d, s%d, 0" % (rB + 1, pWS + 1))
    A("s_and_b32 s%d, s%d, 0xffff" % (rB + 1, rB + 1))
    A("s_mov_b32 s%d, %d" % (rB + 2, 43 * 128))
    A("s_mov_b32 s%d, 0x20000" % (rB + 3))
    mk_srd(rA, pOUT, 2048)
    A("v_and_b32 v%d, 1, v%d" % (T[0], vI))
    A("v_lshlrev_b32 v%d, 6, v%d" % (T[0], T[0]))
    A("v_lshl_add_u32 v%d, v%d, 4, v%d" % (T[0], vG, T[0]))
    A("s_lshl_b32 s%d, s%d, 7" % (sTmp, sW))
    A("v_add_u32 v%d, s%d, v%d" % (T[0], sTmp, T[0]))
    A("v_add_u32 v%d, 0x1000, v%d" % (T[1], T[0]))
    A("v_lshlrev_b32 v%d, 16, v%d" % (vXs, vXs))
    A("v_lshlrev_b32 v%d, 16, v%d" % (vBias, vBias))
    A("v_and_b32 v%d, 31, v%d" % (T[3], vLane))
    A("v_lshlrev_b32 v%d, 5, v%d" % (T[3], T[3]))
    A("s_lshl_b32 s%d, s%d, 2" % (sOff, sW))
    A("v_add_u32 v%d, s%d, v%d" % (T[4], sOff, T[3]))
    vH = vU
    lnh = g.newlab("noh")
    A("s_cmp_lg_u32 s%d, 0" % sW)
    A("s_cbranch_scc1 %s" % lnh)
    A("v_and_b32 v%d, 1, v%d" % (T[5], vG))
    A("v_lshlrev_b32 v%d, 11, v%d" % (T[5], T[5]))
    A("v_lshl_add_u32 v%d, v%d, 2, v%d" % (T[5], vI, T[5]))
    A("s_lshl_b32 s%d, s%d, 6" % (sTmp, sRA))
    A("s_add_u32 s%d, s%d, 0x%x" % (sTmp, sTmp, WS_AP))
    A("s_add_u32 s%d, s%d, 0x1000" % (sTmp2, sTmp))
    A("s_add_u32 s%d, s%d, 0x2000" % (sOff, sTmp))
    A("s_add_u32 s%d, s%d, 0x3000" % (sNext, sTmp))
    lp, lok = g.newlab("hp"), g.newlab("hok")
    g.lab(lp)
    for k, s in enumerate((sTmp, sTmp2, sOff, sNext)):
        A("buffer_load_dword v%d, v%d, %s, s%d offen sc1" % (P + k, T[5], srd(rWS), s))
    A("s_waitcnt vmcnt(0)")
    sentinel_check(range(P, P + 4), T[6], lok)
    poll_tail(lp)
    g.lab(lok)
    A("v_add_f32 v%d, v%d, v%d" % (P, P, P + 3))
    A("v_add_f32 v%d, v%d, v%d" % (P + 2, P + 2, P + 1))
    A("v_add_f32 v%d, v%d, v%d" % (P, P, P + 2))
    bf16_round(P, P)
    A("v_add_f32 v%d, v%d, v%d" % (vH, P, vXs))
    bf16_round(vH, vH)
    g.lab(lnh)
    lp, lok = g.newlab("f2p"), g.newlab("f2ok")
    g.lab(lp)
    for k in range(6):
        A("buffer_load_dwordx4 %s, v%d, %s, 0 offen offset:%d sc1" % (vr(P + 4 * k, 4), T[0] if k < 4 else T[1], srd(rB), 1024 * (k & 3)))
    A("s_waitcnt vmcnt(0)")
    sentinel_check(range(P, P + 24), T[6], lok)
    poll_tail(lp)
    g.lab(lok)
    g.ts(7)
    D = T[6]
    A("v_mfma_f32_16x16x32_bf16 %s, %s, %s, 0" % (vr(D, 4), vr(P, 4), vr(vW, 4)))
    for k in range(1, 6):
        A("v_mfma_f32_16x16x32_bf16 %s, %s, %s, %s" % (vr(D, 4), vr(P + 4 * k, 4), vr(vW + 4 * k, 4), vr(D, 4)))
    g.nop(8)
    A("v_cndmask_b32 v%d, v%d, v%d, s[%d:%d]" % (T[10], D, D + 1, sMg1, sMg1 + 1))
    A("ds_write_b32 v%d, v%d offset:%d" % (T[4], T[10], LR))
    A("s_waitcnt lgkmcnt(0)")
    A("s_barrier")
    A("s_cmp_lg_u32 s%d, 0" % sW)
    A("s_cbranch_scc1 %s" % lfin)
    A("ds_read_b128 %s, v%d offset:%d" % (vr(P, 4), T[3], LR))
    A("ds_read_b128 %s, v%d offset:%d" % (vr(P + 4, 4), T[3], LR + 16))
    A("v_and_b32 v%d, 1, v%d" % (T[0], vG))
    A("v_lshlrev_b32 v%d, 10, v%d" % (T[0], T[0]))
    A("v_lshrrev_b32 v%d, 1, v%d" % (T[1], vI))
    A("v_lshl_add_u32 v%d, v%d, 2, v%d" % (T[0], T[1], T[0]))
    A("s_lshl_b32 s%d, s%d, 5" % (sTmp, sRA))
    A("s_waitcnt lgkmcnt(0)")
    for st in (4, 2, 1):
        for k in range(st):
            A("v_add_f32 v%d, v%d, v%d" % (P + k, P + k, P + k + st))
    bf16_round(P, P)
    A("v_add_f32 v%d, v%d, v%d" % (P, P, vBias))
    bf16_round(P, P)
    A("v_add_f32 v%d, v%d, v%d" % (P, P, vH))
    g.nop(2)
    A("v_mov_b32_dpp v%d, v%d quad_perm:[0,0,2,2] %s" % (T[9], P, DPPALL))
    A("v_mov_b32_dpp v%d, v%d quad_perm:[1,1,3,3] %s" % (T[10], P, DPPALL))
    A("v_cvt_pk_bf16_f32 v%d, v%d, v%d" % (T[9], T[9], T[10]))
    A("buffer_store_dword v%d, v%d, %s, s%d offen" % (T[9], T[0], srd(rA), sTmp))
    g.ts(8)

    g.lab(lfin)
    if opt.get("ts"):
        g.ts(9)
        A("s_getreg_b32 s90, hwreg(HW_REG_XCC_ID)")
        A("s_lshl_b32 s%d, s2, 3" % sTmp)
        A("s_add_u32 s%d, s%d, s%d" % (sTmp, sTmp, sW))
        A("s_lshl_b32 s%d, s%d, 6" % (sTmp, sTmp))
        A("s_add_u32 s%d, s%d, 0x%x" % (sTmp, sTmp, WS_TS))
        for k in range(12):
            A("v_mov_b32 v%d, s%d" % (SB + 64 + k, 80 + k))
        for k in range(3):
            A("buffer_store_dwordx4 %s, v%d, %s, s%d offen offset:%d" % (vr(SB + 64 + 4 * k, 4), vTkA, srd(rWS), sTmp, 16 * k))
    g.lab("L_end")
    A("s_endpgm")

    tail = []
    tail.append('.section .rodata,"a"')
    tail.append(".p2align 6")
    tail.append(".amdhsa_kernel %s_kernel" % NAME)
    tail.append("  .amdhsa_next_free_vgpr 256")
    tail.append("  .amdhsa_next_free_sgpr 102")
    tail.append("  .amdhsa_accum_offset 256")
    tail.append("  .amdhsa_group_segment_fixed_size 0")
    tail.append("  .amdhsa_kernarg_size 104")
    tail.append("  .amdhsa_user_sgpr_count 2")
    tail.append("  .amdhsa_user_sgpr_kernarg_segment_ptr 1")
    tail.append("  .amdhsa_system_sgpr_workgroup_id_x 1")
    tail.append("  .amdhsa_float_denorm_mode_32 3")
    tail.append(".end_amdhsa_kernel")
    return "\n".join(hdr + g.L + tail) + "\n"


if __name__ == "__main__":
    out = sys.argv[1]
    opt = {}
    for a in sys.argv[2:]:
        k, _, v = a.partition("=")
        opt[k] = v if v else True
    open(out, "w").write(gen(opt))
```

```python
import sys, struct

NAME = "sequential_preLN__mha_block_cached__dense_activation_gelu__decode"


def f32(x):
    return "0x%08x" % struct.unpack("<I", struct.pack("<f", x))[0]


WS_OP = 0x00000
WS_ST = 0x20000
WS_AP = 0x22000
WS_G = 0x26000
WS_CLR_BYTES = 0x28000
WS_TK = 0x38000
WS_EP = 0x3c000
WS_QP = 0x40000
WS_TS = 0x100000
WS_BYTES = 0x10000000

LQ = 0
LQF = 8192
LML = 8704
LCNT = 8832
LCS = 9216
LST = 11776
LC = 16384
LR = 0
LW = 32768
LDS_BYTES = 32768 + 65536

POLL_LIMIT = 1 << 18
DPPALL = "row_mask:0xf bank_mask:0xf"


class G:
    def __init__(self, opt):
        self.L = []
        self.opt = opt
        self.nlab = 0

    def __call__(self, s):
        self.L.append("    " + s)

    def lab(self, name):
        self.L.append(name + ":")

    def newlab(self, base):
        self.nlab += 1
        return "L_%s_%d" % (base, self.nlab)

    def nop(self, n):
        while n > 0:
            k = min(n, 16)
            self("s_nop %d" % (k - 1))
            n -= k

    def ts(self, idx):
        if self.opt.get("ts"):
            self("s_memrealtime s[76:77]")
            self("s_waitcnt lgkmcnt(0)")
            self("s_mov_b32 s%d, s76" % (80 + idx))


def vr(a, n=1):
    return "v%d" % a if n == 1 else "v[%d:%d]" % (a, a + n - 1)


def gen(opt):
    g = G(opt)
    A = g
    NT = opt.get("nt", "nt")
    WNT = opt.get("wnt", "nt")
    QNT = opt.get("qnt", "")
    DRY = bool(opt.get("dry"))
    vLane, vI, vG = 1, 2, 3
    vKX, vKY, vV = 4, 5, 6
    vTkA = 7
    vMask = 8
    vQ0, vQ1 = 12, 16
    vSel = 16
    vAcc = 20
    vM, vL = 24, 25
    T = list(range(26, 48))
    vBa, vBb = 48, 52
    vTk = 56
    vCS = 57
    vXR = 58
    vBias, vXs = 62, 63
    vWQ = 64
    P = 64
    DD = 96
    SB = 128
    vW = SB + 32
    XF = SB + 96
    sW, sH, sT, sGW = 3, 4, 5, 6
    sTmp, sTmp2 = 7, 8
    sCur, sNext, sOff = 9, 10, 11
    sHB, sCnt, sRole, sRA = 12, 13, 14, 15
    pX, pK, pV, pWQ, pWO, pW1, pB1, pW2, pB2, pOUT, pDBG, pWS = 16, 18, 20, 22, 24, 28, 30, 32, 34, 36, 38, 40
    sRB, sP = 42, 43
    rK, rV, rWS, rA, rB, rDBG = 44, 48, 52, 56, 60, 64
    sScale, sL2E, sTkOff, sHS = 68, 69, 70, 71
    sRet = 72
    sMg1 = 74
    sMi1 = 70
    sSB, sDry, sCB = 92, 93, 94
    sCH, sCI = sH, sT

    def srd(r):
        return "s[%d:%d]" % (r, r + 3)

    def mk_srd(r, p, nbytes):
        A("s_mov_b32 s%d, s%d" % (r, p))
        A("s_and_b32 s%d, s%d, 0xffff" % (r + 1, p + 1))
        A("s_mov_b32 s%d, 0x%x" % (r + 2, nbytes))
        A("s_mov_b32 s%d, 0x20000" % (r + 3))

    def exec_set(lo, hi=0):
        A("s_mov_b32 exec_lo, 0x%x" % lo)
        A("s_mov_b32 exec_hi, 0x%x" % hi)

    def exec_all():
        A("s_mov_b64 exec, -1")

    def bf16_round(dst, src):
        A("v_cvt_pk_bf16_f32 v%d, v%d, v%d" % (dst, src, src))
        A("v_and_b32 v%d, 0xffff0000, v%d" % (dst, dst))

    def dpp(op, dst, src0, src1, ctrl, bank="0xf"):
        A("%s_dpp v%d, v%d, v%d %s row_mask:0xf bank_mask:%s" % (op, dst, src0, src1, ctrl, bank))

    def multi_xrow(kind, op, xs, ts):
        ins = "v_permlane16_swap_b32" if kind == 16 else "v_permlane32_swap_b32"
        for x, t in zip(xs, ts):
            A("v_mov_b32 v%d, v%d" % (t, x))
        g.nop(2)
        for x, t in zip(xs, ts):
            A("%s v%d, v%d" % (ins, x, t))
        g.nop(1)
        for x, t in zip(xs, ts):
            A("%s v%d, v%d, v%d" % (op, x, x, t))

    def xrow16(op, x, t):
        multi_xrow(16, op, [x], [t])

    def xrow32(op, x, t):
        multi_xrow(32, op, [x], [t])

    class dryskip:
        def __enter__(self):
            if DRY:
                self.l = g.newlab("ds")
                A("s_cmp_eq_u32 s%d, 1" % sDry)
                A("s_cbranch_scc1 %s" % self.l)

        def __exit__(self, *a):
            if DRY:
                g.lab(self.l)

    hdr = []
    hdr.append("; @launch grid=(256,1,1) block=(512,1,1) lds=%d" % LDS_BYTES)
    hdr.append('.amdgcn_target "amdgcn-amd-amdhsa--gfx950"')
    hdr.append(".text")
    hdr.append(".globl %s_kernel" % NAME)
    hdr.append(".p2align 8")
    hdr.append(".type %s_kernel,@function" % NAME)
    hdr.append("%s_kernel:" % NAME)

    NPF = int(opt.get("npf", 3))
    sSBW, sTkA, sR, sLB = 97, 98, 43, 101
    vFl, vFA = T[20], T[21]
    A("s_cmp_ge_u32 s2, 256")
    A("s_cbranch_scc1 L_end")
    A("s_load_dwordx16 s[16:31], s[0:1], 0")
    A("s_load_dwordx8 s[32:39], s[0:1], 64")
    A("s_load_dwordx2 s[40:41], s[0:1], 96")
    if opt.get("ts"):
        A("s_memrealtime s[78:79]")
    A("v_and_b32 v%d, 63, v0" % vLane)
    A("v_lshrrev_b32 v%d, 6, v0" % T[0])
    A("v_lshlrev_b32 v%d, 4, v%d" % (vV, vLane))
    A("v_readfirstlane_b32 s%d, v%d" % (sW, T[0]))
    for k in range(4):
        A("v_mov_b32 v%d, 0" % (T[6] + k))
    A("ds_write_b128 v%d, %s offset:%d" % (T[6], vr(T[6], 4), LCNT))
    A("ds_write_b32 v%d, v%d offset:%d" % (T[6], T[6], LCNT + 16))
    if not opt.get("nopf"):
        lpf = g.newlab("nopf")
        A("s_cmp_lt_u32 s%d, 4" % sW)
        A("s_cbranch_scc1 %s" % lpf)
        A("s_getpc_b64 s[%d:%d]" % (rB, rB + 1))
        g.lab("L_pcref")
        A("s_sub_u32 s%d, s%d, L_pcref-%s_kernel" % (rB, rB, NAME))
        A("s_subb_u32 s%d, s%d, 0" % (rB + 1, rB + 1))
        A("s_and_b32 s%d, s%d, 0xffff" % (rB + 1, rB + 1))
        A("s_mov_b32 s%d, L_codeend-%s_kernel" % (rB + 2, NAME))
        A("s_mov_b32 s%d, 0x20000" % (rB + 3))
        A("s_sub_u32 s%d, s%d, 4" % (sTmp, sW))
        A("s_lshl_b32 s%d, s%d, 12" % (sTmp, sTmp))
        for k in range(4):
            A("buffer_load_dwordx4 %s, v%d, %s, s%d offen offset:%d" % (vr(64 + 4 * k, 4), vV, srd(rB), sTmp, 1024 * k))
        g.lab(lpf)
    A("v_and_b32 v%d, 8, v0" % T[1])
    A("v_lshlrev_b32 v%d, 8, v%d" % (T[1], T[1]))
    A("v_add_u32 v%d, v%d, v%d" % (vKX, vV, T[1]))
    A("v_sub_u32 v%d, v%d, v%d" % (vKY, vV, T[1]))
    A("v_add_u32 v%d, 0x800, v%d" % (vKY, vKY))
    A("v_and_b32 v%d, 15, v0" % vI)
    A("v_bfe_u32 v%d, v0, 4, 2" % vG)
    A("s_lshr_b32 s%d, s2, 3" % sH)
    A("s_and_b32 s%d, s2, 7" % sT)
    NS = 7 * NPF + 1
    sIsR, sNA, sNL, sQU = 92, 93, 96, 95
    A("s_mov_b32 s%d, s%d" % (sR, sT))
    A("s_cmp_lt_u32 s%d, 6" % sH)
    A("s_cselect_b32 s%d, 5, 3" % sTmp)
    A("s_cselect_b32 s%d, 5, 6" % sNA)
    A("s_cselect_b32 s%d, 24, 16" % sNL)
    A("s_mul_i32 s%d, s%d, %d" % (sNA, sNA, NS))
    A("s_cmp_lt_u32 s%d, s%d" % (sT, sTmp))
    A("s_cselect_b32 s%d, 1, 0" % sIsR)
    A("s_andn2_b32 s%d, s%d, s%d" % (sIsR, sIsR, sT))
    A("s_sub_u32 s%d, s%d, 1" % (sSBW, sT))
    A("s_cmp_gt_u32 s%d, 2" % sT)
    A("s_subb_u32 s%d, s%d, 0" % (sSBW, sSBW))
    A("s_add_u32 s%d, s%d, s%d" % (sTmp2, sTmp, sT))
    A("s_cmp_eq_u32 s%d, 5" % sTmp)
    A("s_cselect_b32 s%d, s%d, 0" % (sTmp2, sTmp2))
    A("s_cmp_gt_u32 s%d, 9" % sTmp2)
    A("s_subb_u32 s%d, s%d, 0" % (sSBW, sSBW))
    A("s_mul_i32 s%d, s%d, %d" % (sSBW, sSBW, NS))
    A("s_lshl_b32 s%d, s%d, 2" % (sTmp2, sT))
    A("s_add_u32 s%d, s%d, s%d" % (sTmp2, sTmp2, sNA))
    A("s_add_u32 s%d, s%d, 1" % (sTmp2, sTmp2))
    A("s_cmp_eq_u32 s%d, 1" % sIsR)
    A("s_cselect_b32 s%d, s%d, s%d" % (sSBW, sTmp2, sSBW))
    A("s_cselect_b32 s%d, -1, %d" % (sQU, 7 * NPF))
    A("s_add_u32 s%d, s%d, s%d" % (sQU, sQU, sSBW))
    A("s_add_u32 s%d, s%d, s%d" % (sNL, sNL, sNA))
    A("s_lshl_b32 s%d, s%d, 20" % (sTmp, sH))
    A("s_lshl_b32 s%d, s%d, 12" % (sSBW, sSBW))
    A("s_add_u32 s%d, s%d, s%d" % (sSBW, sSBW, sTmp))
    A("s_lshl_b32 s%d, s%d, 12" % (sQU, sQU))
    A("s_add_u32 s%d, s%d, s%d" % (sQU, sQU, sTmp))
    A("v_cmp_eq_u32 vcc, 0, v%d" % vLane)
    A("v_mov_b32 v%d, 0x%x" % (T[5], WS_BYTES))
    A("s_sub_u32 s%d, s%d, 1" % (sTmp, sW))
    A("s_lshl_b32 s%d, s%d, 12" % (sTmp, sTmp))
    A("s_add_u32 s%d, s%d, s%d" % (sOff, sSBW, sTmp))
    A("v_cndmask_b32 v%d, v%d, 0, vcc" % (vTkA, T[5]))
    A("s_waitcnt lgkmcnt(0)")
    mk_srd(rK, pK, 64 << 20)
    mk_srd(rV, pV, 64 << 20)
    mk_srd(rWS, pWS, WS_BYTES)
    mk_srd(rDBG, pDBG, 256)

    def k_loads(kb, soff):
        return [
            "buffer_load_dwordx4 %s, v%d, %s, s%d offen %s" % (vr(kb, 4), vKX, srd(rK), soff, NT),
            "buffer_load_dwordx4 %s, v%d, %s, s%d offen offset:1024 %s" % (vr(kb + 4, 4), vKX, srd(rK), soff, NT),
            "buffer_load_dwordx4 %s, v%d, %s, s%d offen %s" % (vr(kb + 8, 4), vKY, srd(rK), soff, NT),
            "buffer_load_dwordx4 %s, v%d, %s, s%d offen offset:1024 %s" % (vr(kb + 12, 4), vKY, srd(rK), soff, NT)]

    def v_loads(vb, soff):
        return ["buffer_load_dwordx4 %s, v%d, %s, s%d offen offset:%d %s" % (vr(vb + 4 * j, 4), vV, srd(rV), soff, 1024 * j, NT) for j in range(4)]

    def issue_K(kb, soff):
        for s in k_loads(kb, soff):
            A(s)

    def issue_V(vb, soff):
        for s in v_loads(vb, soff):
            A(s)

    def flagload():
        A("buffer_load_dword v%d, v%d, %s, 0 offen sc1" % (vFl, vFA, srd(rDBG)))

    def ln_scalars(vmean, vvar):
        bf16_round(vmean, vmean)
        bf16_round(vvar, vvar)
        A("v_add_f32 v%d, %s, v%d" % (vvar, f32(1e-5), vvar))
        bf16_round(vvar, vvar)
        A("v_sqrt_f32 v%d, v%d" % (vvar, vvar))
        g.nop(1)
        bf16_round(vvar, vvar)

    def div_refined(q, a, b, rb, t):
        A("v_mul_f32 v%d, v%d, v%d" % (q, a, rb))
        A("v_fma_f32 v%d, -v%d, v%d, v%d" % (t, q, b, a))
        A("v_fmac_f32 v%d, v%d, v%d" % (q, t, rb))

    def sentinel_check(regs, t, lab_ok):
        regs = list(regs)
        cur = None
        while regs:
            if cur is None:
                if len(regs) >= 3:
                    A("v_max3_u32 v%d, v%d, v%d, v%d" % (t, regs[0], regs[1], regs[2]))
                    regs = regs[3:]
                elif len(regs) == 2:
                    A("v_max_u32 v%d, v%d, v%d" % (t, regs[0], regs[1]))
                    regs = []
                else:
                    A("v_mov_b32 v%d, v%d" % (t, regs[0]))
                    regs = []
                cur = t
            else:
                if len(regs) >= 2:
                    A("v_max3_u32 v%d, v%d, v%d, v%d" % (t, t, regs[0], regs[1]))
                    regs = regs[2:]
                else:
                    A("v_max_u32 v%d, v%d, v%d" % (t, t, regs[0]))
                    regs = []
        A("v_cmp_eq_u32 vcc, -1, v%d" % t)
        A("s_cbranch_vccz %s" % lab_ok)

    def poll_tail(lab):
        A("s_mov_b64 exec, vcc")
        A("s_sub_u32 s%d, s%d, 1" % (sCnt, sCnt))
        A("s_cmp_gt_i32 s%d, 0" % sCnt)
        A("s_cbranch_scc1 %s" % lab)

    lQ, lsetup, lq2, lwaitq = g.newlab("qpath"), g.newlab("setup"), g.newlab("q2"), g.newlab("waitq")
    A("s_cmp_eq_u32 s%d, 0" % sW)
    A("s_cbranch_scc1 %s" % lQ)
    lsk = g.newlab("skipclr")
    A("s_cmp_lg_u32 s%d, 6" % sR)
    A("s_cbranch_scc1 %s" % lsk)
    A("s_cmp_lg_u32 s%d, 1" % sW)
    A("s_cbranch_scc1 %s" % lsk)
    CV = T[8]
    for k in range(4):
        A("v_mov_b32 v%d, -1" % (CV + k))
    A("v_mov_b32 v%d, 0" % T[12])
    A("v_mov_b32 v%d, 1" % T[13])
    A("s_mul_i32 s%d, s%d, 5120" % (sTmp, sH))
    A("s_add_u32 s%d, s%d, 4096" % (sTmp2, sTmp))
    for k in range(4):
        A("buffer_store_dwordx4 %s, v%d, %s, s%d offen offset:%d sc1" % (vr(CV, 4), vV, srd(rWS), sTmp, 1024 * k))
    A("buffer_store_dwordx4 %s, v%d, %s, s%d offen sc1" % (vr(CV, 4), vV, srd(rWS), sTmp2))
    A("s_lshl_b32 s%d, s%d, 8" % (sTmp, sH))
    A("s_add_u32 s%d, s%d, 0x%x" % (sTmp, sTmp, WS_TK))
    A("buffer_store_dword v%d, v%d, %s, s%d offen sc1" % (T[12], vTkA, srd(rWS), sTmp))
    A("s_lshl_b32 s%d, s%d, 2" % (sTmp, sH))
    A("s_barrier")
    A("s_waitcnt vmcnt(0)")
    A("buffer_store_dword v%d, v%d, %s, s%d offen sc1" % (T[13], vTkA, srd(rDBG), sTmp))
    lpre = g.newlab("pre")
    A("s_branch %s" % lpre)
    g.lab(lsk)
    A("s_barrier")
    g.lab(lpre)
    PACE = int(opt.get("pace", 4))
    for k in range(NPF):
        bb = SB + 32 * k
        if k > 0:
            A("s_waitcnt vmcnt(%d)" % PACE)
        issue_K(bb, sOff)
        if k > 0 or PACE < 4:
            A("s_waitcnt vmcnt(%d)" % PACE)
        issue_V(bb + 16, sOff)
        if k == 0:
            A("s_cmp_eq_u32 s%d, 1" % sIsR)
            A("s_cbranch_scc1 %s" % lsetup)
        if k < NPF - 1:
            A("s_add_u32 s%d, s%d, 0x7000" % (sOff, sOff))
    A("s_branch %s" % lsetup)

    g.lab(lQ)
    A("s_setprio 3")
    sTag = 100
    A("s_load_dword s%d, s[%d:%d], 0x%x" % (sTag, pWS, pWS + 1, WS_EP))
    mk_srd(rA, pX, 2048)
    mk_srd(rB, pWQ, 0 if opt.get("nowq") else 4 << 20)
    vXA = SB + 96
    vXE = SB + 104
    F = [SB + 108 + k for k in range(16)]
    vAx, vAxe, vAwq = T[2], T[3], T[4]
    A("v_lshlrev_b32 v%d, 5, v%d" % (vAx, vLane))
    A("buffer_load_dwordx4 %s, v%d, %s, 0 offen" % (vr(vXA, 4), vAx, srd(rA)))
    A("buffer_load_dwordx4 %s, v%d, %s, 0 offen offset:16" % (vr(vXA + 4, 4), vAx, srd(rA)))
    A("v_lshl_add_u32 v%d, v%d, 2, v%d" % (vAxe, vI, vG))
    A("v_lshlrev_b32 v%d, 1, v%d" % (vAxe, vAxe))
    A("s_lshl_b32 s%d, s%d, 7" % (sTmp, sT))
    A("buffer_load_ushort v%d, v%d, %s, s%d offen" % (vXE, vAxe, srd(rA), sTmp))
    A("buffer_load_ushort v%d, v%d, %s, s%d offen offset:1024" % (vXE + 1, vAxe, srd(rA), sTmp))
    A("v_lshlrev_b32 v%d, 13, v%d" % (vAwq, vG))
    A("v_lshl_add_u32 v%d, v%d, 4, v%d" % (vAwq, vI, vAwq))
    A("s_lshl_b32 s%d, s%d, 19" % (sTmp, sT))
    A("s_lshl_b32 s%d, s%d, 8" % (sTmp2, sH))
    A("s_add_u32 s%d, s%d, s%d" % (sTmp, sTmp, sTmp2))
    for j in range(16):
        A("buffer_load_dwordx4 %s, v%d, %s, s%d offen %s" % (vr(vWQ + 4 * j, 4), vAwq, srd(rB), sTmp, WNT))
        if j < 15:
            A("s_add_u32 s%d, s%d, 0x8000" % (sTmp, sTmp))
    A("s_barrier")

    g.lab(lsetup)
    if opt.get("ts"):
        A("s_mov_b32 s80, s78")
        for k in range(81, 92):
            A("s_mov_b32 s%d, 0" % k)
    mk_srd(rA, pX, 2048)
    A("s_lshl_b32 s%d, s%d, 8" % (sTmp, sH))
    A("s_add_u32 s%d, s%d, 0x%x" % (sTmp, sTmp, WS_TK))
    A("s_add_u32 s%d, s%d, s%d" % (sTkA, pWS, sTmp))
    A("s_addc_u32 s%d, s%d, 0" % (sTkA + 1, pWS + 1))
    A("s_lshl_b32 s%d, s%d, 20" % (sHB, sH))
    A("s_add_u32 s%d, s%d, 0x2000000" % (sHB, sHB))
    A("s_mov_b32 s%d, %s" % (sScale, f32(128 ** -0.5)))
    A("s_mov_b32 s%d, %s" % (sL2E, f32(1.4426950408889634)))
    A("s_mov_b32 s%d, %d" % (sCnt, POLL_LIMIT))
    lr1, lr2, lrd = g.newlab("r1"), g.newlab("r2"), g.newlab("rd")
    A("s_mov_b32 s%d, 0" % sRole)
    A("s_mov_b32 s%d, 0" % sRA)
    A("s_mov_b32 s%d, 0" % sRB)
    A("s_cmp_lg_u32 s%d, 0" % sR)
    A("s_cbranch_scc1 %s" % lr1)
    A("s_mov_b32 s%d, 1" % sRole)
    A("s_and_b32 s%d, s%d, 7" % (sRA, sH))
    A("s_lshr_b32 s%d, s%d, 3" % (sRB, sH))
    A("s_branch %s" % lrd)
    g.lab(lr1)
    A("s_cmp_lg_u32 s%d, 2" % sR)
    A("s_cbranch_scc1 %s" % lr2)
    A("s_and_b32 s%d, s%d, 15" % (sRA, sH))
    A("s_cmp_lt_u32 s%d, 16" % sH)
    A("s_cselect_b32 s%d, 2, 3" % sRole)
    A("s_branch %s" % lrd)
    g.lab(lr2)
    A("s_cmp_lg_u32 s%d, 4" % sR)
    A("s_cbranch_scc1 %s" % lrd)
    A("s_add_u32 s%d, s%d, 16" % (sRA, sH))
    A("s_cmp_lt_u32 s%d, 6" % sH)
    A("s_cselect_b32 s%d, 2, 0" % sRole)
    g.lab(lrd)
    A("v_and_b32 v%d, 1, v%d" % (T[2], vG))
    A("v_cmp_eq_u32 s[%d:%d], 1, v%d" % (sMg1, sMg1 + 1, T[2]))
    A("v_and_b32 v%d, 1, v0" % T[3])
    A("v_cmp_eq_u32 s[%d:%d], 1, v%d" % (sMi1, sMi1 + 1, T[3]))
    A("v_lshlrev_b32 v%d, 4, v%d" % (T[3], T[3]))
    A("v_mov_b32 v%d, 0xffff" % T[4])
    A("v_lshlrev_b32 v%d, v%d, v%d" % (T[4], T[3], T[4]))
    A("v_bfe_u32 v%d, v0, 1, 2" % T[5])
    for d in range(4):
        A("v_cmp_eq_u32 vcc, %d, v%d" % (d, T[5]))
        g.nop(2)
        A("v_cndmask_b32 v%d, 0, v%d, vcc" % (vMask + d, T[4]))
    A("s_cmp_eq_u32 s%d, 0" % sW)
    A("s_cbranch_scc1 %s" % lq2)
    A("s_cmp_eq_u32 s%d, 0" % sIsR)
    A("s_cbranch_scc1 %s" % lwaitq)
    A("s_barrier")
    A("s_call_b64 s[%d:%d], L_prep" % (sRet, sRet + 1))
    A("s_branch %s" % lwaitq)

    g.lab(lq2)
    A("v_and_b32 v%d, 31, v%d" % (vFA, vLane))
    A("v_lshlrev_b32 v%d, 2, v%d" % (vFA, vFA))
    A("v_lshrrev_b32 v%d, 3, v%d" % (T[6], vI))
    A("v_mul_u32_u24 v%d, 0x0202, v%d" % (T[6], T[6]))
    A("v_add_u32 v%d, 0x0100, v%d" % (T[6], T[6]))
    A("v_lshl_or_b32 v%d, v%d, 16, v%d" % (T[6], T[6], T[6]))
    A("v_mov_b32 v%d, 0x0c0c0c0c" % T[7])
    for d in range(4):
        A("v_bfi_b32 v%d, v%d, v%d, v%d" % (vSel + d, vMask + d, T[6], T[7]))
    A("s_waitcnt vmcnt(18)")
    g.ts(1)
    for k in range(8):
        A("v_lshlrev_b32 v%d, 16, v%d" % (F[2 * k], vXA + k))
        A("v_and_b32 v%d, 0xffff0000, v%d" % (F[2 * k + 1], vXA + k))
    S = T[0:8]
    for k in range(8):
        A("v_add_f32 v%d, v%d, v%d" % (S[k], F[2 * k], F[2 * k + 1]))
    for st in (4, 2, 1):
        for k in range(st):
            A("v_add_f32 v%d, v%d, v%d" % (S[k], S[k], S[k + st]))

    def reduce32_add(x, t):
        for ctrl in ("quad_perm:[1,0,3,2]", "quad_perm:[2,3,0,1]", "row_half_mirror", "row_mirror"):
            g.nop(2)
            dpp("v_add_f32", x, x, x, ctrl)
        xrow16("v_add_f32", x, t)

    vMean, vVar = T[8], T[9]
    reduce32_add(S[0], T[10])
    A("v_mul_f32 v%d, %s, v%d" % (vMean, f32(1.0 / 512), S[0]))
    for k in range(16):
        A("v_sub_f32 v%d, v%d, v%d" % (F[k], F[k], vMean))
    for k in range(4):
        A("v_mul_f32 v%d, v%d, v%d" % (S[k], F[k], F[k]))
    for k in range(4, 16):
        A("v_fmac_f32 v%d, v%d, v%d" % (S[k & 3], F[k], F[k]))
    A("v_add_f32 v%d, v%d, v%d" % (S[0], S[0], S[1]))
    A("v_add_f32 v%d, v%d, v%d" % (S[2], S[2], S[3]))
    A("v_add_f32 v%d, v%d, v%d" % (S[0], S[0], S[2]))
    reduce32_add(S[0], T[10])
    A("v_mul_f32 v%d, %s, v%d" % (vVar, f32(1.0 / 512), S[0]))
    ln_scalars(vMean, vVar)
    A("v_mov_b32 v%d, v%d" % (T[10], vMean))
    A("v_mov_b32 v%d, v%d" % (T[11], vVar))
    g.nop(2)
    A("v_permlane32_swap_b32 v%d, v%d" % (vMean, T[10]))
    A("v_permlane32_swap_b32 v%d, v%d" % (vVar, T[11]))
    g.nop(1)
    A("v_rcp_f32 v%d, v%d" % (T[12], vVar))
    A("v_rcp_f32 v%d, v%d" % (T[13], T[11]))
    A("s_waitcnt vmcnt(16)")
    xn = [T[14], T[15]]
    vXN = T[18]
    for b in range(2):
        mm_, ss_, rr_ = (vMean, vVar, T[12]) if b == 0 else (T[10], T[11], T[13])
        A("v_lshlrev_b32 v%d, 16, v%d" % (T[16], vXE + b))
        A("v_sub_f32 v%d, v%d, v%d" % (T[16], T[16], mm_))
        bf16_round(T[16], T[16])
        div_refined(xn[b], T[16], ss_, rr_, T[17])
    A("v_cvt_pk_bf16_f32 v%d, v%d, v%d" % (vXN, xn[0], xn[1]))
    A("s_waitcnt lgkmcnt(0)")
    A("s_add_u32 s%d, s%d, 1" % (sTag, sTag))
    for j in range(16):
        B = vBa if j % 2 == 0 else vBb
        A("v_mov_b32_dpp v%d, v%d row_newbcast:%d %s" % (T[0], vXN, j, DPPALL))
        for d in range(4):
            A("v_perm_b32 v%d, v%d, v%d, v%d" % (B + d, T[0], T[0], vSel + d))
        A("s_waitcnt vmcnt(%d)" % (15 - j))
        g.nop(1)
        A("v_mfma_f32_16x16x32_bf16 %s, %s, %s, %s" % (vr(vAcc, 4), vr(vWQ + 4 * j, 4), vr(B, 4), "0" if j == 0 else vr(vAcc, 4)))
    A("v_lshrrev_b32 v%d, 3, v%d" % (T[4], vI))
    A("v_lshlrev_b32 v%d, 8, v%d" % (T[4], T[4]))
    A("v_lshl_add_u32 v%d, v%d, 6, v%d" % (T[4], vG, T[4]))
    A("v_and_b32 v%d, 7, v%d" % (T[5], vI))
    A("v_lshl_add_u32 v%d, v%d, 1, v%d" % (T[4], T[5], T[4]))
    A("s_lshl_b32 s%d, s2, 11" % sTmp)
    A("s_add_u32 s%d, s%d, 0x%x" % (sTmp, sTmp, WS_QP))
    A("s_lshl_b32 s%d, s%d, 14" % (sTmp2, sH))
    A("s_add_u32 s%d, s%d, 0x%x" % (sTmp2, sTmp2, WS_QP))
    QS = T[6]
    for r in range(4):
        A("v_mov_b32 v%d, s%d" % (QS + 2 * r + 1, sTag))
    for r in range(4):
        A("v_mov_b32 v%d, v%d" % (QS + 2 * r, vAcc + r))
    A("buffer_store_dwordx4 %s, v%d, %s, s%d offen sc1" % (vr(QS, 4), vV, srd(rWS), sTmp))
    A("buffer_store_dwordx4 %s, v%d, %s, s%d offen offset:1024 sc1" % (vr(QS + 4, 4), vV, srd(rWS), sTmp))
    lnb = g.newlab("nobar")
    A("s_cmp_eq_u32 s%d, 0" % sIsR)
    A("s_cbranch_scc1 %s" % lnb)
    A("s_barrier")
    g.lab(lnb)
    g.ts(2)
    lp, lok = g.newlab("qp"), g.newlab("qok")
    sPend = sCur
    QR = 64
    if not opt.get("noprobe"):
        sPA = 72
        PR = 16 + 0
        A("s_add_u32 s%d, s%d, s%d" % (sPA, pWS, sTmp2))
        A("s_addc_u32 s%d, s%d, 0" % (sPA + 1, pWS + 1))
        lpr, lprd = g.newlab("probe"), g.newlab("probed")
        A("s_mov_b32 s%d, 64" % sPend)
        g.lab(lpr)
        for k in range(8):
            A("s_load_dword s%d, s[%d:%d], 0x%x glc" % (PR + k, sPA, sPA + 1, 2048 * k + 2044))
        A("s_waitcnt lgkmcnt(0)")
        for k in range(8):
            A("s_xor_b32 s%d, s%d, s%d" % (PR + k, PR + k, sTag))
        for k in range(1, 8):
            A("s_or_b32 s%d, s%d, s%d" % (PR, PR, PR + k))
        A("s_cmp_eq_u32 s%d, 0" % PR)
        A("s_cbranch_scc1 %s" % lprd)
        A("s_sub_u32 s%d, s%d, 1" % (sPend, sPend))
        A("s_cmp_gt_i32 s%d, 0" % sPend)
        A("s_cbranch_scc1 %s" % lpr)
        g.lab(lprd)
    A("s_mov_b32 s%d, 0x%x" % (sPend, 0x100 if opt.get("noq") else 0x1ff))
    if opt.get("noq"):
        A("s_sleep 30")
    g.lab(lp)
    for k in range(8):
        lk = g.newlab("qs")
        A("s_bitcmp0_b32 s%d, %d" % (sPend, k))
        A("s_cbranch_scc1 %s" % lk)
        A("s_add_u32 s%d, s%d, %d" % (sOff, sTmp2, 2048 * k))
        A("buffer_load_dwordx4 %s, v%d, %s, s%d offen sc1" % (vr(QR + 8 * k, 4), vV, srd(rWS), sOff))
        A("buffer_load_dwordx4 %s, v%d, %s, s%d offen offset:1024 sc1" % (vr(QR + 8 * k + 4, 4), vV, srd(rWS), sOff))
        g.lab(lk)
    lk = g.newlab("qs")
    A("s_bitcmp0_b32 s%d, 8" % sPend)
    A("s_cbranch_scc1 %s" % lk)
    flagload()
    g.lab(lk)
    A("s_waitcnt vmcnt(0)")
    A("v_cmp_ne_u32 vcc, 1, v%d" % vFl)
    A("s_cmp_lg_u64 vcc, 0")
    A("s_cselect_b32 s%d, 0x100, 0" % sPend)
    for k in range(8):
        q_ = QR + 8 * k
        A("v_xor_b32 v%d, s%d, v%d" % (T[5], sTag, q_ + 1))
        A("v_xor_b32 v%d, s%d, v%d" % (T[16], sTag, q_ + 3))
        A("v_xor_b32 v%d, s%d, v%d" % (T[17], sTag, q_ + 5))
        A("v_xor_b32 v%d, s%d, v%d" % (T[18], sTag, q_ + 7))
        A("v_or3_b32 v%d, v%d, v%d, v%d" % (T[5], T[5], T[16], T[17]))
        A("v_or_b32 v%d, v%d, v%d" % (T[5], T[5], T[18]))
        A("v_cmp_ne_u32 vcc, 0, v%d" % T[5])
        A("s_cmp_lg_u64 vcc, 0")
        A("s_cselect_b32 s%d, %d, 0" % (sNext, 1 << k))
        if not opt.get("noq"):
            A("s_or_b32 s%d, s%d, s%d" % (sPend, sPend, sNext))
    A("s_cmp_eq_u32 s%d, 0" % sPend)
    A("s_cbranch_scc1 %s" % lok)
    A("s_sleep 4")
    A("s_sub_u32 s%d, s%d, 1" % (sCnt, sCnt))
    A("s_cmp_gt_i32 s%d, 0" % sCnt)
    A("s_cbranch_scc1 %s" % lp)
    g.lab(lok)
    for st in (4, 2, 1):
        for k in range(st):
            for r in range(4):
                A("v_add_f32 v%d, v%d, v%d" % (QR + 8 * k + 2 * r, QR + 8 * k + 2 * r, QR + 8 * (k + st) + 2 * r))
    A("v_cvt_pk_bf16_f32 v%d, v%d, v%d" % (T[10], QR, QR + 2))
    A("v_cvt_pk_bf16_f32 v%d, v%d, v%d" % (T[11], QR + 4, QR + 6))
    A("v_mov_b32 v%d, 1" % T[2])
    A("v_mov_b32 v%d, 0" % T[3])
    A("ds_write_b16 v%d, v%d offset:%d" % (T[4], T[10], LQF))
    A("ds_write_b16_d16_hi v%d, v%d offset:%d" % (T[4], T[10], LQF + 16))
    A("ds_write_b16 v%d, v%d offset:%d" % (T[4], T[11], LQF + 32))
    A("ds_write_b16_d16_hi v%d, v%d offset:%d" % (T[4], T[11], LQF + 48))
    A("ds_write_b32 v%d, v%d offset:%d" % (T[3], T[2], LCNT + 12))
    A("s_setprio 0")
    issue_K(SB + 0, sQU)
    issue_V(SB + 16, sQU)

    g.lab(lwaitq)
    A("v_mov_b32 v%d, 0" % T[3])
    A("v_lshlrev_b32 v%d, 4, v%d" % (T[4], vI))
    lsp, lgo = g.newlab("qspin"), g.newlab("qgo")
    g.lab(lsp)
    A("ds_read_b32 v%d, v%d offset:%d" % (T[2], T[3], LCNT + 12))
    A("s_waitcnt lgkmcnt(0)")
    A("v_cmp_eq_u32 vcc, 1, v%d" % T[2])
    A("s_cbranch_vccnz %s" % lgo)
    A("s_sleep 1")
    A("s_branch %s" % lsp)
    g.lab(lgo)
    A("ds_read_b128 %s, v%d offset:%d" % (vr(vQ0, 4), T[4], LQF))
    A("ds_read_b128 %s, v%d offset:%d" % (vr(vQ1, 4), T[4], LQF + 256))

    def reset_state():
        for r in range(4):
            A("v_mov_b32 v%d, 0" % (vAcc + r))
        A("v_mov_b32 v%d, 0xff7fffff" % vM)
        A("v_mov_b32 v%d, 0" % vL)

    A("s_waitcnt lgkmcnt(0)")
    g.ts(3)
    lroles, lresume = g.newlab("roles"), g.newlab("resume")
    if DRY:
        A("s_mov_b32 s%d, 1" % sDry)
        A("s_branch %s" % lroles)
        g.lab(lresume)
    reset_state()

    def issue_ticket():
        A("v_mov_b32 v%d, 1" % vTk)
        if opt.get("noat"):
            A("buffer_load_dword v%d, v%d, %s, 0 offen offset:1024" % (vTk, vTkA, srd(rDBG)))
        else:
            A("buffer_atomic_add v%d, v%d, %s, s%d offen %s" % (vTk, vTkA, srd(rWS), sTkOff, opt.get("atf", "sc0 sc1")))

    tX0, tX1, tY0, tY1 = T[0], T[1], T[2], T[3]
    r0, r1, u = T[4], T[5], T[6]
    sv, mx, tm, al, p, pd, ps = T[7], T[8], T[9], T[10], T[11], T[12], T[13]

    def H1(kb, q, kwait, filler=None):
        if kwait is not None:
            A("s_waitcnt vmcnt(%d)" % kwait)
        accs = [tX0, tX1, tY0, tY1]
        for e in range(1 if opt.get("nocomp") else 4):
            for a in range(4):
                c = "0" if e == 0 else "v%d" % accs[a]
                A("v_dot2_f32_bf16 v%d, v%d, v%d, %s" % (accs[a], kb + 4 * a + e, q + e, c))
        if filler:
            filler()
        else:
            g.nop(3)
        dpp("v_add_f32", r0, tY0, tX0, "row_ror:8")
        dpp("v_add_f32", r1, tY1, tX1, "row_ror:8")

    def H2(vb, vwait_base):
        if opt.get("nocomp"):
            for j in range(4):
                if vwait_base is not None:
                    A("s_waitcnt vmcnt(%d)" % (vwait_base + 3 - j))
                A("v_xor_b32 v%d, v%d, v%d" % (vAcc, vAcc, vb + 4 * j))
            return
        dpp("v_add_f32", u, r0, r0, "row_shl:4", "0x5")
        dpp("v_add_f32", u, r1, r1, "row_shr:4", "0xa")
        g.nop(2)
        dpp("v_add_f32", u, u, u, "quad_perm:[2,3,0,1]")
        g.nop(2)
        dpp("v_add_f32", u, u, u, "quad_perm:[1,0,3,2]")
        bf16_round(sv, u)
        A("v_mul_f32 v%d, s%d, v%d" % (sv, sScale, sv))
        bf16_round(sv, sv)
        g.nop(2)
        dpp("v_max_f32", mx, sv, sv, "row_ror:4")
        g.nop(2)
        dpp("v_max_f32", mx, mx, mx, "row_ror:8")
        xrow16("v_max_f32", mx, tm)
        xrow32("v_max_f32", mx, tm)
        A("v_max_f32 v%d, v%d, v%d" % (mx, mx, vM))
        A("v_sub_f32 v%d, v%d, v%d" % (p, sv, mx))
        A("v_sub_f32 v%d, v%d, v%d" % (al, vM, mx))
        A("v_mul_f32 v%d, s%d, v%d" % (p, sL2E, p))
        A("v_mul_f32 v%d, s%d, v%d" % (al, sL2E, al))
        A("v_exp_f32 v%d, v%d" % (p, p))
        A("v_exp_f32 v%d, v%d" % (al, al))
        A("v_mov_b32 v%d, v%d" % (vM, mx))
        A("v_cvt_pk_bf16_f32 v%d, v%d, v%d" % (pd, p, p))
        for r in range(4):
            A("v_mul_f32 v%d, v%d, v%d" % (vAcc + r, vAcc + r, al))
        dpp("v_add_f32", ps, p, p, "row_ror:4")
        for d in range(4):
            dpp("v_and_b32", vBa + d, pd, vMask + d, "row_newbcast:0")
        dpp("v_add_f32", ps, ps, ps, "row_ror:8")
        for d in range(4):
            dpp("v_and_b32", vBb + d, pd, vMask + d, "row_newbcast:4")
        xrow16("v_add_f32", ps, tm)
        xrow32("v_add_f32", ps, tm)
        A("v_fma_f32 v%d, v%d, v%d, v%d" % (vL, vL, al, ps))
        for j in range(4):
            B = vBa if j % 2 == 0 else vBb
            if j >= 2:
                for d in range(4):
                    dpp("v_and_b32", B + d, pd, vMask + d, "row_newbcast:%d" % (4 * j))
                g.nop(1)
            if vwait_base is not None:
                A("s_waitcnt vmcnt(%d)" % (vwait_base + 3 - j))
            else:
                g.nop(1)
            A("v_mfma_f32_16x16x32_bf16 %s, %s, %s, %s" % (vr(vAcc, 4), vr(vb + 4 * j, 4), vr(B, 4), vr(vAcc, 4)))

    lcomb = g.newlab("combine")

    def dump_and_combine(b):
        A("s_lshl_b32 s%d, s%d, 10" % (sTmp, sW))
        A("v_add_u32 v%d, s%d, v%d" % (T[0], sTmp, vV))
        A("s_lshl_b32 s%d, s%d, 3" % (sTmp, sW))
        A("v_mov_b32 v%d, s%d" % (T[1], sTmp))
        A("v_mov_b32 v%d, 1" % T[2])
        A("v_mov_b32 v%d, 0" % T[3])
        A("ds_write_b64 v%d, %s offset:%d" % (T[1], vr(vM, 2), LML + 64 * b))
        A("s_mov_b32 s%d, %d" % (sCB, b))
        A("ds_write_b128 v%d, %s offset:%d" % (T[0], vr(vAcc, 4), LC + 8192 * b))
        exec_set(1)
        A("ds_add_rtn_u32 v%d, v%d, v%d offset:%d" % (T[2], T[3], T[2], LCNT + 4 * b))
        exec_all()
        A("s_waitcnt lgkmcnt(0)")
        A("v_readfirstlane_b32 s%d, v%d" % (sTmp, T[2]))
        lno = g.newlab("nocomb")
        g.nop(1)
        A("s_cmp_lg_u32 s%d, 7" % sTmp)
        A("s_cbranch_scc1 %s" % lno)
        A("s_call_b64 s[%d:%d], %s" % (sRet, sRet + 1, lcomb))
        g.lab(lno)

    sBA, sPh = sGW, sCur
    A("s_lshl_b32 s%d, s%d, 20" % (sBA, sH))
    A("s_lshl_b32 s%d, s%d, 12" % (sTmp, sNL))
    A("s_add_u32 s%d, s%d, s%d" % (sBA, sBA, sTmp))
    A("s_sub_u32 s%d, 256, s%d" % (sNA, sNL))
    A("s_add_u32 s%d, s%d, 256" % (sNL, sNA))
    A("s_lshl_b32 s%d, s%d, 12" % (sTmp, sNA))
    A("s_sub_u32 s%d, s%d, s%d" % (sHB, sHB, sTmp))
    A("s_mov_b32 s%d, 0" % sPh)
    A("s_mov_b32 s%d, 2" % sPh)
    lextra, lcont = g.newlab("extra"), g.newlab("cont")
    lloop, lexit, lsw = g.newlab("loop"), g.newlab("exit"), g.newlab("switch")
    sPre = 91 if not opt.get("ts") else 79
    if opt.get("statT"):
        A("s_lshl_b32 s%d, s%d, 3" % (sPre, sT))
        A("s_add_u32 s%d, s%d, s%d" % (sPre, sPre, sW))
    if opt.get("statC"):
        A("s_mul_i32 s%d, s%d, 48" % (sPre, sT))
        A("s_add_u32 s%d, s%d, s%d" % (sPre, sPre, sW))
        A("s_add_u32 s%d, s%d, 48" % (sQU, sPre))
    if opt.get("ahead"):
        A("s_mov_b32 s%d, 1" % sPre)
        A("s_atomic_add s%d, s[%d:%d], 0 glc" % (sPre, sTkA, sTkA + 1))
    g.lab(lloop)
    if opt.get("statT") or opt.get("statC") or opt.get("ahead"):
        pass
    else:
        A("s_mov_b32 s%d, 1" % sNext)
        A("s_atomic_add s%d, s[%d:%d], 0 glc" % (sNext, sTkA, sTkA + 1))

    def fillB():
        A("s_waitcnt lgkmcnt(0)")
        if opt.get("statT"):
            A("s_mov_b32 s%d, s%d" % (sNext, sPre))
            A("s_add_u32 s%d, s%d, 64" % (sPre, sPre))
        if opt.get("statC"):
            A("s_cmp_lt_u32 s%d, s%d" % (sPre, sQU))
            A("s_cselect_b32 s%d, s%d, 1000" % (sNext, sPre))
            A("s_add_u32 s%d, s%d, 8" % (sPre, sPre))
        if opt.get("ahead"):
            A("s_mov_b32 s%d, s%d" % (sNext, sPre))
            A("s_mov_b32 s%d, 1" % sPre)
            A("s_atomic_add s%d, s[%d:%d], 0 glc" % (sPre, sTkA, sTkA + 1))
        A("s_cmp_lt_u32 s%d, s%d" % (sNext, sNA))
        A("s_cselect_b32 s%d, s%d, s%d" % (sTmp, sBA, sHB))
        A("s_lshl_b32 s%d, s%d, 12" % (sOff, sNext))
        A("s_add_u32 s%d, s%d, s%d" % (sOff, sOff, sTmp))
        if opt.get("rot"):
            A("s_cselect_b32 s%d, 0, s%d" % (sTmp, sH)) if False else None
            A("s_cmp_lt_u32 s%d, s%d" % (sNext, sNA))
            A("s_cselect_b32 s%d, 0, s%d" % (sTmp, sH))
            A("s_lshl_b32 s%d, s%d, 15" % (sTmp, sTmp))
            A("s_xor_b32 s%d, s%d, s%d" % (sOff, sOff, sTmp))

    H1(SB + 0, vQ0, 4, fillB)
    A("s_cmp_lt_u32 s%d, s%d" % (sNext, sNL))
    A("s_cselect_b32 s%d, s%d, 0x4000000" % (sOff, sOff))
    issue_K(SB + 0, sOff)
    H2(SB + 16, 4)
    issue_V(SB + 16, sOff)
    A("s_cmp_eq_u32 s%d, 2" % sPh)
    A("s_cbranch_scc1 %s" % lextra)
    g.lab(lcont)
    A("s_cmp_lt_u32 s%d, s%d" % (sNext, sNA))
    A("s_cbranch_scc1 %s" % lloop)
    A("s_cmp_eq_u32 s%d, 0" % sPh)
    A("s_cbranch_scc1 %s" % lsw)
    A("s_cmp_lt_u32 s%d, s%d" % (sNext, sNL))
    A("s_cbranch_scc1 %s" % lloop)
    A("s_branch %s" % lexit)
    g.lab(lextra)
    vLT, vLA = T[14], T[15]
    A("v_mov_b32 v%d, 0" % vLA)
    lqw, lj = g.newlab("qw"), g.newlab("join")
    A("s_cmp_eq_u32 s%d, 0" % sW)
    A("s_cbranch_scc1 %s" % lqw)
    A("s_cmp_eq_u32 s%d, 1" % sIsR)
    A("s_cbranch_scc1 %s" % lj)
    for k in range(NPF - 1):
        bb = SB + 32 * (k + 1)
        H1(bb, vQ0, 8)
        g.nop(1)
        H2(bb + 16, None)
    A("s_branch %s" % lj)
    g.lab(lqw)
    A("s_call_b64 s[%d:%d], L_prep" % (sRet, sRet + 1))
    g.lab(lj)
    A("s_mov_b32 s%d, 0" % sPh)
    A("s_branch %s" % lcont)
    g.lab(lsw)
    dump_and_combine(0)
    g.ts(4)
    reset_state()
    for d in range(4):
        A("v_mov_b32 v%d, v%d" % (vQ0 + d, vQ1 + d))
    A("s_mov_b32 s%d, 1" % sPh)
    A("s_cmp_lt_u32 s%d, s%d" % (sNext, sNL))
    A("s_cbranch_scc1 %s" % lloop)
    g.lab(lexit)
    g.ts(5)
    dump_and_combine(1)
    g.ts(6)

    g.lab(lroles)
    lW, lF1, lF2, lfin = g.newlab("roleW"), g.newlab("roleF1"), g.newlab("roleF2"), g.newlab("fin")
    A("s_cmp_eq_u32 s%d, 0" % sRole)
    A("s_cbranch_scc1 %s" % lfin)
    if DRY:
        A("s_cmp_eq_u32 s%d, 1" % sDry)
        A("s_cselect_b32 s%d, 1, %d" % (sCnt, POLL_LIMIT))
    else:
        A("s_mov_b32 s%d, %d" % (sCnt, POLL_LIMIT))
    A("s_cmp_eq_u32 s%d, 2" % sRole)
    A("s_cbranch_scc1 %s" % lF1)
    A("s_cmp_eq_u32 s%d, 3" % sRole)
    A("s_cbranch_scc1 %s" % lF2)

    g.lab(lW)
    A("v_lshlrev_b32 v%d, 8, v%d" % (T[0], vI))
    A("v_lshl_add_u32 v%d, v%d, 4, v%d" % (T[0], vG, T[0]))
    A("s_lshl_b32 s%d, s%d, 3" % (sTmp, sRB))
    A("s_add_u32 s%d, s%d, s%d" % (sTmp, sTmp, sW))
    A("s_lshl_b32 s%d, s%d, 8" % (sTmp2, sTmp))
    A("s_add_u32 s%d, s%d, 0x%x" % (sTmp2, sTmp2, WS_ST))
    A("s_lshl_b32 s%d, s%d, 12" % (sTmp, sTmp))
    A("v_and_b32 v%d, 7, v%d" % (T[1], vI))
    A("v_and_b32 v%d, 1, v%d" % (T[2], vG))
    A("v_lshlrev_b32 v%d, 2, v%d" % (T[2], T[2]))
    A("v_xor_b32 v%d, v%d, v%d" % (T[1], T[1], T[2]))
    A("v_lshlrev_b32 v%d, 4, v%d" % (T[1], T[1]))
    A("v_lshrrev_b32 v%d, 1, v%d" % (T[2], vG))
    A("v_lshl_add_u32 v%d, v%d, 7, v%d" % (T[1], T[2], T[1]))
    lp, lok = g.newlab("wp"), g.newlab("wok")
    g.lab(lp)
    with dryskip():
        for j in range(4):
            A("buffer_load_dwordx4 %s, v%d, %s, s%d offen offset:%d sc1" % (vr(P + 4 * j, 4), T[0], srd(rWS), sTmp, 64 * j))
        A("buffer_load_dwordx2 %s, v%d, %s, s%d offen sc1" % (vr(P + 16, 2), T[1], srd(rWS), sTmp2))
        A("s_waitcnt vmcnt(0)")
    sentinel_check(range(P, P + 18), T[5], lok)
    poll_tail(lp)
    g.lab(lok)
    exec_all()
    g.ts(7)
    mm, ee, ll = T[10], T[11], T[12]
    chain = []
    chain.append(lambda: dpp("v_max_f32", mm, P + 16, P + 16, "quad_perm:[1,0,3,2]"))
    chain.append(lambda: A("s_lshl_b32 s%d, s%d, 10" % (sOff, sW)))
    chain.append(lambda: dpp("v_max_f32", mm, mm, mm, "quad_perm:[2,3,0,1]"))
    chain.append(lambda: A("v_add_u32 v%d, s%d, v%d" % (T[4], sOff, vV)))
    chain.append(lambda: dpp("v_max_f32", mm, mm, mm, "row_half_mirror"))
    chain.append(lambda: A("v_sub_f32 v%d, v%d, v%d" % (ee, P + 16, mm)))
    chain.append(lambda: A("v_mul_f32 v%d, s%d, v%d" % (ee, sL2E, ee)))
    chain.append(lambda: A("v_exp_f32 v%d, v%d" % (ee, ee)))
    chain.append(lambda: A("v_mul_f32 v%d, v%d, v%d" % (ll, ee, P + 17)))
    chain.append(lambda: A("s_nop 0"))
    chain.append(lambda: dpp("v_add_f32", ll, ll, ll, "quad_perm:[1,0,3,2]"))
    chain.append(lambda: A("s_nop 0"))
    chain.append(lambda: dpp("v_add_f32", ll, ll, ll, "quad_perm:[2,3,0,1]"))
    chain.append(lambda: A("s_nop 0"))
    chain.append(lambda: dpp("v_add_f32", ll, ll, ll, "row_half_mirror"))
    chain.append(lambda: A("v_rcp_f32 v%d, v%d" % (ll, ll)))
    n_ = 0
    for j in range(4):
        for c in range(4):
            A("v_mfma_f32_16x16x32_bf16 %s, %s, %s, %s" % (vr(DD + 4 * c, 4), vr(P + 4 * j, 4), vr(vW + 16 * j + 4 * c, 4), "0" if j == 0 else vr(DD + 4 * c, 4)))
            chain[n_]()
            n_ += 1
    g.nop(1)
    A("v_mul_f32 v%d, v%d, v%d" % (ee, ee, ll))
    A("v_lshrrev_b32 v%d, 1, v%d" % (T[0], vG))
    A("v_lshlrev_b32 v%d, 11, v%d" % (T[0], T[0]))
    Y = T[14]
    for c in range(4):
        dpp("v_mul_f32", Y + c, ee, DD + 4 * c, "row_newbcast:0")
        for r in range(1, 4):
            dpp("v_fmac_f32", Y + c, ee, DD + 4 * c + r, "row_newbcast:%d" % r)
    A("ds_write_b128 v%d, %s offset:%d" % (T[4], vr(Y, 4), LR))
    A("v_lshl_add_u32 v%d, v%d, 4, v%d" % (T[0], vI, T[0]))
    A("s_lshl_b32 s%d, s%d, 12" % (sTmp, sRB))
    A("s_lshl_b32 s%d, s%d, 8" % (sTmp2, sRA))
    A("s_add_u32 s%d, s%d, s%d" % (sTmp, sTmp, sTmp2))
    A("s_add_u32 s%d, s%d, 0x%x" % (sTmp, sTmp, WS_AP))
    A("s_waitcnt lgkmcnt(0)")
    A("s_barrier")
    A("s_cmp_lg_u32 s%d, 0" % sW)
    A("s_cbranch_scc1 %s" % lfin)
    for k in range(8):
        A("ds_read_b128 %s, v%d offset:%d" % (vr(P + 4 * k, 4), vV, LR + 1024 * k))
    A("s_waitcnt lgkmcnt(6)")
    for r in range(4):
        A("v_add_f32 v%d, v%d, v%d" % (P + r, P + r, P + 4 + r))
    A("s_waitcnt lgkmcnt(4)")
    for r in range(4):
        A("v_add_f32 v%d, v%d, v%d" % (P + 8 + r, P + 8 + r, P + 12 + r))
    A("s_waitcnt lgkmcnt(2)")
    for r in range(4):
        A("v_add_f32 v%d, v%d, v%d" % (P + 16 + r, P + 16 + r, P + 20 + r))
    for r in range(4):
        A("v_add_f32 v%d, v%d, v%d" % (P + r, P + r, P + 8 + r))
    A("s_waitcnt lgkmcnt(0)")
    for r in range(4):
        A("v_add_f32 v%d, v%d, v%d" % (P + 24 + r, P + 24 + r, P + 28 + r))
    for r in range(4):
        A("v_add_f32 v%d, v%d, v%d" % (P + 16 + r, P + 16 + r, P + 24 + r))
    for r in range(4):
        A("v_add_f32 v%d, v%d, v%d" % (P + r, P + r, P + 16 + r))
    multi_xrow(16, "v_add_f32", [P + r for r in range(4)], [T[6 + r] for r in range(4)])
    for r in range(4):
        A("v_min_u32 v%d, -2, v%d" % (P + r, P + r))
    with dryskip():
        exec_set(0x0000ffff, 0x0000ffff)
        A("buffer_store_dwordx4 %s, v%d, %s, s%d offen sc1" % (vr(P, 4), T[0], srd(rWS), sTmp))
        exec_all()
    g.ts(8)
    A("s_branch %s" % lfin)

    g.lab(lF1)
    A("v_lshrrev_b32 v%d, 2, v%d" % (T[0], vI))
    A("v_lshlrev_b32 v%d, 12, v%d" % (T[0], T[0]))
    A("v_and_b32 v%d, 1, v%d" % (T[1], vI))
    A("v_lshl_add_u32 v%d, v%d, 11, v%d" % (T[1], T[1], T[0]))
    A("v_bfe_u32 v%d, v%d, 1, 1" % (T[2], vI))
    A("v_lshl_add_u32 v%d, v%d, 7, v%d" % (T[0], T[2], T[1]))
    A("v_lshl_add_u32 v%d, v%d, 5, v%d" % (T[0], vG, T[0]))
    A("s_lshl_b32 s%d, s%d, 8" % (sTmp, sW))
    A("s_add_u32 s%d, s%d, 0x%x" % (sTmp, sTmp, WS_AP))
    A("s_mov_b32 s%d, 0x%x" % (sTmp2, WS_AP))
    A("v_and_b32 v%d, 31, v%d" % (T[3], vLane))
    A("v_lshlrev_b32 v%d, 5, v%d" % (T[3], T[3]))
    A("s_lshl_b32 s%d, s%d, 2" % (sOff, sW))
    A("v_add_u32 v%d, s%d, v%d" % (T[4], sOff, T[3]))
    A("v_and_b32 v%d, 1, v%d" % (T[5], vI))
    A("v_lshlrev_b32 v%d, 6, v%d" % (T[5], T[5]))
    A("s_lshl_b32 s%d, s%d, 3" % (sOff, sW))
    A("v_add_u32 v%d, s%d, v%d" % (T[5], sOff, T[5]))
    A("s_lshl_b32 s%d, s%d, 10" % (sOff, sW))
    A("v_add_u32 v%d, s%d, v%d" % (T[3], sOff, T[3]))
    A("v_lshlrev_b32 v%d, 5, v%d" % (T[20], vI))
    A("s_lshl_b32 s%d, s%d, 9" % (sOff, sW))
    A("v_add_u32 v%d, s%d, v%d" % (T[20], sOff, T[20]))
    lp, lok = g.newlab("f1p"), g.newlab("f1ok")
    g.lab(lp)
    with dryskip():
        A("buffer_load_dwordx4 %s, v%d, %s, s%d offen sc1" % (vr(P, 4), T[0], srd(rWS), sTmp))
        A("buffer_load_dwordx4 %s, v%d, %s, s%d offen offset:16 sc1" % (vr(P + 4, 4), T[0], srd(rWS), sTmp))
        A("s_waitcnt vmcnt(0)")
    sentinel_check(range(P, P + 8), T[6], lok)
    poll_tail(lp)
    g.lab(lok)
    exec_all()
    g.ts(7)
    for k in range(8):
        dpp("v_add_f32", P + k, P + k, P + k, "row_ror:4")
    for k in range(8):
        dpp("v_add_f32", P + k, P + k, P + k, "row_ror:8")
    HP = T[6]
    AP_ = T[10]
    for k in range(4):
        A("v_cvt_pk_bf16_f32 v%d, v%d, v%d" % (AP_ + k, P + 2 * k, P + 2 * k + 1))
    for k in range(4):
        A("v_lshlrev_b32 v%d, 16, v%d" % (P + 2 * k, AP_ + k))
        A("v_and_b32 v%d, 0xffff0000, v%d" % (P + 2 * k + 1, AP_ + k))
    for k in range(8):
        A("v_add_f32 v%d, v%d, v%d" % (P + k, P + k, XF + k))
    for k in range(4):
        A("v_cvt_pk_bf16_f32 v%d, v%d, v%d" % (HP + k, P + 2 * k, P + 2 * k + 1))
    A("v_readlane_b32 s%d, v%d, 0" % (sTmp, HP))
    A("v_readlane_b32 s%d, v%d, 1" % (sTmp2, HP))
    SS, QQ = T[14], T[15]
    st_ = []
    for k in range(4):
        st_.append("v_lshlrev_b32 v%d, 16, v%d" % (P + 2 * k, HP + k))
        st_.append("v_and_b32 v%d, 0xffff0000, v%d" % (P + 2 * k + 1, HP + k))
    for k in range(8):
        st_.append("v_sub_f32 v%d, v%d, v%d" % (P + k, P + k, P + 8))
    st_ += [
        "v_add_f32 v%d, v%d, v%d" % (SS, P, P + 1),
        "v_mul_f32 v%d, v%d, v%d" % (QQ, P, P),
        "v_add_f32 v%d, v%d, v%d" % (T[16], P + 2, P + 3),
        "v_mul_f32 v%d, v%d, v%d" % (T[17], P + 1, P + 1),
        "v_add_f32 v%d, v%d, v%d" % (SS, SS, P + 4),
        "v_fmac_f32 v%d, v%d, v%d" % (QQ, P + 2, P + 2),
        "v_add_f32 v%d, v%d, v%d" % (T[16], T[16], P + 5),
        "v_fmac_f32 v%d, v%d, v%d" % (T[17], P + 3, P + 3),
        "v_add_f32 v%d, v%d, v%d" % (SS, SS, P + 6),
        "v_fmac_f32 v%d, v%d, v%d" % (QQ, P + 4, P + 4),
        "v_add_f32 v%d, v%d, v%d" % (T[16], T[16], P + 7),
        "v_fmac_f32 v%d, v%d, v%d" % (T[17], P + 5, P + 5),
        "v_fmac_f32 v%d, v%d, v%d" % (QQ, P + 6, P + 6),
        "v_fmac_f32 v%d, v%d, v%d" % (T[17], P + 7, P + 7),
        "v_add_f32 v%d, v%d, v%d" % (SS, SS, T[16]),
        "v_add_f32 v%d, v%d, v%d" % (QQ, QQ, T[17])]
    n_ = 0
    for c in range(4):
        for j in range(2):
            A("v_mfma_f32_16x16x32_bf16 %s, %s, %s, 0" % (vr(DD + 16 * j + 4 * c, 4), vr(HP, 4), vr(vW + 16 * j + 4 * c, 4)))
            if c == 0 and j == 0:
                A("s_lshl_b32 s%d, s%d, 16" % (sTmp, sTmp))
                A("s_lshl_b32 s%d, s%d, 16" % (sTmp2, sTmp2))
                A("v_mov_b32 v%d, s%d" % (P + 8, sTmp))
                A("v_mov_b32 v%d, s%d" % (P + 9, sTmp2))
                A("v_cndmask_b32 v%d, v%d, v%d, s[%d:%d]" % (P + 8, P + 8, P + 9, sMi1, sMi1 + 1))
            for _ in range(4):
                A(st_[n_])
                n_ += 1
    assert n_ == len(st_)
    g.nop(1)
    dpp("v_add_f32", SS, SS, SS, "quad_perm:[2,3,0,1]")
    dpp("v_add_f32", QQ, QQ, QQ, "quad_perm:[2,3,0,1]")
    for c in range(4):
        A("v_add_f32 v%d, v%d, v%d" % (T[18], DD + 4 * c, DD + 16 + 4 * c + 2))
        A("v_add_f32 v%d, v%d, v%d" % (T[19], DD + 4 * c + 1, DD + 16 + 4 * c + 3))
        A("v_cndmask_b32 v%d, v%d, v%d, s[%d:%d]" % (P + 12 + c, T[18], T[19], sMg1, sMg1 + 1))
        A("ds_write_b32 v%d, v%d offset:%d" % (T[4], P + 12 + c, LR + 1024 * c))
    multi_xrow(16, "v_add_f32", [SS, QQ], [T[16], T[17]])
    multi_xrow(32, "v_add_f32", [SS, QQ], [T[16], T[17]])
    A("v_mul_f32 v%d, %s, v%d" % (T[16], f32(1.0 / 64), SS))
    A("v_fma_f32 v%d, -v%d, v%d, v%d" % (QQ, T[16], SS, QQ))
    A("v_add_f32 v%d, v%d, v%d" % (SS, T[16], P + 8))
    exec_set(3)
    A("ds_write_b64 v%d, %s offset:%d" % (T[5], vr(SS, 2), LST))
    exec_all()
    A("v_and_b32 v%d, 1, v%d" % (T[0], vG))
    A("v_lshlrev_b32 v%d, 6, v%d" % (T[0], T[0]))
    A("s_waitcnt lgkmcnt(0)")
    A("s_barrier")
    A("s_cmp_ge_u32 s%d, 4" % sW)
    A("s_cbranch_scc1 %s" % lfin)
    Z = P + 0
    SQ = P + 12
    CSr = T[8]
    A("ds_read_b128 %s, v%d offset:%d" % (vr(SQ, 4), T[0], LST))
    A("ds_read_b128 %s, v%d offset:%d" % (vr(SQ + 4, 4), T[0], LST + 16))
    A("ds_read_b128 %s, v%d offset:%d" % (vr(SQ + 8, 4), T[0], LST + 32))
    A("ds_read_b128 %s, v%d offset:%d" % (vr(SQ + 12, 4), T[0], LST + 48))
    A("ds_read_b128 %s, v%d offset:%d" % (vr(Z, 4), T[3], LR))
    A("ds_read_b128 %s, v%d offset:%d" % (vr(Z + 4, 4), T[3], LR + 16))
    A("ds_read_b128 %s, v%d offset:%d" % (vr(CSr, 4), T[20], LCS))
    A("ds_read_b128 %s, v%d offset:%d" % (vr(CSr + 4, 4), T[20], LCS + 16))
    A("v_lshrrev_b32 v%d, 1, v%d" % (T[4], vI))
    A("v_lshl_add_u32 v%d, v%d, 2, v%d" % (T[4], T[4], T[0]))
    A("s_lshl_b32 s%d, s%d, 1" % (sTmp, sRA))
    A("s_lshr_b32 s%d, s%d, 1" % (sTmp2, sW))
    A("s_add_u32 s%d, s%d, s%d" % (sTmp, sTmp, sTmp2))
    A("s_lshl_b32 s%d, s%d, 7" % (sTmp, sTmp))
    A("s_and_b32 s%d, s%d, 1" % (sTmp2, sW))
    A("s_lshl_b32 s%d, s%d, 5" % (sTmp2, sTmp2))
    A("s_add_u32 s%d, s%d, s%d" % (sTmp, sTmp, sTmp2))
    A("s_add_u32 s%d, s%d, 0x%x" % (sTmp, sTmp, WS_G))
    A("s_waitcnt lgkmcnt(4)")
    mean, var = T[5], T[6]
    U = DD
    for k in range(4):
        A("v_add_f32 v%d, v%d, v%d" % (U + k, SQ + 2 * k, SQ + 2 * k + 8))
    for k in range(4):
        A("v_add_f32 v%d, v%d, v%d" % (U + 4 + k, SQ + 2 * k + 1, SQ + 2 * k + 9))
    A("v_add_f32 v%d, v%d, v%d" % (U, U, U + 1))
    A("v_add_f32 v%d, v%d, v%d" % (U + 2, U + 2, U + 3))
    A("v_add_f32 v%d, v%d, v%d" % (U + 4, U + 4, U + 5))
    A("v_add_f32 v%d, v%d, v%d" % (U, U, U + 2))
    A("v_add_f32 v%d, v%d, v%d" % (U + 6, U + 6, U + 7))
    A("v_mul_f32 v%d, 0.125, v%d" % (mean, U)) if False else A("v_mul_f32 v%d, %s, v%d" % (mean, f32(0.125), U))
    A("v_add_f32 v%d, v%d, v%d" % (var, U + 4, U + 6))
    for k in range(8):
        A("v_sub_f32 v%d, v%d, v%d" % (U + k, SQ + 2 * k, mean))
    A("v_mul_f32 v%d, v%d, v%d" % (U + 8, U, U))
    A("v_mul_f32 v%d, v%d, v%d" % (U + 9, U + 1, U + 1))
    for k in range(2, 8):
        A("v_fmac_f32 v%d, v%d, v%d" % (U + 8 + (k & 1), U + k, U + k))
    A("v_add_f32 v%d, v%d, v%d" % (U + 8, U + 8, U + 9))
    A("v_mul_f32 v%d, %s, v%d" % (var, f32(1.0 / 512), var))
    A("v_fmac_f32 v%d, %s, v%d" % (var, f32(0.125), U + 8))
    A("v_max_f32 v%d, 0, v%d" % (var, var))
    ln_scalars(mean, var)
    A("v_rcp_f32 v%d, v%d" % (T[7], var))
    A("s_waitcnt lgkmcnt(0)")
    for st in (4, 2, 1):
        for k in range(st):
            A("v_add_f32 v%d, v%d, v%d" % (Z + k, Z + k, Z + k + st))
            A("v_add_f32 v%d, v%d, v%d" % (CSr + k, CSr + k, CSr + k + st))
    A("v_fma_f32 v%d, -v%d, v%d, v%d" % (Z, mean, CSr, Z))
    div_refined(T[8], Z, var, T[7], T[9])
    bf16_round(T[8], T[8])
    A("v_add_f32 v%d, v%d, v%d" % (T[8], T[8], vBias))
    bf16_round(T[8], T[8])
    kk = 2.0 * 0.7978845608028654 * 1.4426950408889634
    A("v_mul_f32 v%d, v%d, v%d" % (T[9], T[8], T[8]))
    A("v_mov_b32 v%d, %s" % (T[10], f32(-kk)))
    A("v_fmac_f32 v%d, %s, v%d" % (T[10], f32(-kk * 0.044715), T[9]))
    A("v_mul_f32 v%d, v%d, v%d" % (T[9], T[10], T[8]))
    A("v_exp_f32 v%d, v%d" % (T[9], T[9]))
    g.nop(1)
    A("v_add_f32 v%d, 1.0, v%d" % (T[9], T[9]))
    A("v_rcp_f32 v%d, v%d" % (T[9], T[9]))
    g.nop(1)
    A("v_mul_f32 v%d, v%d, v%d" % (T[8], T[8], T[9]))
    g.nop(2)
    A("v_mov_b32_dpp v%d, v%d quad_perm:[0,0,2,2] %s" % (T[9], T[8], DPPALL))
    A("v_mov_b32_dpp v%d, v%d quad_perm:[1,1,3,3] %s" % (T[10], T[8], DPPALL))
    A("v_cvt_pk_bf16_f32 v%d, v%d, v%d" % (T[9], T[9], T[10]))
    A("v_min_u32 v%d, -2, v%d" % (T[9], T[9]))
    with dryskip():
        exec_set(0x55555555, 0)
        A("buffer_store_dword v%d, v%d, %s, s%d offen sc1" % (T[9], T[4], srd(rWS), sTmp))
        exec_all()
    g.ts(8)
    A("s_branch %s" % lfin)

    g.lab(lF2)
    rG, rO = rB, rDBG
    with dryskip():
        A("s_add_u32 s%d, s%d, 0x%x" % (rG, pWS, WS_G))
        A("s_addc_u32 s%d, s%d, 0" % (rG + 1, pWS + 1))
        A("s_and_b32 s%d, s%d, 0xffff" % (rG + 1, rG + 1))
        A("s_mov_b32 s%d, %d" % (rG + 2, 43 * 128))
        A("s_mov_b32 s%d, 0x20000" % (rG + 3))
        mk_srd(rO, pOUT, 2048)
    A("v_and_b32 v%d, 1, v%d" % (T[0], vI))
    A("v_lshlrev_b32 v%d, 6, v%d" % (T[0], T[0]))
    A("v_lshl_add_u32 v%d, v%d, 4, v%d" % (T[0], vG, T[0]))
    A("s_lshl_b32 s%d, s%d, 7" % (sTmp, sW))
    A("v_add_u32 v%d, s%d, v%d" % (T[0], sTmp, T[0]))
    A("v_add_u32 v%d, 0x1000, v%d" % (T[1], T[0]))
    A("v_and_b32 v%d, 31, v%d" % (T[3], vLane))
    A("v_lshlrev_b32 v%d, 5, v%d" % (T[3], T[3]))
    A("s_lshl_b32 s%d, s%d, 2" % (sOff, sW))
    A("v_add_u32 v%d, s%d, v%d" % (T[4], sOff, T[3]))
    A("s_lshl_b32 s%d, s%d, 10" % (sOff, sW))
    A("v_add_u32 v%d, s%d, v%d" % (T[3], sOff, T[3]))
    vH = vCS
    lnh = g.newlab("noh")
    A("s_cmp_ge_u32 s%d, 2" % sW)
    A("s_cbranch_scc1 %s" % lnh)
    A("v_and_b32 v%d, 1, v%d" % (T[5], vG))
    A("v_lshlrev_b32 v%d, 11, v%d" % (T[5], T[5]))
    A("v_lshl_add_u32 v%d, v%d, 4, v%d" % (T[5], vI, T[5]))
    A("s_lshr_b32 s%d, s%d, 1" % (sTmp, sRA))
    A("s_lshl_b32 s%d, s%d, 8" % (sTmp, sTmp))
    A("s_and_b32 s%d, s%d, 1" % (sTmp2, sRA))
    A("s_lshl_b32 s%d, s%d, 3" % (sTmp2, sTmp2))
    A("s_add_u32 s%d, s%d, s%d" % (sTmp, sTmp, sTmp2))
    A("s_lshl_b32 s%d, s%d, 2" % (sTmp2, sW))
    A("s_add_u32 s%d, s%d, s%d" % (sTmp, sTmp, sTmp2))
    A("s_add_u32 s%d, s%d, 0x%x" % (sTmp, sTmp, WS_AP))
    A("s_add_u32 s%d, s%d, 0x1000" % (sTmp2, sTmp))
    A("s_add_u32 s%d, s%d, 0x2000" % (sOff, sTmp))
    A("s_add_u32 s%d, s%d, 0x3000" % (sNext, sTmp))
    lp, lok = g.newlab("hp"), g.newlab("hok")
    g.lab(lp)
    with dryskip():
        for k, s in enumerate((sTmp, sTmp2, sOff, sNext)):
            A("buffer_load_dword v%d, v%d, %s, s%d offen sc1" % (P + k, T[5], srd(rWS), s))
        A("s_waitcnt vmcnt(0)")
    sentinel_check(range(P, P + 4), T[6], lok)
    poll_tail(lp)
    g.lab(lok)
    exec_all()
    A("v_add_f32 v%d, v%d, v%d" % (P, P, P + 3))
    A("v_add_f32 v%d, v%d, v%d" % (P + 2, P + 2, P + 1))
    A("v_add_f32 v%d, v%d, v%d" % (P, P, P + 2))
    bf16_round(P, P)
    A("v_add_f32 v%d, v%d, v%d" % (vH, P, vXs))
    bf16_round(vH, vH)
    g.lab(lnh)
    lp, lok = g.newlab("f2p"), g.newlab("f2ok")
    g.lab(lp)
    with dryskip():
        for k in range(6):
            A("buffer_load_dwordx4 %s, v%d, %s, 0 offen offset:%d sc1" % (vr(P + 4 * k, 4), T[0] if k < 4 else T[1], srd(rG), 1024 * (k & 3)))
        A("s_waitcnt vmcnt(0)")
    sentinel_check(range(P, P + 24), T[6], lok)
    poll_tail(lp)
    g.lab(lok)
    exec_all()
    g.ts(7)
    for k in range(6):
        for c in range(2):
            A("v_mfma_f32_16x16x32_bf16 %s, %s, %s, %s" % (vr(DD + 4 * c, 4), vr(P + 4 * k, 4), vr(vW + 8 * k + 4 * c, 4), "0" if k == 0 else vr(DD + 4 * c, 4)))
    A("v_and_b32 v%d, 1, v%d" % (T[0], vG))
    A("v_lshlrev_b32 v%d, 10, v%d" % (T[0], T[0]))
    A("v_lshrrev_b32 v%d, 1, v%d" % (T[1], vI))
    A("v_lshl_add_u32 v%d, v%d, 2, v%d" % (T[0], T[1], T[0]))
    A("s_lshl_b32 s%d, s%d, 6" % (sTmp, sRA))
    A("s_lshl_b32 s%d, s%d, 5" % (sTmp2, sW))
    A("s_add_u32 s%d, s%d, s%d" % (sTmp, sTmp, sTmp2))
    A("v_cndmask_b32 v%d, v%d, v%d, s[%d:%d]" % (T[10], DD, DD + 1, sMg1, sMg1 + 1))
    A("ds_write_b32 v%d, v%d offset:%d" % (T[4], T[10], LR))
    A("v_cndmask_b32 v%d, v%d, v%d, s[%d:%d]" % (T[11], DD + 4, DD + 5, sMg1, sMg1 + 1))
    A("ds_write_b32 v%d, v%d offset:%d" % (T[4], T[11], LR + 1024))
    A("s_waitcnt lgkmcnt(0)")
    A("s_barrier")
    A("s_cmp_ge_u32 s%d, 2" % sW)
    A("s_cbranch_scc1 %s" % lfin)
    A("ds_read_b128 %s, v%d offset:%d" % (vr(P, 4), T[3], LR))
    A("ds_read_b128 %s, v%d offset:%d" % (vr(P + 4, 4), T[3], LR + 16))
    A("s_waitcnt lgkmcnt(0)")
    for st in (4, 2, 1):
        for k in range(st):
            A("v_add_f32 v%d, v%d, v%d" % (P + k, P + k, P + k + st))
    bf16_round(P, P)
    A("v_add_f32 v%d, v%d, v%d" % (P, P, vBias))
    bf16_round(P, P)
    A("v_add_f32 v%d, v%d, v%d" % (P, P, vH))
    g.nop(2)
    A("v_mov_b32_dpp v%d, v%d quad_perm:[0,0,2,2] %s" % (T[9], P, DPPALL))
    A("v_mov_b32_dpp v%d, v%d quad_perm:[1,1,3,3] %s" % (T[10], P, DPPALL))
    A("v_cvt_pk_bf16_f32 v%d, v%d, v%d" % (T[9], T[9], T[10]))
    with dryskip():
        exec_set(0x55555555, 0)
        A("buffer_store_dword v%d, v%d, %s, s%d offen" % (T[9], T[0], srd(rO), sTmp))
        exec_all()
        lep = g.newlab("noep")
        A("s_or_b32 s%d, s%d, s%d" % (sTmp, sRA, sW))
        A("s_cmp_lg_u32 s%d, 0" % sTmp)
        A("s_cbranch_scc1 %s" % lep)
        A("v_mov_b32 v%d, s%d" % (T[10], sTag))
        A("s_mov_b32 s%d, 0x%x" % (sTmp, WS_EP))
        A("buffer_store_dword v%d, v%d, %s, s%d offen" % (T[10], vTkA, srd(rWS), sTmp))
        g.lab(lep)
    g.ts(8)

    g.lab(lfin)
    if DRY:
        A("s_cmp_eq_u32 s%d, 1" % sDry)
        A("s_cbranch_scc1 %s" % lresume)
    if opt.get("ts"):
        g.ts(9)
        A("s_getreg_b32 s90, hwreg(HW_REG_XCC_ID)")
        A("s_lshl_b32 s%d, s2, 3" % sTmp)
        A("s_add_u32 s%d, s%d, s%d" % (sTmp, sTmp, sW))
        A("s_lshl_b32 s%d, s%d, 6" % (sTmp, sTmp))
        A("s_add_u32 s%d, s%d, 0x%x" % (sTmp, sTmp, WS_TS))
        for k in range(12):
            A("v_mov_b32 v%d, s%d" % (P + k, 80 + k))
        for k in range(3):
            A("buffer_store_dwordx4 %s, v%d, %s, s%d offen offset:%d" % (vr(P + 4 * k, 4), vTkA, srd(rWS), sTmp, 16 * k))
    g.lab("L_end")
    A("s_endpgm")

    g.lab(lcomb)
    C = P
    A("v_and_b32 v%d, 7, v%d" % (T[0], vI))
    A("v_lshl_add_u32 v%d, v%d, 4, v%d" % (T[1], vG, T[0]))
    A("v_lshlrev_b32 v%d, 4, v%d" % (T[1], T[1]))
    A("v_lshrrev_b32 v%d, 3, v%d" % (T[2], vI))
    A("v_lshl_add_u32 v%d, v%d, 12, v%d" % (T[1], T[2], T[1]))
    A("s_lshl_b32 s%d, s%d, 13" % (sTmp, sCB))
    A("v_add_u32 v%d, s%d, v%d" % (T[1], sTmp, T[1]))
    A("s_lshl_b32 s%d, s%d, 6" % (sTmp, sCB))
    A("v_lshlrev_b32 v%d, 5, v%d" % (T[3], T[2]))
    A("v_add_u32 v%d, s%d, v%d" % (T[3], sTmp, T[3]))
    A("v_xor_b32 v%d, 32, v%d" % (T[4], T[3]))
    A("ds_read_b128 %s, v%d offset:%d" % (vr(C + 16, 4), T[3], LML))
    A("ds_read_b128 %s, v%d offset:%d" % (vr(C + 20, 4), T[3], LML + 16))
    A("ds_read_b128 %s, v%d offset:%d" % (vr(C + 24, 4), T[4], LML))
    A("ds_read_b128 %s, v%d offset:%d" % (vr(C + 28, 4), T[4], LML + 16))
    for k in range(4):
        A("ds_read_b128 %s, v%d offset:%d" % (vr(C + 4 * k, 4), T[1], LC + 1024 * k))
    A("v_lshl_add_u32 v%d, v%d, 3, v%d" % (T[5], vG, T[0]))
    A("v_lshlrev_b32 v%d, 3, v%d" % (T[5], T[5]))
    A("s_lshl_b32 s%d, s%d, 3" % (sTmp2, sCB))
    A("s_add_u32 s%d, s%d, s%d" % (sTmp2, sTmp2, sCI))
    A("s_lshl_b32 s%d, s%d, 4" % (sTmp, sCH))
    A("s_add_u32 s%d, s%d, s%d" % (sTmp2, sTmp2, sTmp))
    A("s_lshl_b32 s%d, s%d, 8" % (sTmp, sTmp2))
    A("s_lshl_b32 s%d, s%d, 4" % (sTmp2, sTmp2))
    A("s_add_u32 s%d, s%d, 0x%x" % (sTmp2, sTmp2, WS_ST))
    A("s_waitcnt lgkmcnt(4)")
    Mx, Ls = T[6], T[7]
    A("v_max3_f32 v%d, v%d, v%d, v%d" % (Mx, C + 16, C + 18, C + 20))
    A("v_max3_f32 v%d, v%d, v%d, v%d" % (T[8], C + 22, C + 24, C + 26))
    A("v_max3_f32 v%d, v%d, v%d, v%d" % (Mx, Mx, C + 28, C + 30))
    A("v_max_f32 v%d, v%d, v%d" % (Mx, Mx, T[8]))
    Fk = T[8:12]
    for k in range(4):
        A("v_sub_f32 v%d, v%d, v%d" % (Fk[k], C + 16 + 2 * k, Mx))
    for k in range(4):
        A("v_mul_f32 v%d, s%d, v%d" % (Fk[k], sL2E, Fk[k]))
    for k in range(4):
        A("v_exp_f32 v%d, v%d" % (Fk[k], Fk[k]))
    A("s_waitcnt lgkmcnt(0)")
    A("v_mul_f32 v%d, v%d, v%d" % (Ls, Fk[0], C + 17))
    O = T[12:16]
    for r in range(4):
        A("v_mul_f32 v%d, v%d, v%d" % (O[r], Fk[0], C + r))
    for k in range(1, 4):
        A("v_fmac_f32 v%d, v%d, v%d" % (Ls, Fk[k], C + 17 + 2 * k))
        for r in range(4):
            A("v_fmac_f32 v%d, v%d, v%d" % (O[r], Fk[k], C + 4 * k + r))
    dpp("v_add_f32", Ls, Ls, Ls, "row_ror:8")
    g.nop(1)
    for r in range(4):
        dpp("v_add_f32", O[r], O[r], O[r], "row_ror:8")
    P0 = T[16]
    A("v_cvt_pk_bf16_f32 v%d, v%d, v%d" % (P0, O[0], O[1]))
    A("v_cvt_pk_bf16_f32 v%d, v%d, v%d" % (P0 + 1, O[2], O[3]))
    A("v_min_u32 v%d, -2, v%d" % (P0, P0))
    A("v_min_u32 v%d, -2, v%d" % (P0 + 1, P0 + 1))
    A("buffer_store_dwordx2 %s, v%d, %s, s%d offen sc1" % (vr(P0, 2), T[5], srd(rWS), sTmp))
    A("v_min_u32 v%d, -2, v%d" % (Mx, Mx))
    A("v_min_u32 v%d, -2, v%d" % (Ls, Ls))
    A("buffer_store_dwordx2 %s, v%d, %s, s%d offen sc1" % (vr(Mx, 2), vTkA, srd(rWS), sTmp2))
    A("s_setpc_b64 s[%d:%d]" % (sRet, sRet + 1))
    g.lab("L_prep")
    lb1, lb2, lbd = g.newlab("b1"), g.newlab("b2"), g.newlab("bd")
    A("s_cmp_eq_u32 s%d, 0" % sRole)
    A("s_cbranch_scc1 %s" % lbd)
    if opt.get("nowl"):
        A("s_branch %s" % lbd)
    vr_, vc_, vLW, vTR = T[3], T[4], T[2], T[5]
    A("v_bfe_u32 v%d, v%d, 2, 2" % (vr_, vLane))
    A("v_and_b32 v%d, 3, v%d" % (vc_, vLane))
    A("s_lshl_b32 s%d, s%d, 13" % (sLB, sW))
    A("v_add_u32 v%d, s%d, v%d" % (vLW, sLB, vV))
    A("v_lshrrev_b32 v%d, 3, v%d" % (T[6], vLane))
    A("v_and_b32 v%d, 7, v%d" % (T[7], vLane))
    A("v_lshlrev_b32 v%d, 4, v%d" % (T[7], T[7]))
    A("s_cmp_lg_u32 s%d, 1" % sRole)
    A("s_cbranch_scc1 %s" % lb1)
    mk_srd(rB, pWO, 4 << 20)
    A("v_lshl_add_u32 v%d, v%d, 10, v%d" % (T[8], T[6], T[7]))
    A("s_lshl_b32 s%d, s%d, 3" % (sTmp, sRB))
    A("s_add_u32 s%d, s%d, s%d" % (sTmp, sTmp, sW))
    A("s_lshl_b32 s%d, s%d, 17" % (sTmp, sTmp))
    A("s_lshl_b32 s%d, s%d, 7" % (sTmp2, sRA))
    A("s_add_u32 s%d, s%d, s%d" % (sTmp, sTmp, sTmp2))
    for k in range(16):
        A("buffer_load_dwordx4 %s, v%d, %s, s%d offen %s" % (vr(vW + 4 * k, 4), T[8], srd(rB), sTmp, WNT))
        if k < 15:
            A("s_add_u32 s%d, s%d, 0x2000" % (sTmp, sTmp))
    A("v_lshlrev_b32 v%d, 1, v%d" % (vTR, vG))
    A("v_lshl_add_u32 v%d, v%d, 3, v%d" % (vTR, vr_, vTR))
    A("v_lshlrev_b32 v%d, 7, v%d" % (vTR, vTR))
    A("v_lshl_add_u32 v%d, v%d, 3, v%d" % (vTR, vc_, vTR))
    A("v_add_u32 v%d, s%d, v%d" % (vTR, sLB, vTR))
    for half in range(2):
        A("s_waitcnt vmcnt(%d)" % (8 if half == 0 else 0))
        for k in range(8):
            A("ds_write_b128 v%d, %s offset:%d" % (vLW, vr(vW + 32 * half + 4 * k, 4), LW + 1024 * k))
        A("s_waitcnt lgkmcnt(0)")
        for jj in range(2):
            for c in range(4):
                d = vW + 32 * half + 16 * jj + 4 * c
                A("ds_read_b64_tr_b16 %s, v%d offset:%d" % (vr(d, 2), vTR, LW + 4096 * jj + 32 * c))
                A("ds_read_b64_tr_b16 %s, v%d offset:%d" % (vr(d + 2, 2), vTR, LW + 4096 * jj + 32 * c + 128))
        A("s_waitcnt lgkmcnt(0)")
    A("s_branch %s" % lbd)
    g.lab(lb1)
    A("s_cmp_lg_u32 s%d, 2" % sRole)
    A("s_cbranch_scc1 %s" % lb2)
    mk_srd(rB, pW1, 512 * 2752)
    A("v_mul_u32_u24 v%d, 2752, v%d" % (T[8], T[6]))
    A("v_add_u32 v%d, v%d, v%d" % (T[8], T[8], T[7]))
    A("s_mul_i32 s%d, s%d, %d" % (sTmp, sW, 64 * 2752))
    A("s_lshl_b32 s%d, s%d, 7" % (sTmp2, sRA))
    A("s_add_u32 s%d, s%d, s%d" % (sTmp, sTmp, sTmp2))
    for k in range(8):
        A("buffer_load_dwordx4 %s, v%d, %s, s%d offen %s" % (vr(vW + 4 * k, 4), T[8], srd(rB), sTmp, WNT))
        if k < 7:
            A("s_add_u32 s%d, s%d, %d" % (sTmp, sTmp, 8 * 2752))
    A("v_and_b32 v%d, 1, v%d" % (T[9], vI))
    A("v_lshlrev_b32 v%d, 10, v%d" % (T[9], T[9]))
    A("v_bfe_u32 v%d, v%d, 1, 1" % (T[10], vI))
    A("v_lshl_add_u32 v%d, v%d, 4, v%d" % (T[10], T[10], T[9]))
    A("v_lshl_add_u32 v%d, v%d, 2, v%d" % (T[10], vG, T[10]))
    A("s_lshl_b32 s%d, s%d, 7" % (sTmp, sW))
    for r in range(4):
        A("buffer_load_dword v%d, v%d, %s, s%d offen offset:%d" % (vXR + r, T[10], srd(rA), sTmp, 32 * r))
    A("buffer_load_ushort v%d, v%d, %s, 0 offen" % (vXs, T[9], srd(rA)))
    mk_srd(rB, pB1, 2752)
    A("v_lshlrev_b32 v%d, 1, v%d" % (T[9], vI))
    A("s_and_b32 s%d, s%d, 3" % (sTmp, sW))
    A("s_lshl_b32 s%d, s%d, 5" % (sTmp, sTmp))
    A("s_lshl_b32 s%d, s%d, 7" % (sTmp2, sRA))
    A("s_add_u32 s%d, s%d, s%d" % (sTmp, sTmp, sTmp2))
    A("buffer_load_ushort v%d, v%d, %s, s%d offen" % (vBias, T[9], srd(rB), sTmp))
    A("v_lshlrev_b32 v%d, 1, v%d" % (vTR, vG))
    A("v_lshl_add_u32 v%d, v%d, 4, v%d" % (vTR, vr_, vTR))
    A("v_lshlrev_b32 v%d, 7, v%d" % (vTR, vTR))
    A("v_lshl_add_u32 v%d, v%d, 3, v%d" % (vTR, vc_, vTR))
    A("v_add_u32 v%d, s%d, v%d" % (vTR, sLB, vTR))
    A("s_waitcnt vmcnt(0)")
    for k in range(8):
        A("ds_write_b128 v%d, %s offset:%d" % (vLW, vr(vW + 4 * k, 4), LW + 1024 * k))
    A("s_waitcnt lgkmcnt(0)")
    for jj in range(2):
        for c in range(4):
            d = vW + 16 * jj + 4 * c
            A("ds_read_b64_tr_b16 %s, v%d offset:%d" % (vr(d, 2), vTR, LW + 1024 * jj + 32 * c))
            A("ds_read_b64_tr_b16 %s, v%d offset:%d" % (vr(d + 2, 2), vTR, LW + 1024 * jj + 32 * c + 128))
    for r in range(4):
        A("v_lshlrev_b32 v%d, 16, v%d" % (XF + r, vXR + r))
        A("v_and_b32 v%d, 0xffff0000, v%d" % (XF + 4 + r, vXR + r))
    A("v_lshlrev_b32 v%d, 16, v%d" % (vXs, vXs))
    A("v_lshlrev_b32 v%d, 16, v%d" % (vBias, vBias))
    for d in range(4):
        A("v_mov_b32 v%d, 0x3f803f80" % (vBa + d))
    A("s_waitcnt lgkmcnt(0)")
    for c in range(4):
        A("v_mfma_f32_16x16x32_bf16 %s, %s, %s, 0" % (vr(DD + 4 * c, 4), vr(vBa, 4), vr(vW + 4 * c, 4)))
    for c in range(4):
        A("v_mfma_f32_16x16x32_bf16 %s, %s, %s, %s" % (vr(DD + 4 * c, 4), vr(vBa, 4), vr(vW + 16 + 4 * c, 4), vr(DD + 4 * c, 4)))
    A("s_lshl_b32 s%d, s%d, 2" % (sTmp, sW))
    A("v_lshlrev_b32 v%d, 5, v%d" % (T[2], vI))
    A("v_add_u32 v%d, s%d, v%d" % (T[2], sTmp, T[2]))
    g.nop(8)
    for c in range(4):
        A("ds_write_b32 v%d, v%d offset:%d" % (T[2], DD + 4 * c, LCS + 512 * c))
    A("s_waitcnt lgkmcnt(0)")
    A("s_branch %s" % lbd)
    g.lab(lb2)
    mk_srd(rB, pW2, 1376 * 1024)
    A("v_lshrrev_b32 v%d, 2, v%d" % (T[8], vLane))
    A("v_lshlrev_b32 v%d, 10, v%d" % (T[8], T[8]))
    A("v_lshl_add_u32 v%d, v%d, 4, v%d" % (T[8], vc_, T[8]))
    A("s_lshl_b32 s%d, s%d, 15" % (sTmp, sW))
    A("s_lshl_b32 s%d, s%d, 6" % (sTmp2, sRA))
    A("s_add_u32 s%d, s%d, s%d" % (sTmp, sTmp, sTmp2))
    for k in range(6):
        A("buffer_load_dwordx4 %s, v%d, %s, s%d offen %s" % (vr(vW + 8 * k, 4), T[8], srd(rB), sTmp, WNT))
        A("s_add_u32 s%d, s%d, 0x4000" % (sTmp2, sTmp))
        A("buffer_load_dwordx4 %s, v%d, %s, s%d offen %s" % (vr(vW + 8 * k + 4, 4), T[8], srd(rB), sTmp2, WNT))
        if k < 5:
            A("s_add_u32 s%d, s%d, 0x40000" % (sTmp, sTmp))
    A("v_and_b32 v%d, 1, v%d" % (T[9], vG))
    A("v_lshlrev_b32 v%d, 10, v%d" % (T[9], T[9]))
    A("v_lshl_add_u32 v%d, v%d, 1, v%d" % (T[9], vI, T[9]))
    A("s_and_b32 s%d, s%d, 1" % (sTmp, sW))
    A("s_lshl_b32 s%d, s%d, 5" % (sTmp, sTmp))
    A("s_lshl_b32 s%d, s%d, 6" % (sTmp2, sRA))
    A("s_add_u32 s%d, s%d, s%d" % (sTmp, sTmp, sTmp2))
    A("buffer_load_ushort v%d, v%d, %s, s%d offen" % (vXs, T[9], srd(rA), sTmp))
    mk_srd(rB, pB2, 1024)
    A("v_lshlrev_b32 v%d, 1, v%d" % (T[9], vI))
    A("buffer_load_ushort v%d, v%d, %s, s%d offen" % (vBias, T[9], srd(rB), sTmp))
    A("v_lshl_add_u32 v%d, v%d, 3, v%d" % (vTR, vG, vr_))
    A("v_lshlrev_b32 v%d, 6, v%d" % (vTR, vTR))
    A("v_lshl_add_u32 v%d, v%d, 3, v%d" % (vTR, vc_, vTR))
    A("v_add_u32 v%d, s%d, v%d" % (vTR, sLB, vTR))
    for half in range(2):
        A("s_waitcnt vmcnt(%d)" % (8 if half == 0 else 0))
        for k in range(6):
            A("ds_write_b128 v%d, %s offset:%d" % (vLW, vr(vW + 24 * half + 4 * k, 4), LW + 1024 * k))
        A("s_waitcnt lgkmcnt(0)")
        for kk_ in range(3):
            for c in range(2):
                d = vW + 24 * half + 8 * kk_ + 4 * c
                A("ds_read_b64_tr_b16 %s, v%d offset:%d" % (vr(d, 2), vTR, LW + 2048 * kk_ + 32 * c))
                A("ds_read_b64_tr_b16 %s, v%d offset:%d" % (vr(d + 2, 2), vTR, LW + 2048 * kk_ + 32 * c + 256))
        A("s_waitcnt lgkmcnt(0)")
    A("v_lshlrev_b32 v%d, 16, v%d" % (vXs, vXs))
    A("v_lshlrev_b32 v%d, 16, v%d" % (vBias, vBias))
    g.lab(lbd)
    A("s_setpc_b64 s[%d:%d]" % (sRet, sRet + 1))
    g.lab("L_codeend")

    tail = []
    tail.append('.section .rodata,"a"')
    tail.append(".p2align 6")
    tail.append(".amdhsa_kernel %s_kernel" % NAME)
    tail.append("  .amdhsa_next_free_vgpr 256")
    tail.append("  .amdhsa_next_free_sgpr 102")
    tail.append("  .amdhsa_accum_offset 256")
    tail.append("  .amdhsa_group_segment_fixed_size 0")
    tail.append("  .amdhsa_kernarg_size 104")
    tail.append("  .amdhsa_user_sgpr_count 2")
    tail.append("  .amdhsa_user_sgpr_kernarg_segment_ptr 1")
    tail.append("  .amdhsa_system_sgpr_workgroup_id_x 1")
    tail.append("  .amdhsa_float_denorm_mode_32 3")
    tail.append(".end_amdhsa_kernel")
    return "\n".join(hdr + g.L + tail) + "\n"


if __name__ == "__main__":
    out = sys.argv[1]
    opt = {}
    for a in sys.argv[2:]:
        k, _, v = a.partition("=")
        opt[k] = v if v else True
    open(out, "w").write(gen(opt))
```

```python
import sys, struct

NAME = "sequential_preLN__mha_block_cached__dense_activation_gelu__decode"


def f32(x):
    return "0x%08x" % struct.unpack("<I", struct.pack("<f", x))[0]


WS_OP = 0x00000
WS_AP = 0x20000
WS_APL = 0x24000
WS_G = 0x28000
WS_GL = 0x2a000
WS_ST = 0x30000
WS_TK = 0x40000
WS_EP = 0x44000
WS_QP = 0x80000
WS_TS = 0x100000
WS_BYTES = 0x10000000

LR = 0
LR2 = 8192
LQF = 14336
LML = 14848
LCNT = 14976
LST = 15040
LCS = 15360
LC = 18432
LW = 34816
LWS = 13312
LDS_BYTES = LW + 8 * LWS

POLL_LIMIT = 1 << 18
DPPALL = "row_mask:0xf bank_mask:0xf"


class G:
    def __init__(self, opt):
        self.L = []
        self.opt = opt
        self.nlab = 0

    def __call__(self, s):
        self.L.append("    " + s)

    def lab(self, name):
        self.L.append(name + ":")

    def newlab(self, base):
        self.nlab += 1
        return "L_%s_%d" % (base, self.nlab)

    def nop(self, n):
        while n > 0:
            k = min(n, 16)
            self("s_nop %d" % (k - 1))
            n -= k

    def ts(self, idx):
        if self.opt.get("ts"):
            self("s_memrealtime s[76:77]")
            self("s_waitcnt lgkmcnt(0)")
            self("s_mov_b32 s%d, s76" % (80 + idx))


def vr(a, n=1):
    return "v%d" % a if n == 1 else "v[%d:%d]" % (a, a + n - 1)


def gen(opt):
    g = G(opt)
    A = g
    NT = opt.get("nt", "nt")
    WNT = opt.get("wnt", "nt")
    NPF = int(opt.get("npf", 3))
    PACE = int(opt.get("pace", 2))
    NS = int(opt.get("ns", 35))
    TAP = int(opt.get("tap", 0))
    NP0 = 7 * NPF + 1
    assert NS >= NP0 and 7 * NS + 8 <= 256
    NA = 256 - 7 * NS - 8
    NL = NA + 256
    vLane, vI, vG = 1, 2, 3
    vKX, vKY, vV, vTkA = 4, 5, 6, 7
    vMask = 8
    vQ0, vQ1, vSel = 12, 16, 16
    vAcc, vM, vL = 20, 24, 25
    T = list(range(26, 48))
    vBa, vBb = 48, 52
    vH = 57
    vXR, vBias, vXs = 58, 62, 63
    P = 64
    PL = 112
    XF = 120
    SB = 128
    vW = SB + 32
    W2 = [SB + 96 + 4 * k for k in range(8)] + [96 + 4 * k for k in range(4)]
    sW, sH, sT, sBA = 3, 4, 5, 6
    sTmp, sTmp2, sPh, sNext, sOff = 7, 8, 9, 10, 11
    sHB, sCnt, sRole, sRA = 12, 13, 14, 15
    pX, pK, pV, pWQ, pWO, pW1, pB1, pW2, pB2, pOUT, pDBG, pWS = 16, 18, 20, 22, 24, 28, 30, 32, 34, 36, 38, 40
    sLB, sQU = 42, 43
    rK, rV, rWS, rA, rB, rDBG = 44, 48, 52, 56, 60, 64
    sScale, sL2E = 68, 69
    sMi1, sRet, sMg1 = 70, 72, 74
    sCB, sSBW, sTag, sPo = 94, 95, 96, 97
    sTkA = 98

    def srd(r):
        return "s[%d:%d]" % (r, r + 3)

    def mk_srd(r, p, nbytes):
        A("s_mov_b32 s%d, s%d" % (r, p))
        A("s_and_b32 s%d, s%d, 0xffff" % (r + 1, p + 1))
        A("s_mov_b32 s%d, 0x%x" % (r + 2, nbytes))
        A("s_mov_b32 s%d, 0x20000" % (r + 3))

    def exec_set(lo, hi=0):
        A("s_mov_b32 exec_lo, 0x%x" % lo)
        A("s_mov_b32 exec_hi, 0x%x" % hi)

    def exec_all():
        A("s_mov_b64 exec, -1")

    def bf16_round(dst, src):
        A("v_cvt_pk_bf16_f32 v%d, v%d, v%d" % (dst, src, src))
        A("v_and_b32 v%d, 0xffff0000, v%d" % (dst, dst))

    def dpp(op, dst, src0, src1, ctrl, bank="0xf"):
        A("%s_dpp v%d, v%d, v%d %s row_mask:0xf bank_mask:%s" % (op, dst, src0, src1, ctrl, bank))

    def multi_xrow(kind, op, xs, ts):
        ins = "v_permlane16_swap_b32" if kind == 16 else "v_permlane32_swap_b32"
        for x, t in zip(xs, ts):
            A("v_mov_b32 v%d, v%d" % (t, x))
        g.nop(2 if len(xs) < 3 else 1)
        for x, t in zip(xs, ts):
            A("%s v%d, v%d" % (ins, x, t))
        g.nop(1)
        for x, t in zip(xs, ts):
            A("%s v%d, v%d, v%d" % (op, x, x, t))

    def xrow16(op, x, t):
        multi_xrow(16, op, [x], [t])

    def xrow32(op, x, t):
        multi_xrow(32, op, [x], [t])

    def mfma(d, a, b, c):
        A("v_mfma_f32_16x16x32_bf16 %s, %s, %s, %s" % (vr(d, 4), vr(a, 4), vr(b, 4), "0" if c is None else vr(c, 4)))

    def issue_K(kb, soff):
        A("buffer_load_dwordx4 %s, v%d, %s, s%d offen %s" % (vr(kb, 4), vKX, srd(rK), soff, NT))
        A("buffer_load_dwordx4 %s, v%d, %s, s%d offen offset:1024 %s" % (vr(kb + 4, 4), vKX, srd(rK), soff, NT))
        A("buffer_load_dwordx4 %s, v%d, %s, s%d offen %s" % (vr(kb + 8, 4), vKY, srd(rK), soff, NT))
        A("buffer_load_dwordx4 %s, v%d, %s, s%d offen offset:1024 %s" % (vr(kb + 12, 4), vKY, srd(rK), soff, NT))

    def issue_V(vb, soff):
        for j in range(4):
            A("buffer_load_dwordx4 %s, v%d, %s, s%d offen offset:%d %s" % (vr(vb + 4 * j, 4), vV, srd(rV), soff, 1024 * j, NT))

    def ln_scalars(vmean, vvar):
        bf16_round(vmean, vmean)
        bf16_round(vvar, vvar)
        A("v_add_f32 v%d, %s, v%d" % (vvar, f32(1e-5), vvar))
        bf16_round(vvar, vvar)
        A("v_sqrt_f32 v%d, v%d" % (vvar, vvar))
        g.nop(1)
        bf16_round(vvar, vvar)

    def div_refined(q, a, b, rb, t):
        A("v_mul_f32 v%d, v%d, v%d" % (q, a, rb))
        A("v_fma_f32 v%d, -v%d, v%d, v%d" % (t, q, b, a))
        A("v_fmac_f32 v%d, v%d, v%d" % (q, t, rb))

    def sentinel_check(regs, t, lab_ok):
        regs = list(regs)
        cur = None
        while regs:
            if cur is None:
                A("v_max3_u32 v%d, v%d, v%d, v%d" % (t, regs[0], regs[1], regs[2]))
                regs = regs[3:]
                cur = t
            elif len(regs) >= 2:
                A("v_max3_u32 v%d, v%d, v%d, v%d" % (t, t, regs[0], regs[1]))
                regs = regs[2:]
            else:
                A("v_max_u32 v%d, v%d, v%d" % (t, t, regs[0]))
                regs = []
        A("v_cmp_eq_u32 vcc, -1, v%d" % t)
        A("s_cbranch_vccz %s" % lab_ok)

    def poll(loads, regs, t, name, toggle=None):
        lp, lok = g.newlab(name + "p"), g.newlab(name + "ok")
        if toggle:
            A("s_mov_b32 s%d, s%d" % (sLB, toggle[0]))
        g.lab(lp)
        loads()
        if toggle:
            A("s_and_b32 s%d, s%d, %d" % (sNext, sCnt, int(opt.get("lr", 7))))
            A("s_cselect_b32 s%d, 0, 0x%x" % (sNext, toggle[1]))
            A("s_xor_b32 s%d, s%d, s%d" % (toggle[0], sLB, sNext))
        A("s_waitcnt vmcnt(0)")
        sentinel_check(regs, t, lok)
        A("s_mov_b64 exec, vcc")
        A("s_sub_u32 s%d, s%d, 1" % (sCnt, sCnt))
        A("s_cmp_gt_i32 s%d, 0" % sCnt)
        A("s_cbranch_scc1 %s" % lp)
        g.lab(lok)
        exec_all()

    hdr = ["; generated by work/gen12.py - fused preLN + cached MHA decode + GELU FFN, one persistent launch",
           "; @launch grid=(256,1,1) block=(512,1,1) lds=%d" % LDS_BYTES,
           '.amdgcn_target "amdgcn-amd-amdhsa--gfx950"', ".text", ".globl %s_kernel" % NAME, ".p2align 8",
           ".type %s_kernel,@function" % NAME, "%s_kernel:" % NAME]

    vFl, vFA = T[20], T[21]
    A("s_cmp_ge_u32 s2, 256")
    A("s_cbranch_scc1 L_end")
    A("s_load_dwordx16 s[16:31], s[0:1], 0")
    A("s_load_dwordx8 s[32:39], s[0:1], 64")
    A("s_load_dwordx2 s[40:41], s[0:1], 96")
    if opt.get("ts"):
        A("s_memrealtime s[78:79]")
    A("v_and_b32 v%d, 63, v0" % vLane)
    A("v_lshrrev_b32 v%d, 6, v0" % T[0])
    A("v_lshlrev_b32 v%d, 4, v%d" % (vV, vLane))
    A("v_readfirstlane_b32 s%d, v%d" % (sW, T[0]))
    for k in range(4):
        A("v_mov_b32 v%d, 0" % (T[6] + k))
    A("ds_write_b128 v%d, %s offset:%d" % (T[6], vr(T[6], 4), LCNT))
    if not opt.get("nopf"):
        lpf = g.newlab("nopf")
        A("s_cmp_lt_u32 s%d, 4" % sW)
        A("s_cbranch_scc1 %s" % lpf)
        A("s_getpc_b64 s[%d:%d]" % (rB, rB + 1))
        g.lab("L_pcref")
        A("s_sub_u32 s%d, s%d, L_pcref-%s_kernel" % (rB, rB, NAME))
        A("s_subb_u32 s%d, s%d, 0" % (rB + 1, rB + 1))
        A("s_and_b32 s%d, s%d, 0xffff" % (rB + 1, rB + 1))
        A("s_mov_b32 s%d, L_codeend-%s_kernel" % (rB + 2, NAME))
        A("s_mov_b32 s%d, 0x20000" % (rB + 3))
        A("s_sub_u32 s%d, s%d, 4" % (sTmp, sW))
        A("s_lshl_b32 s%d, s%d, 12" % (sTmp, sTmp))
        for k in range(4):
            A("buffer_load_dwordx4 %s, v%d, %s, s%d offen offset:%d" % (vr(P + 4 * k, 4), vV, srd(rB), sTmp, 1024 * k))
        g.lab(lpf)
    A("v_and_b32 v%d, 8, v0" % T[1])
    A("v_lshlrev_b32 v%d, 8, v%d" % (T[1], T[1]))
    A("v_add_u32 v%d, v%d, v%d" % (vKX, vV, T[1]))
    A("v_sub_u32 v%d, v%d, v%d" % (vKY, vV, T[1]))
    A("v_add_u32 v%d, 0x800, v%d" % (vKY, vKY))
    A("v_and_b32 v%d, 15, v0" % vI)
    A("v_bfe_u32 v%d, v0, 4, 2" % vG)
    A("s_lshr_b32 s%d, s2, 3" % sH)
    A("s_and_b32 s%d, s2, 7" % sT)
    A("s_sub_u32 s%d, s%d, 1" % (sSBW, sT))
    A("s_mul_i32 s%d, s%d, %d" % (sSBW, sSBW, NS))
    A("s_cmp_eq_u32 s%d, 0" % sT)
    A("s_cselect_b32 s%d, %d, s%d" % (sSBW, 7 * NS + 1, sSBW))
    A("s_cselect_b32 s%d, -1, %d" % (sQU, 7 * NPF))
    A("s_add_u32 s%d, s%d, s%d" % (sQU, sQU, sSBW))
    A("s_lshl_b32 s%d, s%d, 20" % (sTmp, sH))
    A("s_lshl_b32 s%d, s%d, 12" % (sSBW, sSBW))
    A("s_add_u32 s%d, s%d, s%d" % (sSBW, sSBW, sTmp))
    A("s_lshl_b32 s%d, s%d, 12" % (sQU, sQU))
    A("s_add_u32 s%d, s%d, s%d" % (sQU, sQU, sTmp))
    A("v_cmp_eq_u32 vcc, 0, v%d" % vLane)
    A("v_mov_b32 v%d, 0x%x" % (T[5], WS_BYTES))
    A("s_sub_u32 s%d, s%d, 1" % (sTmp, sW))
    A("s_lshl_b32 s%d, s%d, 12" % (sTmp, sTmp))
    A("s_add_u32 s%d, s%d, s%d" % (sOff, sSBW, sTmp))
    A("v_cndmask_b32 v%d, v%d, 0, vcc" % (vTkA, T[5]))
    A("s_waitcnt lgkmcnt(0)")
    mk_srd(rK, pK, 64 << 20)
    mk_srd(rV, pV, 64 << 20)
    mk_srd(rWS, pWS, WS_BYTES)
    mk_srd(rDBG, pDBG, 256)
    lQ, lsetup, lq2, lwaitq = g.newlab("qpath"), g.newlab("setup"), g.newlab("q2"), g.newlab("waitq")
    A("s_cmp_eq_u32 s%d, 0" % sW)
    A("s_cbranch_scc1 %s" % lQ)
    lsk, lpre = g.newlab("skipclr"), g.newlab("pre")
    A("s_cmp_lg_u32 s%d, 6" % sT)
    A("s_cbranch_scc1 %s" % lsk)
    A("s_cmp_lg_u32 s%d, 1" % sW)
    A("s_cbranch_scc1 %s" % lsk)
    CV = T[8]
    for k in range(4):
        A("v_mov_b32 v%d, -1" % (CV + k))
    A("v_mov_b32 v%d, 0" % T[12])
    A("v_mov_b32 v%d, 1" % T[13])
    A("s_mul_i32 s%d, s%d, 6144" % (sTmp, sH))
    A("s_add_u32 s%d, s%d, 4096" % (sTmp2, sTmp))
    for k in range(6):
        A("buffer_store_dwordx4 %s, v%d, %s, s%d offen offset:%d sc1" % (vr(CV, 4), vV, srd(rWS), sTmp if k < 4 else sTmp2, 1024 * (k & 3)))
    A("s_lshl_b32 s%d, s%d, 11" % (sTmp, sH))
    A("s_add_u32 s%d, s%d, 0x%x" % (sTmp, sTmp, WS_ST))
    A("v_lshlrev_b32 v%d, 7, v%d" % (T[14], vLane))
    exec_set(0xffff)
    A("buffer_store_dwordx2 %s, v%d, %s, s%d offen sc1" % (vr(CV, 2), T[14], srd(rWS), sTmp))
    exec_all()
    A("s_lshl_b32 s%d, s%d, 8" % (sTmp, sH))
    A("s_add_u32 s%d, s%d, 0x%x" % (sTmp, sTmp, WS_TK))
    A("buffer_store_dword v%d, v%d, %s, s%d offen sc1" % (T[12], vTkA, srd(rWS), sTmp))
    A("s_lshl_b32 s%d, s%d, 2" % (sTmp, sH))
    A("s_barrier")
    A("s_waitcnt vmcnt(0)")
    A("buffer_store_dword v%d, v%d, %s, s%d offen sc1" % (T[13], vTkA, srd(rDBG), sTmp))
    A("s_branch %s" % lpre)
    g.lab(lsk)
    A("s_barrier")
    g.lab(lpre)
    for k in range(NPF):
        bb = SB + 32 * k
        if k > 0:
            A("s_waitcnt vmcnt(%d)" % PACE)
        issue_K(bb, sOff)
        if k > 0 or PACE < 4:
            A("s_waitcnt vmcnt(%d)" % PACE)
        issue_V(bb + 16, sOff)
        if k == 0:
            A("s_cmp_eq_u32 s%d, 0" % sT)
            A("s_cbranch_scc1 %s" % lsetup)
        if k < NPF - 1:
            A("s_add_u32 s%d, s%d, 0x7000" % (sOff, sOff))
    A("s_branch %s" % lsetup)

    g.lab(lQ)
    A("s_setprio 3")
    A("s_load_dword s%d, s[%d:%d], 0x%x" % (sTag, pWS, pWS + 1, WS_EP))
    mk_srd(rA, pX, 2048)
    mk_srd(rB, pWQ, 4 << 20)
    vWQ = 64
    vXA, vXE = SB + 96, SB + 104
    F = [SB + 108 + k for k in range(16)]
    vAx, vAxe, vAwq = T[2], T[3], T[4]
    A("v_lshlrev_b32 v%d, 5, v%d" % (vAx, vLane))
    A("buffer_load_dwordx4 %s, v%d, %s, 0 offen" % (vr(vXA, 4), vAx, srd(rA)))
    A("buffer_load_dwordx4 %s, v%d, %s, 0 offen offset:16" % (vr(vXA + 4, 4), vAx, srd(rA)))
    A("v_lshl_add_u32 v%d, v%d, 2, v%d" % (vAxe, vI, vG))
    A("v_lshlrev_b32 v%d, 1, v%d" % (vAxe, vAxe))
    A("s_lshl_b32 s%d, s%d, 7" % (sTmp, sT))
    A("buffer_load_ushort v%d, v%d, %s, s%d offen" % (vXE, vAxe, srd(rA), sTmp))
    A("buffer_load_ushort v%d, v%d, %s, s%d offen offset:1024" % (vXE + 1, vAxe, srd(rA), sTmp))
    A("v_lshlrev_b32 v%d, 13, v%d" % (vAwq, vG))
    A("v_lshl_add_u32 v%d, v%d, 4, v%d" % (vAwq, vI, vAwq))
    A("s_lshl_b32 s%d, s%d, 19" % (sTmp, sT))
    A("s_lshl_b32 s%d, s%d, 8" % (sTmp2, sH))
    A("s_add_u32 s%d, s%d, s%d" % (sTmp, sTmp, sTmp2))
    for j in range(16):
        A("buffer_load_dwordx4 %s, v%d, %s, s%d offen %s" % (vr(vWQ + 4 * j, 4), vAwq, srd(rB), sTmp, WNT))
        if j < 15:
            A("s_add_u32 s%d, s%d, 0x8000" % (sTmp, sTmp))
    A("s_barrier")

    g.lab(lsetup)
    if opt.get("ts"):
        A("s_mov_b32 s80, s78")
        for k in range(81, 94):
            A("s_mov_b32 s%d, 0" % k)
    mk_srd(rA, pX, 2048)
    A("s_lshl_b32 s%d, s%d, 8" % (sTmp, sH))
    A("s_add_u32 s%d, s%d, 0x%x" % (sTmp, sTmp, WS_TK))
    A("s_add_u32 s%d, s%d, s%d" % (sTkA, pWS, sTmp))
    A("s_addc_u32 s%d, s%d, 0" % (sTkA + 1, pWS + 1))
    A("s_lshl_b32 s%d, s%d, 20" % (sBA, sH))
    A("s_add_u32 s%d, s%d, 0x%x" % (sHB, sBA, 0x2000000 - (NA << 12)))
    A("s_add_u32 s%d, s%d, 0x%x" % (sBA, sBA, (7 * NS + 8) << 12))
    A("s_mov_b32 s%d, %s" % (sScale, f32(128 ** -0.5)))
    A("s_mov_b32 s%d, %s" % (sL2E, f32(1.4426950408889634)))
    A("s_mov_b32 s%d, %d" % (sCnt, POLL_LIMIT))
    A("s_and_b32 s%d, s%d, 15" % (sRA, sH))
    A("s_cmp_lt_u32 s%d, 16" % sH)
    A("s_cselect_b32 s%d, 2, 3" % sRole)
    A("s_cmp_eq_u32 s%d, 0" % sT)
    A("s_cselect_b32 s%d, s%d, 0" % (sRole, sRole))
    A("v_and_b32 v%d, 1, v%d" % (T[2], vG))
    A("v_cmp_eq_u32 s[%d:%d], 1, v%d" % (sMg1, sMg1 + 1, T[2]))
    A("v_and_b32 v%d, 1, v0" % T[3])
    A("v_cmp_eq_u32 s[%d:%d], 1, v%d" % (sMi1, sMi1 + 1, T[3]))
    A("v_lshlrev_b32 v%d, 4, v%d" % (T[3], T[3]))
    A("v_mov_b32 v%d, 0xffff" % T[4])
    A("v_lshlrev_b32 v%d, v%d, v%d" % (T[4], T[3], T[4]))
    A("v_bfe_u32 v%d, v0, 1, 2" % T[5])
    for d in range(4):
        A("v_cmp_eq_u32 vcc, %d, v%d" % (d, T[5]))
        g.nop(2)
        A("v_cndmask_b32 v%d, 0, v%d, vcc" % (vMask + d, T[4]))
    A("s_cmp_eq_u32 s%d, 0" % sW)
    A("s_cbranch_scc1 %s" % lq2)
    A("s_cmp_eq_u32 s%d, 0" % sRole)
    A("s_cbranch_scc1 %s" % lwaitq)
    A("s_barrier")
    A("s_call_b64 s[%d:%d], L_prep" % (sRet, sRet + 1))
    A("s_branch %s" % lwaitq)

    g.lab(lq2)
    A("v_and_b32 v%d, 31, v%d" % (vFA, vLane))
    A("v_lshlrev_b32 v%d, 2, v%d" % (vFA, vFA))
    A("v_lshrrev_b32 v%d, 3, v%d" % (T[6], vI))
    A("v_mul_u32_u24 v%d, 0x0202, v%d" % (T[6], T[6]))
    A("v_add_u32 v%d, 0x0100, v%d" % (T[6], T[6]))
    A("v_lshl_or_b32 v%d, v%d, 16, v%d" % (T[6], T[6], T[6]))
    A("v_mov_b32 v%d, 0x0c0c0c0c" % T[7])
    for d in range(4):
        A("v_bfi_b32 v%d, v%d, v%d, v%d" % (vSel + d, vMask + d, T[6], T[7]))
    A("s_waitcnt vmcnt(18)")
    g.ts(1)
    for k in range(8):
        A("v_lshlrev_b32 v%d, 16, v%d" % (F[2 * k], vXA + k))
        A("v_and_b32 v%d, 0xffff0000, v%d" % (F[2 * k + 1], vXA + k))
    S = T[0:8]
    for k in range(8):
        A("v_add_f32 v%d, v%d, v%d" % (S[k], F[2 * k], F[2 * k + 1]))
    for st in (4, 2, 1):
        for k in range(st):
            A("v_add_f32 v%d, v%d, v%d" % (S[k], S[k], S[k + st]))

    def reduce32_add(x, t):
        for ctrl in ("quad_perm:[1,0,3,2]", "quad_perm:[2,3,0,1]", "row_half_mirror", "row_mirror"):
            g.nop(2)
            dpp("v_add_f32", x, x, x, ctrl)
        xrow16("v_add_f32", x, t)

    vMean, vVar = T[8], T[9]
    reduce32_add(S[0], T[10])
    A("v_mul_f32 v%d, %s, v%d" % (vMean, f32(1.0 / 512), S[0]))
    for k in range(16):
        A("v_sub_f32 v%d, v%d, v%d" % (F[k], F[k], vMean))
    for k in range(4):
        A("v_mul_f32 v%d, v%d, v%d" % (S[k], F[k], F[k]))
    for k in range(4, 16):
        A("v_fmac_f32 v%d, v%d, v%d" % (S[k & 3], F[k], F[k]))
    A("v_add_f32 v%d, v%d, v%d" % (S[0], S[0], S[1]))
    A("v_add_f32 v%d, v%d, v%d" % (S[2], S[2], S[3]))
    A("v_add_f32 v%d, v%d, v%d" % (S[0], S[0], S[2]))
    reduce32_add(S[0], T[10])
    A("v_mul_f32 v%d, %s, v%d" % (vVar, f32(1.0 / 512), S[0]))
    ln_scalars(vMean, vVar)
    A("v_mov_b32 v%d, v%d" % (T[10], vMean))
    A("v_mov_b32 v%d, v%d" % (T[11], vVar))
    g.nop(2)
    A("v_permlane32_swap_b32 v%d, v%d" % (vMean, T[10]))
    A("v_permlane32_swap_b32 v%d, v%d" % (vVar, T[11]))
    g.nop(1)
    A("v_rcp_f32 v%d, v%d" % (T[12], vVar))
    A("v_rcp_f32 v%d, v%d" % (T[13], T[11]))
    A("s_waitcnt vmcnt(16)")
    xn = [T[14], T[15]]
    vXN = T[18]
    for b in range(2):
        mm_, ss_, rr_ = (vMean, vVar, T[12]) if b == 0 else (T[10], T[11], T[13])
        A("v_lshlrev_b32 v%d, 16, v%d" % (T[16], vXE + b))
        A("v_sub_f32 v%d, v%d, v%d" % (T[16], T[16], mm_))
        bf16_round(T[16], T[16])
        div_refined(xn[b], T[16], ss_, rr_, T[17])
    A("v_cvt_pk_bf16_f32 v%d, v%d, v%d" % (vXN, xn[0], xn[1]))
    A("s_waitcnt lgkmcnt(0)")
    A("s_add_u32 s%d, s%d, 1" % (sTag, sTag))
    for j in range(16):
        B = vBa if j % 2 == 0 else vBb
        A("v_mov_b32_dpp v%d, v%d row_newbcast:%d %s" % (T[0], vXN, j, DPPALL))
        for d in range(4):
            A("v_perm_b32 v%d, v%d, v%d, v%d" % (B + d, T[0], T[0], vSel + d))
        A("s_waitcnt vmcnt(%d)" % (15 - j))
        g.nop(1)
        mfma(vAcc, vWQ + 4 * j, B, None if j == 0 else vAcc)
    A("v_lshrrev_b32 v%d, 3, v%d" % (T[4], vI))
    A("v_lshlrev_b32 v%d, 8, v%d" % (T[4], T[4]))
    A("v_lshl_add_u32 v%d, v%d, 6, v%d" % (T[4], vG, T[4]))
    A("v_and_b32 v%d, 7, v%d" % (T[5], vI))
    A("v_lshl_add_u32 v%d, v%d, 1, v%d" % (T[4], T[5], T[4]))
    A("s_lshl_b32 s%d, s2, 11" % sTmp)
    A("s_add_u32 s%d, s%d, 0x%x" % (sTmp, sTmp, WS_QP))
    A("s_lshl_b32 s%d, s%d, 14" % (sTmp2, sH))
    A("s_add_u32 s%d, s%d, 0x%x" % (sTmp2, sTmp2, WS_QP))
    QS = T[6]
    for r in range(4):
        A("v_mov_b32 v%d, s%d" % (QS + 2 * r + 1, sTag))
    for r in range(4):
        A("v_mov_b32 v%d, v%d" % (QS + 2 * r, vAcc + r))
    A("buffer_store_dwordx4 %s, v%d, %s, s%d offen sc1" % (vr(QS, 4), vV, srd(rWS), sTmp))
    A("buffer_store_dwordx4 %s, v%d, %s, s%d offen offset:1024 sc1" % (vr(QS + 4, 4), vV, srd(rWS), sTmp))
    lnb = g.newlab("nobar")
    A("s_cmp_eq_u32 s%d, 0" % sRole)
    A("s_cbranch_scc1 %s" % lnb)
    A("s_barrier")
    g.lab(lnb)
    g.ts(2)
    lp, lok = g.newlab("qp"), g.newlab("qok")
    sPend = sPh
    QR = 64
    A("s_mov_b32 s%d, 0x1ff" % sPend)
    g.lab(lp)
    for k in range(8):
        lk = g.newlab("qs")
        A("s_bitcmp0_b32 s%d, %d" % (sPend, k))
        A("s_cbranch_scc1 %s" % lk)
        A("s_add_u32 s%d, s%d, %d" % (sOff, sTmp2, 2048 * k))
        A("buffer_load_dwordx4 %s, v%d, %s, s%d offen sc1" % (vr(QR + 8 * k, 4), vV, srd(rWS), sOff))
        A("buffer_load_dwordx4 %s, v%d, %s, s%d offen offset:1024 sc1" % (vr(QR + 8 * k + 4, 4), vV, srd(rWS), sOff))
        g.lab(lk)
    lk = g.newlab("qs")
    A("s_bitcmp0_b32 s%d, 8" % sPend)
    A("s_cbranch_scc1 %s" % lk)
    A("buffer_load_dword v%d, v%d, %s, 0 offen sc1" % (vFl, vFA, srd(rDBG)))
    g.lab(lk)
    A("s_waitcnt vmcnt(0)")
    A("v_cmp_ne_u32 vcc, 1, v%d" % vFl)
    A("s_cmp_lg_u64 vcc, 0")
    A("s_cselect_b32 s%d, 0x100, 0" % sPend)
    for k in range(8):
        q_ = QR + 8 * k
        A("v_xor_b32 v%d, s%d, v%d" % (T[5], sTag, q_ + 1))
        A("v_xor_b32 v%d, s%d, v%d" % (T[16], sTag, q_ + 3))
        A("v_xor_b32 v%d, s%d, v%d" % (T[17], sTag, q_ + 5))
        A("v_xor_b32 v%d, s%d, v%d" % (T[18], sTag, q_ + 7))
        A("v_or3_b32 v%d, v%d, v%d, v%d" % (T[5], T[5], T[16], T[17]))
        A("v_or_b32 v%d, v%d, v%d" % (T[5], T[5], T[18]))
        A("v_cmp_ne_u32 vcc, 0, v%d" % T[5])
        A("s_cmp_lg_u64 vcc, 0")
        A("s_cselect_b32 s%d, %d, 0" % (sNext, 1 << k))
        A("s_or_b32 s%d, s%d, s%d" % (sPend, sPend, sNext))
    A("s_cmp_eq_u32 s%d, 0" % sPend)
    A("s_cbranch_scc1 %s" % lok)
    A("s_sleep 4")
    A("s_sub_u32 s%d, s%d, 1" % (sCnt, sCnt))
    A("s_cmp_gt_i32 s%d, 0" % sCnt)
    A("s_cbranch_scc1 %s" % lp)
    g.lab(lok)
    for st in (4, 2, 1):
        for k in range(st):
            for r in range(4):
                A("v_add_f32 v%d, v%d, v%d" % (QR + 8 * k + 2 * r, QR + 8 * k + 2 * r, QR + 8 * (k + st) + 2 * r))
    A("v_cvt_pk_bf16_f32 v%d, v%d, v%d" % (T[10], QR, QR + 2))
    A("v_cvt_pk_bf16_f32 v%d, v%d, v%d" % (T[11], QR + 4, QR + 6))
    A("v_mov_b32 v%d, 1" % T[2])
    A("v_mov_b32 v%d, 0" % T[3])
    A("ds_write_b16 v%d, v%d offset:%d" % (T[4], T[10], LQF))
    A("ds_write_b16_d16_hi v%d, v%d offset:%d" % (T[4], T[10], LQF + 16))
    A("ds_write_b16 v%d, v%d offset:%d" % (T[4], T[11], LQF + 32))
    A("ds_write_b16_d16_hi v%d, v%d offset:%d" % (T[4], T[11], LQF + 48))
    A("ds_write_b32 v%d, v%d offset:%d" % (T[3], T[2], LCNT + 12))
    A("s_setprio 0")
    issue_K(SB + 0, sQU)
    issue_V(SB + 16, sQU)

    g.lab(lwaitq)
    A("v_mov_b32 v%d, 0" % T[3])
    A("v_lshlrev_b32 v%d, 4, v%d" % (T[4], vI))
    lsp, lgo = g.newlab("qspin"), g.newlab("qgo")
    g.lab(lsp)
    A("ds_read_b32 v%d, v%d offset:%d" % (T[2], T[3], LCNT + 12))
    A("s_waitcnt lgkmcnt(0)")
    A("v_cmp_eq_u32 vcc, 1, v%d" % T[2])
    A("s_cbranch_vccnz %s" % lgo)
    A("s_sleep 1")
    A("s_branch %s" % lsp)
    g.lab(lgo)
    A("ds_read_b128 %s, v%d offset:%d" % (vr(vQ0, 4), T[4], LQF))
    A("ds_read_b128 %s, v%d offset:%d" % (vr(vQ1, 4), T[4], LQF + 256))

    def reset_state():
        for r in range(4):
            A("v_mov_b32 v%d, 0" % (vAcc + r))
        A("v_mov_b32 v%d, 0xff7fffff" % vM)
        A("v_mov_b32 v%d, 0" % vL)

    reset_state()
    A("s_waitcnt lgkmcnt(0)")
    g.ts(3)

    tX0, tX1, tY0, tY1 = T[0], T[1], T[2], T[3]
    r0, r1, u = T[4], T[5], T[6]
    sv, mx, tm, al, p, pd, ps = T[7], T[8], T[9], T[10], T[11], T[12], T[13]

    def H1(kb, q, kwait, filler=None):
        if kwait is not None:
            A("s_waitcnt vmcnt(%d)" % kwait)
        accs = [tX0, tX1, tY0, tY1]
        for e in range(4):
            for a in range(4):
                c = "0" if e == 0 else "v%d" % accs[a]
                A("v_dot2_f32_bf16 v%d, v%d, v%d, %s" % (accs[a], kb + 4 * a + e, q + e, c))
        if filler:
            filler()
        else:
            g.nop(3)
        dpp("v_add_f32", r0, tY0, tX0, "row_ror:8")
        dpp("v_add_f32", r1, tY1, tX1, "row_ror:8")

    def H2(vb, vwait_base):
        dpp("v_add_f32", u, r0, r0, "row_shl:4", "0x5")
        dpp("v_add_f32", u, r1, r1, "row_shr:4", "0xa")
        g.nop(2)
        dpp("v_add_f32", u, u, u, "quad_perm:[2,3,0,1]")
        g.nop(2)
        dpp("v_add_f32", u, u, u, "quad_perm:[1,0,3,2]")
        bf16_round(sv, u)
        A("v_mul_f32 v%d, s%d, v%d" % (sv, sScale, sv))
        bf16_round(sv, sv)
        g.nop(2)
        dpp("v_max_f32", mx, sv, sv, "row_ror:4")
        g.nop(2)
        dpp("v_max_f32", mx, mx, mx, "row_ror:8")
        xrow16("v_max_f32", mx, tm)
        xrow32("v_max_f32", mx, tm)
        A("v_max_f32 v%d, v%d, v%d" % (mx, mx, vM))
        A("v_sub_f32 v%d, v%d, v%d" % (p, sv, mx))
        A("v_sub_f32 v%d, v%d, v%d" % (al, vM, mx))
        A("v_mul_f32 v%d, s%d, v%d" % (p, sL2E, p))
        A("v_mul_f32 v%d, s%d, v%d" % (al, sL2E, al))
        A("v_exp_f32 v%d, v%d" % (p, p))
        A("v_exp_f32 v%d, v%d" % (al, al))
        A("v_mov_b32 v%d, v%d" % (vM, mx))
        A("v_cvt_pk_bf16_f32 v%d, v%d, v%d" % (pd, p, p))
        for r in range(4):
            A("v_mul_f32 v%d, v%d, v%d" % (vAcc + r, vAcc + r, al))
        dpp("v_add_f32", ps, p, p, "row_ror:4")
        for d in range(4):
            dpp("v_and_b32", vBa + d, pd, vMask + d, "row_newbcast:0")
        dpp("v_add_f32", ps, ps, ps, "row_ror:8")
        for d in range(4):
            dpp("v_and_b32", vBb + d, pd, vMask + d, "row_newbcast:4")
        xrow16("v_add_f32", ps, tm)
        xrow32("v_add_f32", ps, tm)
        A("v_fma_f32 v%d, v%d, v%d, v%d" % (vL, vL, al, ps))
        for j in range(4):
            B = vBa if j % 2 == 0 else vBb
            if j >= 2:
                for d in range(4):
                    dpp("v_and_b32", B + d, pd, vMask + d, "row_newbcast:%d" % (4 * j))
                g.nop(1)
            if vwait_base is not None:
                A("s_waitcnt vmcnt(%d)" % (vwait_base + 3 - j))
            else:
                g.nop(1)
            mfma(vAcc, vb + 4 * j, B, vAcc)

    def dump_and_combine(b):
        A("s_lshl_b32 s%d, s%d, 10" % (sTmp, sW))
        A("v_add_u32 v%d, s%d, v%d" % (T[0], sTmp, vV))
        A("s_lshl_b32 s%d, s%d, 3" % (sTmp, sW))
        A("v_mov_b32 v%d, s%d" % (T[1], sTmp))
        A("v_mov_b32 v%d, 1" % T[2])
        A("v_mov_b32 v%d, 0" % T[3])
        A("ds_write_b64 v%d, %s offset:%d" % (T[1], vr(vM, 2), LML + 64 * b))
        A("s_mov_b32 s%d, %d" % (sCB, b))
        A("ds_write_b128 v%d, %s offset:%d" % (T[0], vr(vAcc, 4), LC + 8192 * b))
        exec_set(1)
        A("ds_add_rtn_u32 v%d, v%d, v%d offset:%d" % (T[2], T[3], T[2], LCNT + 4 * b))
        exec_all()
        A("s_waitcnt lgkmcnt(0)")
        A("v_readfirstlane_b32 s%d, v%d" % (sTmp, T[2]))
        lno = g.newlab("nocomb")
        g.nop(1)
        A("s_cmp_lg_u32 s%d, 7" % sTmp)
        A("s_cbranch_scc1 %s" % lno)
        A("s_call_b64 s[%d:%d], L_combine" % (sRet, sRet + 1))
        g.lab(lno)

    vLT, vLA = T[14], T[15]
    A("v_mov_b32 v%d, 0" % vLA)
    A("s_mov_b32 s%d, 2" % sPh)
    A("s_cmp_eq_u32 s%d, 0" % sT)
    A("s_cselect_b32 s%d, 1, %d" % (sPo, 0 if NS > NP0 else 1))
    lloop, lexit, lsw, lextra, lcont = (g.newlab(n) for n in ("loop", "exit", "switch", "extra", "cont"))
    lg1, lg2, lg3, lg4 = (g.newlab(n) for n in ("tk", "tk", "tk", "tk"))
    g.lab(lloop)
    A("s_mov_b32 s%d, 1" % sNext)
    A("s_cmp_eq_u32 s%d, 0" % sPo)
    A("s_cbranch_scc1 %s" % lg1)
    A("s_atomic_add s%d, s[%d:%d], 0 glc" % (sNext, sTkA, sTkA + 1))
    A("s_branch %s" % lg2)
    g.lab(lg1)
    A("v_mov_b32 v%d, 1" % vLT)
    exec_set(1)
    A("ds_add_rtn_u32 v%d, v%d, v%d offset:%d" % (vLT, vLA, vLT, LCNT + 8))
    exec_all()
    g.lab(lg2)

    def fill():
        A("s_waitcnt lgkmcnt(0)")
        A("s_cmp_eq_u32 s%d, 1" % sPo)
        A("s_cbranch_scc1 %s" % lg3)
        A("v_readfirstlane_b32 s%d, v%d" % (sTmp, vLT))
        g.nop(1)
        A("s_add_u32 s%d, s%d, %d" % (sTmp, sTmp, NP0))
        A("s_lshl_b32 s%d, s%d, 12" % (sOff, sTmp))
        A("s_add_u32 s%d, s%d, s%d" % (sOff, sOff, sSBW))
        A("s_mov_b32 s%d, -1" % sNext)
        A("s_cmp_lt_u32 s%d, %d" % (sTmp, NS))
        A("s_cbranch_scc1 %s" % lg4)
        A("s_mov_b32 s%d, 1" % sPo)
        A("s_mov_b32 s%d, 1" % sNext)
        A("s_atomic_add s%d, s[%d:%d], 0 glc" % (sNext, sTkA, sTkA + 1))
        A("s_waitcnt lgkmcnt(0)")
        g.lab(lg3)
        A("s_cmp_lt_u32 s%d, %d" % (sNext, NA))
        A("s_cselect_b32 s%d, s%d, s%d" % (sTmp, sBA, sHB))
        A("s_lshl_b32 s%d, s%d, 12" % (sOff, sNext))
        A("s_add_u32 s%d, s%d, s%d" % (sOff, sOff, sTmp))
        A("s_cmp_lt_u32 s%d, %d" % (sNext, NL))
        A("s_cselect_b32 s%d, s%d, 0x4000000" % (sOff, sOff))
        g.lab(lg4)

    H1(SB + 0, vQ0, 4, fill)
    issue_K(SB + 0, sOff)
    H2(SB + 16, 4)
    issue_V(SB + 16, sOff)
    A("s_cmp_eq_u32 s%d, 2" % sPh)
    A("s_cbranch_scc1 %s" % lextra)
    g.lab(lcont)
    A("s_cmp_lt_i32 s%d, %d" % (sNext, NA))
    A("s_cbranch_scc1 %s" % lloop)
    A("s_cmp_eq_u32 s%d, 0" % sPh)
    A("s_cbranch_scc1 %s" % lsw)
    llast = g.newlab("last")
    lchk = g.newlab("chk")
    g.lab(lchk)
    if TAP:
        A("s_cmp_lt_u32 s%d, %d" % (sNext, NL - TAP))
        A("s_cbranch_scc1 %s" % lloop)
        A("s_cmp_ge_u32 s%d, %d" % (sNext, NL))
        A("s_cbranch_scc1 %s" % lexit)
        A("s_cmp_lt_u32 s%d, 4" % sW)
        A("s_cbranch_scc1 %s" % lloop)
        H1(SB + 0, vQ0, 4)
        g.nop(1)
        H2(SB + 16, 0)
        g.nop(4)
        A("s_branch %s" % lexit)
    else:
        A("s_cmp_lt_u32 s%d, %d" % (sNext, NL))
        A("s_cbranch_scc1 %s" % lloop)
        A("s_branch %s" % lexit)
    g.lab(lextra)
    lqw, lj = g.newlab("qw"), g.newlab("join")
    A("s_cmp_eq_u32 s%d, 0" % sW)
    A("s_cbranch_scc1 %s" % lqw)
    A("s_cmp_eq_u32 s%d, 0" % sT)
    A("s_cbranch_scc1 %s" % lj)
    for k in range(1, NPF):
        bb = SB + 32 * k
        H1(bb, vQ0, 8)
        g.nop(1)
        H2(bb + 16, None)
    A("s_branch %s" % lj)
    g.lab(lqw)
    A("s_cmp_eq_u32 s%d, 0" % sRole)
    A("s_cbranch_scc1 %s" % lj)
    A("s_call_b64 s[%d:%d], L_prep" % (sRet, sRet + 1))
    g.lab(lj)
    A("s_mov_b32 s%d, 0" % sPh)
    A("s_branch %s" % lcont)
    g.lab(lsw)
    dump_and_combine(0)
    g.ts(4)
    reset_state()
    for d in range(4):
        A("v_mov_b32 v%d, v%d" % (vQ0 + d, vQ1 + d))
    A("s_mov_b32 s%d, 1" % sPh)
    A("s_branch %s" % lchk)
    g.lab(lexit)
    g.ts(5)
    dump_and_combine(1)
    g.ts(6)

    lF2, lfin, lnext = g.newlab("roleF2"), g.newlab("fin"), g.newlab("next")
    A("s_cmp_eq_u32 s%d, 0" % sRole)
    A("s_cbranch_scc1 %s" % lfin)
    A("s_mov_b32 s%d, %d" % (sCnt, POLL_LIMIT - 1))
    DD = SB
    A("v_lshlrev_b32 v%d, 8, v%d" % (T[0], vI))
    A("v_lshl_add_u32 v%d, v%d, 4, v%d" % (T[0], vG, T[0]))
    A("s_and_b32 s%d, s%d, 24" % (sTmp, sH))
    A("s_add_u32 s%d, s%d, s%d" % (sTmp, sTmp, sW))
    A("s_lshl_b32 s%d, s%d, 11" % (sTmp2, sTmp))
    A("s_add_u32 s%d, s%d, 0x%x" % (sTmp2, sTmp2, WS_ST))
    A("s_lshl_b32 s%d, s%d, 12" % (sTmp, sTmp))
    A("v_and_b32 v%d, 7, v%d" % (T[1], vI))
    A("v_and_b32 v%d, 1, v%d" % (T[2], vG))
    A("v_lshlrev_b32 v%d, 2, v%d" % (T[2], T[2]))
    A("v_xor_b32 v%d, v%d, v%d" % (T[1], T[1], T[2]))
    A("v_lshlrev_b32 v%d, 7, v%d" % (T[1], T[1]))
    A("v_lshrrev_b32 v%d, 1, v%d" % (T[2], vG))
    A("v_lshl_add_u32 v%d, v%d, 10, v%d" % (T[1], T[2], T[1]))

    def ldW():
        for j in range(4):
            A("buffer_load_dwordx4 %s, v%d, %s, s%d offen offset:%d sc1" % (vr(P + 4 * j, 4), T[0], srd(rWS), sTmp, 64 * j))
        A("buffer_load_dwordx2 %s, v%d, %s, s%d offen sc1" % (vr(P + 16, 2), T[1], srd(rWS), sTmp2))
    poll(ldW, range(P, P + 18), T[5], "w")
    g.ts(7)
    mm, ee, ll = T[10], T[11], T[12]
    chain = [
        lambda: dpp("v_max_f32", mm, P + 16, P + 16, "quad_perm:[1,0,3,2]"),
        lambda: A("s_lshl_b32 s%d, s%d, 10" % (sOff, sW)),
        lambda: dpp("v_max_f32", mm, mm, mm, "quad_perm:[2,3,0,1]"),
        lambda: A("v_add_u32 v%d, s%d, v%d" % (T[4], sOff, vV)),
        lambda: dpp("v_max_f32", mm, mm, mm, "row_half_mirror"),
        lambda: A("v_sub_f32 v%d, v%d, v%d" % (ee, P + 16, mm)),
        lambda: A("v_mul_f32 v%d, s%d, v%d" % (ee, sL2E, ee)),
        lambda: A("v_exp_f32 v%d, v%d" % (ee, ee)),
        lambda: A("v_mul_f32 v%d, v%d, v%d" % (ll, ee, P + 17)),
        lambda: A("v_lshlrev_b32 v%d, 11, v%d" % (T[0], T[2])),
        lambda: dpp("v_add_f32", ll, ll, ll, "quad_perm:[1,0,3,2]"),
        lambda: A("v_lshl_add_u32 v%d, v%d, 4, v%d" % (T[0], vI, T[0])),
        lambda: dpp("v_add_f32", ll, ll, ll, "quad_perm:[2,3,0,1]"),
        lambda: A("s_lshr_b32 s%d, s%d, 3" % (sTmp, sH)),
        lambda: dpp("v_add_f32", ll, ll, ll, "row_half_mirror"),
        lambda: A("v_rcp_f32 v%d, v%d" % (ll, ll))]
    n_ = 0
    for j in range(4):
        for c in range(4):
            mfma(DD + 4 * c, P + 4 * j, vW + 16 * j + 4 * c, None if j == 0 else DD + 4 * c)
            chain[n_]()
            n_ += 1
    A("s_lshl_b32 s%d, s%d, 12" % (sTmp, sTmp))
    A("v_mul_f32 v%d, v%d, v%d" % (ee, ee, ll))
    A("s_and_b32 s%d, s%d, 7" % (sTmp2, sH))
    A("s_lshl_b32 s%d, s%d, 8" % (sTmp2, sTmp2))
    Y = T[14]
    for c in range(4):
        dpp("v_mul_f32", Y + c, ee, DD + 4 * c, "row_newbcast:0")
        for r in range(1, 4):
            dpp("v_fmac_f32", Y + c, ee, DD + 4 * c + r, "row_newbcast:%d" % r)
    A("ds_write_b128 v%d, %s offset:%d" % (T[4], vr(Y, 4), LR))
    A("s_add_u32 s%d, s%d, s%d" % (sTmp, sTmp, sTmp2))
    A("s_add_u32 s%d, s%d, 0x%x" % (sTmp2, sTmp, WS_AP))
    A("s_add_u32 s%d, s%d, 0x%x" % (sTmp, sTmp, WS_APL))
    A("s_waitcnt lgkmcnt(0)")
    A("s_barrier")
    A("s_cmp_lg_u32 s%d, 0" % sW)
    A("s_cbranch_scc1 %s" % lnext)
    for k in range(8):
        A("ds_read_b128 %s, v%d offset:%d" % (vr(P + 4 * k, 4), vV, LR + 1024 * k))
    A("s_waitcnt lgkmcnt(6)")
    for r in range(4):
        A("v_add_f32 v%d, v%d, v%d" % (P + r, P + r, P + 4 + r))
    A("s_waitcnt lgkmcnt(4)")
    for r in range(4):
        A("v_add_f32 v%d, v%d, v%d" % (P + 8 + r, P + 8 + r, P + 12 + r))
    A("s_waitcnt lgkmcnt(2)")
    for r in range(4):
        A("v_add_f32 v%d, v%d, v%d" % (P + 16 + r, P + 16 + r, P + 20 + r))
    for r in range(4):
        A("v_add_f32 v%d, v%d, v%d" % (P + r, P + r, P + 8 + r))
    A("s_waitcnt lgkmcnt(0)")
    for r in range(4):
        A("v_add_f32 v%d, v%d, v%d" % (P + 24 + r, P + 24 + r, P + 28 + r))
    for r in range(4):
        A("v_add_f32 v%d, v%d, v%d" % (P + 16 + r, P + 16 + r, P + 24 + r))
    for r in range(4):
        A("v_add_f32 v%d, v%d, v%d" % (P + r, P + r, P + 16 + r))
    multi_xrow(16, "v_add_f32", [P + r for r in range(4)], [T[6 + r] for r in range(4)])
    for r in range(4):
        A("v_min_u32 v%d, -2, v%d" % (P + r, P + r))
    exec_set(0x0000ffff, 0x0000ffff)
    A("buffer_store_dwordx4 %s, v%d, %s, s%d offen" % (vr(P, 4), T[0], srd(rWS), sTmp))
    A("buffer_store_dwordx4 %s, v%d, %s, s%d offen sc1" % (vr(P, 4), T[0], srd(rWS), sTmp2))
    exec_all()
    g.ts(8)
    g.nop(1)
    g.lab(lnext)
    A("s_cmp_eq_u32 s%d, 3" % sRole)
    A("s_cbranch_scc1 %s" % lF2)

    A("v_lshrrev_b32 v%d, 2, v%d" % (T[0], vI))
    A("v_lshlrev_b32 v%d, 12, v%d" % (T[0], T[0]))
    A("v_and_b32 v%d, 1, v%d" % (T[1], vI))
    A("v_lshl_add_u32 v%d, v%d, 11, v%d" % (T[0], T[1], T[0]))
    A("v_bfe_u32 v%d, v%d, 1, 1" % (T[2], vI))
    A("v_lshl_add_u32 v%d, v%d, 7, v%d" % (T[0], T[2], T[0]))
    A("v_lshl_add_u32 v%d, v%d, 5, v%d" % (T[0], vG, T[0]))
    A("s_lshl_b32 s%d, s%d, 8" % (sTmp, sW))
    A("s_add_u32 s%d, s%d, 0x%x" % (sTmp, sTmp, WS_APL))
    A("v_and_b32 v%d, 31, v%d" % (T[4], vLane))
    A("v_lshlrev_b32 v%d, 5, v%d" % (T[4], T[4]))
    A("s_lshl_b32 s%d, s%d, 2" % (sOff, sW))
    A("v_add_u32 v%d, s%d, v%d" % (T[4], sOff, T[4]))
    A("v_lshlrev_b32 v%d, 6, v%d" % (T[5], T[1]))
    A("s_lshl_b32 s%d, s%d, 3" % (sOff, sW))
    A("v_add_u32 v%d, s%d, v%d" % (T[5], sOff, T[5]))
    A("v_lshlrev_b32 v%d, 5, v%d" % (T[3], vLane))
    A("s_lshl_b32 s%d, s%d, 11" % (sOff, sW))
    A("v_add_u32 v%d, s%d, v%d" % (T[3], sOff, T[3]))
    A("v_lshrrev_b32 v%d, 1, v%d" % (T[21], vG))
    A("v_lshlrev_b32 v%d, 5, v%d" % (T[20], vI))
    A("v_lshl_add_u32 v%d, v%d, 9, v%d" % (T[20], T[21], T[20]))
    A("s_lshl_b32 s%d, s%d, 10" % (sOff, sW))
    A("v_add_u32 v%d, s%d, v%d" % (T[20], sOff, T[20]))
    for d in range(4):
        A("v_mov_b32 v%d, 0x3f803f80" % (vBa + d))
    A("v_lshl_add_u32 v%d, v%d, 4, v%d" % (T[21], T[21], vI))
    A("s_lshl_b32 s%d, s%d, 5" % (sOff, sW))
    A("v_add_u32 v%d, s%d, v%d" % (T[21], sOff, T[21]))
    A("v_cmp_gt_u32 vcc, 88, v%d" % T[21])
    A("s_mul_i32 s%d, s%d, 88" % (sOff, sRA))
    A("v_add_u32 v%d, s%d, v%d" % (T[21], sOff, T[21]))
    A("v_lshrrev_b32 v%d, 5, v%d" % (T[1], T[21]))
    A("v_and_b32 v%d, 30, v%d" % (T[2], T[21]))
    A("v_lshlrev_b32 v%d, 1, v%d" % (T[2], T[2]))
    A("v_lshl_add_u32 v%d, v%d, 7, v%d" % (T[1], T[1], T[2]))
    A("v_and_b32 v%d, 1, v%d" % (T[2], vG))
    A("v_lshl_add_u32 v%d, v%d, 6, v%d" % (T[1], T[2], T[1]))
    A("v_mov_b32 v%d, 0x%x" % (T[19], WS_BYTES))
    A("v_cndmask_b32 v%d, v%d, v%d, vcc" % (T[1], T[19], T[1]))
    A("v_cmp_gt_u32 vcc, 1376, v%d" % T[21])
    A("v_lshlrev_b32 v%d, 6, v%d" % (T[2], T[2]))
    g.nop(1)
    A("v_cndmask_b32 v%d, v%d, v%d, vcc" % (T[21], T[19], T[1]))

    def ldF1():
        A("buffer_load_dwordx4 %s, v%d, %s, s%d offen sc1" % (vr(PL, 4), T[0], srd(rWS), sTmp))
        A("buffer_load_dwordx4 %s, v%d, %s, s%d offen offset:16 sc1" % (vr(PL + 4, 4), T[0], srd(rWS), sTmp))
    poll(ldF1, range(PL, PL + 8), T[6], "f1", (sTmp, WS_AP ^ WS_APL))
    g.ts(9)
    for k in range(8):
        dpp("v_add_f32", P + k, PL + k, PL + k, "row_ror:4")
    for k in range(8):
        dpp("v_add_f32", P + k, P + k, P + k, "row_ror:8")
    HP, AP_ = T[6], T[10]
    for k in range(4):
        A("v_cvt_pk_bf16_f32 v%d, v%d, v%d" % (AP_ + k, P + 2 * k, P + 2 * k + 1))
    for k in range(4):
        A("v_lshlrev_b32 v%d, 16, v%d" % (P + 2 * k, AP_ + k))
        A("v_and_b32 v%d, 0xffff0000, v%d" % (P + 2 * k + 1, AP_ + k))
    for k in range(8):
        A("v_add_f32 v%d, v%d, v%d" % (P + k, P + k, XF + k))
    for k in range(4):
        A("v_cvt_pk_bf16_f32 v%d, v%d, v%d" % (HP + k, P + 2 * k, P + 2 * k + 1))
    g.nop(2)
    DF = vW
    DS, DQ = vW + 48, vW + 52
    mfma(DS, HP, vBa, None)
    mfma(DQ, HP, HP, None)
    SS, QQ = T[14], T[15]
    post = []
    post.append(["v_add_f32 v%d, v%d, v%d" % (T[16], DS, DS + 2),
                 "v_add_f32 v%d, v%d, v%d" % (T[17], DS + 1, DS + 3),
                 "v_cndmask_b32 v%d, v%d, v%d, s[%d:%d]" % (T[18], DQ, DQ + 1, sMi1, sMi1 + 1),
                 "v_cndmask_b32 v%d, v%d, v%d, s[%d:%d]" % (T[19], DQ + 2, DQ + 3, sMi1, sMi1 + 1),
                 "v_cndmask_b32 v%d, v%d, v%d, s[%d:%d]" % (SS, T[16], T[17], sMi1, sMi1 + 1),
                 "s_nop 0",
                 "v_add_f32_dpp v%d, v%d, v%d quad_perm:[2,3,0,1] %s" % (QQ, T[19], T[18], DPPALL),
                 "s_mov_b32 exec_lo, 3", "s_mov_b32 exec_hi, 0",
                 "ds_write_b64 v%d, %s offset:%d" % (T[5], vr(SS, 2), LST),
                 "s_mov_b64 exec, -1"])
    for c in range(6):
        post.append(["v_add_f32 v%d, v%d, v%d" % (T[18], DF + 4 * c, DF + 24 + 4 * c + 2),
                     "v_add_f32 v%d, v%d, v%d" % (T[19], DF + 4 * c + 1, DF + 24 + 4 * c + 3),
                     "v_cndmask_b32 v%d, v%d, v%d, s[%d:%d]" % (P + 12 + c, T[18], T[19], sMg1, sMg1 + 1),
                     "ds_write_b32 v%d, v%d offset:%d" % (T[4], P + 12 + c, LR2 + 1024 * c)])
    for c in range(6):
        for j in range(2):
            mfma(DF + 24 * j + 4 * c, HP, W2[6 * j + c], None)
        if c >= 4:
            for s_ in post[c - 4]:
                A(s_)
    for k in range(2, 7):
        for s_ in post[k]:
            A(s_)
    A("s_waitcnt lgkmcnt(0)")
    A("s_barrier")
    A("s_cmp_ge_u32 s%d, 3" % sW)
    A("s_cbranch_scc1 %s" % lfin)
    Z, SQ, CSr = P, P + 12, T[8]
    for k in range(4):
        A("ds_read_b128 %s, v%d offset:%d" % (vr(SQ + 4 * k, 4), T[2], LST + 16 * k))
    A("ds_read_b128 %s, v%d offset:%d" % (vr(Z, 4), T[3], LR2))
    A("ds_read_b128 %s, v%d offset:%d" % (vr(Z + 4, 4), T[3], LR2 + 16))
    A("ds_read_b128 %s, v%d offset:%d" % (vr(CSr, 4), T[20], LCS))
    A("ds_read_b128 %s, v%d offset:%d" % (vr(CSr + 4, 4), T[20], LCS + 16))
    A("s_mov_b32 s%d, 0x%x" % (sTmp, WS_GL))
    A("s_mov_b32 s%d, 0x%x" % (sTmp2, WS_G))
    A("s_waitcnt lgkmcnt(4)")
    for st in (8, 4, 2):
        for k in range(st):
            A("v_add_f32 v%d, v%d, v%d" % (SQ + k, SQ + k, SQ + k + st))
    mean, var = T[5], T[6]
    A("v_mul_f32 v%d, %s, v%d" % (mean, f32(1.0 / 512), SQ))
    A("v_mul_f32 v%d, %s, v%d" % (var, f32(1.0 / 512), SQ + 1))
    A("v_fma_f32 v%d, -v%d, v%d, v%d" % (var, mean, mean, var))
    A("v_max_f32 v%d, 0, v%d" % (var, var))
    ln_scalars(mean, var)
    A("v_rcp_f32 v%d, v%d" % (T[7], var))
    A("s_waitcnt lgkmcnt(0)")
    for st in (4, 2, 1):
        for k in range(st):
            A("v_add_f32 v%d, v%d, v%d" % (Z + k, Z + k, Z + k + st))
            A("v_add_f32 v%d, v%d, v%d" % (CSr + k, CSr + k, CSr + k + st))
    A("v_fma_f32 v%d, -v%d, v%d, v%d" % (Z, mean, CSr, Z))
    div_refined(T[8], Z, var, T[7], T[9])
    bf16_round(T[8], T[8])
    A("v_add_f32 v%d, v%d, v%d" % (T[8], T[8], vBias))
    bf16_round(T[8], T[8])
    kk = 2.0 * 0.7978845608028654 * 1.4426950408889634
    A("v_mul_f32 v%d, v%d, v%d" % (T[9], T[8], T[8]))
    A("v_mov_b32 v%d, %s" % (T[10], f32(-kk)))
    A("v_fmac_f32 v%d, %s, v%d" % (T[10], f32(-kk * 0.044715), T[9]))
    A("v_mul_f32 v%d, v%d, v%d" % (T[9], T[10], T[8]))
    A("v_exp_f32 v%d, v%d" % (T[9], T[9]))
    g.nop(1)
    A("v_add_f32 v%d, 1.0, v%d" % (T[9], T[9]))
    A("v_rcp_f32 v%d, v%d" % (T[9], T[9]))
    g.nop(1)
    A("v_mul_f32 v%d, v%d, v%d" % (T[8], T[8], T[9]))
    g.nop(2)
    A("v_mov_b32_dpp v%d, v%d quad_perm:[1,1,3,3] %s" % (T[10], T[8], DPPALL))
    A("v_cvt_pk_bf16_f32 v%d, v%d, v%d" % (T[9], T[8], T[10]))
    A("v_min_u32 v%d, -2, v%d" % (T[9], T[9]))
    exec_set(0x55555555, 0x55555555)
    A("buffer_store_dword v%d, v%d, %s, s%d offen" % (T[9], T[21], srd(rWS), sTmp))
    A("buffer_store_dword v%d, v%d, %s, s%d offen sc1" % (T[9], T[21], srd(rWS), sTmp2))
    exec_all()
    g.ts(10)
    A("s_branch %s" % lfin)

    g.lab(lF2)
    rO = rDBG
    mk_srd(rO, pOUT, 2048)
    A("v_and_b32 v%d, 1, v%d" % (T[0], vI))
    A("v_lshlrev_b32 v%d, 6, v%d" % (T[0], T[0]))
    A("v_lshl_add_u32 v%d, v%d, 4, v%d" % (T[0], vG, T[0]))
    A("s_lshl_b32 s%d, s%d, 7" % (sTmp, sW))
    A("v_add_u32 v%d, s%d, v%d" % (T[0], sTmp, T[0]))
    A("v_add_u32 v%d, 0x1000, v%d" % (T[1], T[0]))
    A("s_cmp_lt_u32 s%d, 3" % sW)
    A("s_cselect_b32 s%d, 0x1400, 0x%x" % (sTmp, 0) if False else "s_cselect_b32 s%d, 0, 1" % sTmp)
    A("s_lshl_b32 s%d, s%d, 28" % (sTmp, sTmp))
    A("s_add_u32 s%d, s%d, 0x1400" % (sTmp, sTmp))
    A("v_add_u32 v%d, s%d, v%d" % (T[2], sTmp, T[0]))
    A("v_and_b32 v%d, 31, v%d" % (T[3], vLane))
    A("v_lshlrev_b32 v%d, 5, v%d" % (T[3], T[3]))
    A("s_lshl_b32 s%d, s%d, 2" % (sOff, sW))
    A("v_add_u32 v%d, s%d, v%d" % (T[4], sOff, T[3]))
    A("v_lshlrev_b32 v%d, 5, v%d" % (T[3], vLane))
    lnh = g.newlab("noh")
    A("s_cmp_lg_u32 s%d, 0" % sW)
    A("s_cbranch_scc1 %s" % lnh)
    A("v_and_b32 v%d, 1, v%d" % (T[5], vG))
    A("v_lshlrev_b32 v%d, 11, v%d" % (T[5], T[5]))
    A("v_lshl_add_u32 v%d, v%d, 4, v%d" % (T[5], vI, T[5]))
    A("v_lshrrev_b32 v%d, 1, v%d" % (T[6], vG))
    A("v_lshl_add_u32 v%d, v%d, 2, v%d" % (T[5], T[6], T[5]))
    A("v_add_u32 v%d, 0x1000, v%d" % (T[7], T[5]))
    A("v_add_u32 v%d, 0x2000, v%d" % (T[8], T[5]))
    A("v_add_u32 v%d, 0x3000, v%d" % (T[9], T[5]))
    A("s_lshr_b32 s%d, s%d, 1" % (sTmp, sRA))
    A("s_lshl_b32 s%d, s%d, 8" % (sTmp, sTmp))
    A("s_and_b32 s%d, s%d, 1" % (sTmp2, sRA))
    A("s_lshl_b32 s%d, s%d, 3" % (sTmp2, sTmp2))
    A("s_add_u32 s%d, s%d, s%d" % (sTmp, sTmp, sTmp2))
    A("s_add_u32 s%d, s%d, 0x%x" % (sTmp, sTmp, WS_APL))

    def ldH():
        for k, a_ in enumerate((T[5], T[7], T[8], T[9])):
            A("buffer_load_dword v%d, v%d, %s, s%d offen sc1" % (PL + k, a_, srd(rWS), sTmp))
    poll(ldH, range(PL, PL + 4), T[6], "h", (sTmp, WS_AP ^ WS_APL))
    A("v_add_f32 v%d, v%d, v%d" % (PL, PL, PL + 3))
    A("v_add_f32 v%d, v%d, v%d" % (PL + 2, PL + 2, PL + 1))
    A("v_add_f32 v%d, v%d, v%d" % (PL, PL, PL + 2))
    bf16_round(PL, PL)
    A("v_add_f32 v%d, v%d, v%d" % (vH, PL, vXs))
    bf16_round(vH, vH)
    g.lab(lnh)
    A("s_mov_b32 s%d, 0x%x" % (sTmp, WS_GL))

    def ldF2():
        for k in range(6):
            a_, o_ = (T[0], 1024 * k) if k < 4 else ((T[1], 0) if k == 4 else (T[2], 0))
            A("buffer_load_dwordx4 %s, v%d, %s, s%d offen offset:%d sc1" % (vr(P + 4 * k, 4), a_, srd(rWS), sTmp, o_))
    poll(ldF2, range(P, P + 24), T[6], "f2", (sTmp, WS_G ^ WS_GL))
    g.ts(9)
    for k in range(6):
        for c in range(2):
            mfma(DD + 4 * c, P + 4 * k, W2[2 * k + c], None if k == 0 else DD + 4 * c)
    A("v_and_b32 v%d, 1, v%d" % (T[0], vG))
    A("v_lshlrev_b32 v%d, 10, v%d" % (T[0], T[0]))
    A("v_lshl_add_u32 v%d, v%d, 1, v%d" % (T[0], vI, T[0]))
    A("v_lshrrev_b32 v%d, 1, v%d" % (T[1], vG))
    A("v_lshl_add_u32 v%d, v%d, 5, v%d" % (T[0], T[1], T[0]))
    A("s_lshl_b32 s%d, s%d, 6" % (sTmp, sRA))
    g.nop(1)
    A("v_cndmask_b32 v%d, v%d, v%d, s[%d:%d]" % (T[10], DD, DD + 1, sMg1, sMg1 + 1))
    A("ds_write_b32 v%d, v%d offset:%d" % (T[4], T[10], LR2))
    A("v_cndmask_b32 v%d, v%d, v%d, s[%d:%d]" % (T[11], DD + 4, DD + 5, sMg1, sMg1 + 1))
    A("ds_write_b32 v%d, v%d offset:%d" % (T[4], T[11], LR2 + 1024))
    A("s_waitcnt lgkmcnt(0)")
    A("s_barrier")
    A("s_cmp_lg_u32 s%d, 0" % sW)
    A("s_cbranch_scc1 %s" % lfin)
    A("ds_read_b128 %s, v%d offset:%d" % (vr(P, 4), T[3], LR2))
    A("ds_read_b128 %s, v%d offset:%d" % (vr(P + 4, 4), T[3], LR2 + 16))
    A("s_waitcnt lgkmcnt(0)")
    for st in (4, 2, 1):
        for k in range(st):
            A("v_add_f32 v%d, v%d, v%d" % (P + k, P + k, P + k + st))
    bf16_round(P, P)
    A("v_add_f32 v%d, v%d, v%d" % (P, P, vBias))
    bf16_round(P, P)
    A("v_add_f32 v%d, v%d, v%d" % (P, P, vH))
    g.nop(2)
    A("v_mov_b32_dpp v%d, v%d quad_perm:[1,1,3,3] %s" % (T[10], P, DPPALL))
    A("v_cvt_pk_bf16_f32 v%d, v%d, v%d" % (T[9], P, T[10]))
    exec_set(0x55555555, 0x55555555)
    A("buffer_store_dword v%d, v%d, %s, s%d offen" % (T[9], T[0], srd(rO), sTmp))
    exec_all()
    lep = g.newlab("noep")
    A("s_cmp_lg_u32 s%d, 0" % sRA)
    A("s_cbranch_scc1 %s" % lep)
    A("v_mov_b32 v%d, s%d" % (T[10], sTag))
    A("s_mov_b32 s%d, 0x%x" % (sTmp, WS_EP))
    A("buffer_store_dword v%d, v%d, %s, s%d offen" % (T[10], vTkA, srd(rWS), sTmp))
    g.lab(lep)
    g.ts(10)

    g.lab(lfin)
    if opt.get("ts"):
        g.ts(11)
        A("s_waitcnt vmcnt(0)")
        A("s_lshl_b32 s%d, s2, 3" % sTmp)
        A("s_add_u32 s%d, s%d, s%d" % (sTmp, sTmp, sW))
        A("s_lshl_b32 s%d, s%d, 6" % (sTmp, sTmp))
        A("s_add_u32 s%d, s%d, 0x%x" % (sTmp, sTmp, WS_TS))
        for k in range(12):
            A("v_mov_b32 v%d, s%d" % (P + k, 80 + k))
        for k in range(3):
            A("buffer_store_dwordx4 %s, v%d, %s, s%d offen offset:%d" % (vr(P + 4 * k, 4), vTkA, srd(rWS), sTmp, 16 * k))
    g.lab("L_end")
    A("s_endpgm")

    g.lab("L_combine")
    C = P
    A("v_and_b32 v%d, 7, v%d" % (T[0], vI))
    A("v_lshl_add_u32 v%d, v%d, 4, v%d" % (T[1], vG, T[0]))
    A("v_lshlrev_b32 v%d, 4, v%d" % (T[1], T[1]))
    A("v_lshrrev_b32 v%d, 3, v%d" % (T[2], vI))
    A("v_lshl_add_u32 v%d, v%d, 12, v%d" % (T[1], T[2], T[1]))
    A("s_lshl_b32 s%d, s%d, 13" % (sTmp, sCB))
    A("v_add_u32 v%d, s%d, v%d" % (T[1], sTmp, T[1]))
    A("s_lshl_b32 s%d, s%d, 6" % (sTmp, sCB))
    A("v_lshlrev_b32 v%d, 5, v%d" % (T[3], T[2]))
    A("v_add_u32 v%d, s%d, v%d" % (T[3], sTmp, T[3]))
    A("v_xor_b32 v%d, 32, v%d" % (T[4], T[3]))
    A("ds_read_b128 %s, v%d offset:%d" % (vr(C + 16, 4), T[3], LML))
    A("ds_read_b128 %s, v%d offset:%d" % (vr(C + 20, 4), T[3], LML + 16))
    A("ds_read_b128 %s, v%d offset:%d" % (vr(C + 24, 4), T[4], LML))
    A("ds_read_b128 %s, v%d offset:%d" % (vr(C + 28, 4), T[4], LML + 16))
    for k in range(4):
        A("ds_read_b128 %s, v%d offset:%d" % (vr(C + 4 * k, 4), T[1], LC + 1024 * k))
    A("v_lshl_add_u32 v%d, v%d, 3, v%d" % (T[5], vG, T[0]))
    A("v_lshlrev_b32 v%d, 3, v%d" % (T[5], T[5]))
    A("s_lshl_b32 s%d, s%d, 3" % (sTmp2, sCB))
    A("s_add_u32 s%d, s%d, s%d" % (sTmp2, sTmp2, sT))
    A("s_lshl_b32 s%d, s%d, 4" % (sTmp, sH))
    A("s_add_u32 s%d, s%d, s%d" % (sTmp2, sTmp2, sTmp))
    A("s_lshl_b32 s%d, s%d, 8" % (sTmp, sTmp2))
    A("s_lshl_b32 s%d, s%d, 7" % (sTmp2, sTmp2))
    A("s_add_u32 s%d, s%d, 0x%x" % (sTmp2, sTmp2, WS_ST))
    A("v_add_u32 v%d, s%d, v%d" % (T[5], sTmp, T[5]))
    A("v_cmp_eq_u32 vcc, 8, v%d" % vLane)
    A("v_mov_b32 v%d, s%d" % (T[18], sTmp2))
    g.nop(1)
    A("v_cndmask_b32 v%d, v%d, v%d, vcc" % (T[5], T[5], T[18]))
    A("s_waitcnt lgkmcnt(4)")
    Mx, Ls = T[6], T[7]
    A("v_max3_f32 v%d, v%d, v%d, v%d" % (Mx, C + 16, C + 18, C + 20))
    A("v_max3_f32 v%d, v%d, v%d, v%d" % (T[8], C + 22, C + 24, C + 26))
    A("v_max3_f32 v%d, v%d, v%d, v%d" % (Mx, Mx, C + 28, C + 30))
    A("v_max_f32 v%d, v%d, v%d" % (Mx, Mx, T[8]))
    Fk = T[8:12]
    for k in range(4):
        A("v_sub_f32 v%d, v%d, v%d" % (Fk[k], C + 16 + 2 * k, Mx))
    for k in range(4):
        A("v_mul_f32 v%d, s%d, v%d" % (Fk[k], sL2E, Fk[k]))
    for k in range(4):
        A("v_exp_f32 v%d, v%d" % (Fk[k], Fk[k]))
    A("s_waitcnt lgkmcnt(0)")
    A("v_mul_f32 v%d, v%d, v%d" % (Ls, Fk[0], C + 17))
    O = [T[12], T[13], T[16], T[17]]
    for r in range(4):
        A("v_mul_f32 v%d, v%d, v%d" % (O[r], Fk[0], C + r))
    for k in range(1, 4):
        A("v_fmac_f32 v%d, v%d, v%d" % (Ls, Fk[k], C + 17 + 2 * k))
        for r in range(4):
            A("v_fmac_f32 v%d, v%d, v%d" % (O[r], Fk[k], C + 4 * k + r))
    dpp("v_add_f32", Ls, Ls, Ls, "row_ror:8")
    g.nop(1)
    for r in range(4):
        dpp("v_add_f32", O[r], O[r], O[r], "row_ror:8")
    P0 = T[18]
    A("v_cvt_pk_bf16_f32 v%d, v%d, v%d" % (P0, O[0], O[1]))
    A("v_cvt_pk_bf16_f32 v%d, v%d, v%d" % (P0 + 1, O[2], O[3]))
    A("v_cndmask_b32 v%d, v%d, v%d, vcc" % (P0, P0, Mx))
    A("v_cndmask_b32 v%d, v%d, v%d, vcc" % (P0 + 1, P0 + 1, Ls))
    A("v_min_u32 v%d, -2, v%d" % (P0, P0))
    A("v_min_u32 v%d, -2, v%d" % (P0 + 1, P0 + 1))
    exec_set(0x00ff01ff, 0x00ff00ff)
    A("buffer_store_dwordx2 %s, v%d, %s, 0 offen sc1" % (vr(P0, 2), T[5], srd(rWS)))
    exec_all()
    A("s_setpc_b64 s[%d:%d]" % (sRet, sRet + 1))

    g.lab("L_prep")
    lb2, lbd = g.newlab("b2"), g.newlab("bd")
    if opt.get("nowl"):
        A("s_branch %s" % lbd)
    vr_, vc_, vLW, vTR = T[3], T[4], T[2], T[5]
    A("s_setprio 2")
    A("v_bfe_u32 v%d, v%d, 2, 2" % (vr_, vLane))
    A("v_and_b32 v%d, 3, v%d" % (vc_, vLane))
    A("s_mul_i32 s%d, s%d, %d" % (sLB, sW, LWS))
    A("v_add_u32 v%d, s%d, v%d" % (vLW, sLB, vV))
    A("v_lshrrev_b32 v%d, 3, v%d" % (T[6], vLane))
    A("v_and_b32 v%d, 7, v%d" % (T[7], vLane))
    A("v_lshlrev_b32 v%d, 4, v%d" % (T[7], T[7]))
    mk_srd(rB, pWO, 4 << 20)
    A("v_lshl_add_u32 v%d, v%d, 10, v%d" % (T[8], T[6], T[7]))
    A("s_and_b32 s%d, s%d, 24" % (sTmp, sH))
    A("s_add_u32 s%d, s%d, s%d" % (sTmp, sTmp, sW))
    A("s_lshl_b32 s%d, s%d, 17" % (sTmp, sTmp))
    A("s_and_b32 s%d, s%d, 7" % (sTmp2, sH))
    A("s_lshl_b32 s%d, s%d, 7" % (sTmp2, sTmp2))
    A("s_add_u32 s%d, s%d, s%d" % (sTmp, sTmp, sTmp2))
    for k in range(16):
        A("buffer_load_dwordx4 %s, v%d, %s, s%d offen %s" % (vr(vW + 4 * k, 4), T[8], srd(rB), sTmp, WNT))
        if k < 15:
            A("s_add_u32 s%d, s%d, 0x2000" % (sTmp, sTmp))
    A("v_lshlrev_b32 v%d, 1, v%d" % (vTR, vG))
    A("v_lshl_add_u32 v%d, v%d, 3, v%d" % (vTR, vr_, vTR))
    A("v_lshlrev_b32 v%d, 7, v%d" % (vTR, vTR))
    A("v_lshl_add_u32 v%d, v%d, 3, v%d" % (vTR, vc_, vTR))
    A("v_add_u32 v%d, s%d, v%d" % (vTR, sLB, vTR))

    def w_transpose(younger):
        for half in range(2):
            A("s_waitcnt vmcnt(%d)" % (younger + (8 if half == 0 else 0)))
            for k in range(8):
                A("ds_write_b128 v%d, %s offset:%d" % (vLW, vr(vW + 32 * half + 4 * k, 4), LW + 1024 * k))
            A("s_waitcnt lgkmcnt(0)")
            for jj in range(2):
                for c in range(4):
                    d = vW + 32 * half + 16 * jj + 4 * c
                    A("ds_read_b64_tr_b16 %s, v%d offset:%d" % (vr(d, 2), vTR, LW + 4096 * jj + 32 * c))
                    A("ds_read_b64_tr_b16 %s, v%d offset:%d" % (vr(d + 2, 2), vTR, LW + 4096 * jj + 32 * c + 128))
            A("s_waitcnt lgkmcnt(0)")

    A("s_cmp_eq_u32 s%d, 3" % sRole)
    A("s_cbranch_scc1 %s" % lb2)
    mk_srd(rB, pW1, 512 * 2752)
    A("v_mul_u32_u24 v%d, 43, v%d" % (T[6], vLane))
    A("v_lshrrev_b32 v%d, 9, v%d" % (T[6], T[6]))
    A("v_mul_u32_u24 v%d, 12, v%d" % (T[7], T[6]))
    A("v_sub_u32 v%d, v%d, v%d" % (T[7], vLane, T[7]))
    A("v_mul_u32_u24 v%d, 2752, v%d" % (T[8], T[6]))
    A("v_lshl_add_u32 v%d, v%d, 4, v%d" % (T[8], T[7], T[8]))
    A("s_mul_i32 s%d, s%d, %d" % (sTmp, sW, 64 * 2752))
    A("s_mul_i32 s%d, s%d, 176" % (sTmp2, sRA))
    A("s_add_u32 s%d, s%d, s%d" % (sTmp, sTmp, sTmp2))
    stg = W2 + [P + 28]
    for k in range(13):
        A("buffer_load_dwordx4 %s, v%d, %s, s%d offen %s" % (vr(stg[k], 4), T[8], srd(rB), sTmp, WNT))
        if k < 12:
            A("s_add_u32 s%d, s%d, %d" % (sTmp, sTmp, 5 * 2752))
    A("v_and_b32 v%d, 1, v%d" % (T[9], vI))
    A("v_lshlrev_b32 v%d, 10, v%d" % (T[9], T[9]))
    A("v_bfe_u32 v%d, v%d, 1, 1" % (T[10], vI))
    A("v_lshl_add_u32 v%d, v%d, 4, v%d" % (T[10], T[10], T[9]))
    A("v_lshl_add_u32 v%d, v%d, 2, v%d" % (T[10], vG, T[10]))
    A("s_lshl_b32 s%d, s%d, 7" % (sTmp, sW))
    for r in range(4):
        A("buffer_load_dword v%d, v%d, %s, s%d offen offset:%d" % (vXR + r, T[10], srd(rA), sTmp, 32 * r))
    mk_srd(rB, pB1, 2752)
    A("v_lshrrev_b32 v%d, 1, v%d" % (T[10], vG))
    A("v_lshlrev_b32 v%d, 1, v%d" % (T[9], vI))
    A("v_lshl_add_u32 v%d, v%d, 5, v%d" % (T[9], T[10], T[9]))
    A("s_lshl_b32 s%d, s%d, 6" % (sTmp, sW))
    A("s_add_u32 s%d, s%d, s%d" % (sTmp, sTmp, sTmp2))
    A("buffer_load_ushort v%d, v%d, %s, s%d offen" % (vBias, T[9], srd(rB), sTmp))
    w_transpose(18)
    A("v_lshlrev_b32 v%d, 1, v%d" % (vTR, vG))
    A("v_lshl_add_u32 v%d, v%d, 4, v%d" % (vTR, vr_, vTR))
    A("v_mul_u32_u24 v%d, 192, v%d" % (vTR, vTR))
    A("v_lshl_add_u32 v%d, v%d, 3, v%d" % (vTR, vc_, vTR))
    A("v_add_u32 v%d, s%d, v%d" % (vTR, sLB, vTR))
    A("s_waitcnt vmcnt(0)")
    for k in range(13):
        A("ds_write_b128 v%d, %s offset:%d" % (vLW, vr(stg[k], 4), LW + 960 * k))
    A("s_waitcnt lgkmcnt(0)")
    for jj in range(2):
        for c in range(6):
            d = W2[6 * jj + c]
            A("ds_read_b64_tr_b16 %s, v%d offset:%d" % (vr(d, 2), vTR, LW + 1536 * jj + 32 * c))
            A("ds_read_b64_tr_b16 %s, v%d offset:%d" % (vr(d + 2, 2), vTR, LW + 1536 * jj + 32 * c + 192))
    for r in range(4):
        A("v_lshlrev_b32 v%d, 16, v%d" % (XF + r, vXR + r))
        A("v_and_b32 v%d, 0xffff0000, v%d" % (XF + 4 + r, vXR + r))
    A("v_lshlrev_b32 v%d, 16, v%d" % (vBias, vBias))
    for d in range(4):
        A("v_mov_b32 v%d, 0x3f803f80" % (vBa + d))
    A("s_waitcnt lgkmcnt(0)")
    for c in range(6):
        mfma(P + 4 * c, vBa, W2[c], None)
    for c in range(6):
        mfma(P + 4 * c, vBa, W2[6 + c], P + 4 * c)
    A("s_lshl_b32 s%d, s%d, 2" % (sTmp, sW))
    A("v_lshlrev_b32 v%d, 5, v%d" % (T[2], vI))
    A("v_add_u32 v%d, s%d, v%d" % (T[2], sTmp, T[2]))
    g.nop(8)
    for c in range(6):
        A("ds_write_b32 v%d, v%d offset:%d" % (T[2], P + 4 * c, LCS + 512 * c))
    A("s_waitcnt lgkmcnt(0)")
    A("s_branch %s" % lbd)
    g.lab(lb2)
    mk_srd(rB, pW2, 1376 * 1024)
    A("v_lshrrev_b32 v%d, 2, v%d" % (T[8], vLane))
    A("v_lshlrev_b32 v%d, 10, v%d" % (T[8], T[8]))
    A("v_lshl_add_u32 v%d, v%d, 4, v%d" % (T[8], vc_, T[8]))
    A("s_lshl_b32 s%d, s%d, 15" % (sTmp, sW))
    A("s_lshl_b32 s%d, s%d, 6" % (sTmp2, sRA))
    A("s_add_u32 s%d, s%d, s%d" % (sTmp, sTmp, sTmp2))
    for k in range(6):
        A("buffer_load_dwordx4 %s, v%d, %s, s%d offen %s" % (vr(W2[2 * k], 4), T[8], srd(rB), sTmp, WNT))
        A("s_add_u32 s%d, s%d, 0x4000" % (sTmp, sTmp))
        A("buffer_load_dwordx4 %s, v%d, %s, s%d offen %s" % (vr(W2[2 * k + 1], 4), T[8], srd(rB), sTmp, WNT))
        if k < 5:
            A("s_add_u32 s%d, s%d, 0x3c000" % (sTmp, sTmp))
    A("v_lshrrev_b32 v%d, 1, v%d" % (T[10], vG))
    A("v_lshlrev_b32 v%d, 1, v%d" % (T[9], vI))
    A("v_lshl_add_u32 v%d, v%d, 5, v%d" % (T[9], T[10], T[9]))
    A("v_and_b32 v%d, 1, v%d" % (T[10], vG))
    A("v_lshl_add_u32 v%d, v%d, 10, v%d" % (T[10], T[10], T[9]))
    A("buffer_load_ushort v%d, v%d, %s, s%d offen" % (vXs, T[10], srd(rA), sTmp2))
    mk_srd(rB, pB2, 1024)
    A("buffer_load_ushort v%d, v%d, %s, s%d offen" % (vBias, T[9], srd(rB), sTmp2))
    w_transpose(14)
    A("v_lshl_add_u32 v%d, v%d, 3, v%d" % (vTR, vG, vr_))
    A("v_lshlrev_b32 v%d, 6, v%d" % (vTR, vTR))
    A("v_lshl_add_u32 v%d, v%d, 3, v%d" % (vTR, vc_, vTR))
    A("v_add_u32 v%d, s%d, v%d" % (vTR, sLB, vTR))
    A("s_waitcnt vmcnt(0)")
    for k in range(12):
        A("ds_write_b128 v%d, %s offset:%d" % (vLW, vr(W2[k], 4), LW + 1024 * k))
    A("s_waitcnt lgkmcnt(0)")
    for k in range(6):
        for c in range(2):
            d = W2[2 * k + c]
            A("ds_read_b64_tr_b16 %s, v%d offset:%d" % (vr(d, 2), vTR, LW + 2048 * k + 32 * c))
            A("ds_read_b64_tr_b16 %s, v%d offset:%d" % (vr(d + 2, 2), vTR, LW + 2048 * k + 32 * c + 256))
    A("v_lshlrev_b32 v%d, 16, v%d" % (vXs, vXs))
    A("v_lshlrev_b32 v%d, 16, v%d" % (vBias, vBias))
    A("s_waitcnt lgkmcnt(0)")
    g.lab(lbd)
    A("s_setprio 0")
    A("s_setpc_b64 s[%d:%d]" % (sRet, sRet + 1))
    g.lab("L_codeend")

    tail = ['.section .rodata,"a"', ".p2align 6", ".amdhsa_kernel %s_kernel" % NAME,
            "  .amdhsa_next_free_vgpr 256", "  .amdhsa_next_free_sgpr 102", "  .amdhsa_accum_offset 256",
            "  .amdhsa_group_segment_fixed_size 0", "  .amdhsa_kernarg_size 104", "  .amdhsa_user_sgpr_count 2",
            "  .amdhsa_user_sgpr_kernarg_segment_ptr 1", "  .amdhsa_system_sgpr_workgroup_id_x 1",
            "  .amdhsa_float_denorm_mode_32 3", ".end_amdhsa_kernel"]
    return "\n".join(hdr + g.L + tail) + "\n"


if __name__ == "__main__":
    out = sys.argv[1]
    opt = {}
    for a in sys.argv[2:]:
        k, _, v = a.partition("=")
        opt[k] = v if v else True
    open(out, "w").write(gen(opt))
```

```python
import sys, struct

NAME = "sequential_preLN__mha_block_cached__dense_activation_gelu__decode"


def f32(x):
    return "0x%08x" % struct.unpack("<I", struct.pack("<f", x))[0]


WS_OP = 0x00000
WS_AP = 0x20000
WS_APL = 0x24000
WS_G = 0x28000
WS_GL = 0x2a000
WS_ST = 0x30000
WS_TK = 0x40000
WS_EP = 0x44000
WS_QF = 0x48000
WS_QP = 0x80000
WS_TS = 0x100000
WS_BYTES = 0x10000000

LR = 0
LR2 = 8192
LQF = 14336
LML = 14848
LCNT = 14976
LST = 15040
LCS = 15360
LC = 18432
LW = 34816
LWS = 13312
LDS_BYTES = LW + 8 * LWS

POLL_LIMIT = 1 << 18
DPPALL = "row_mask:0xf bank_mask:0xf"


class G:
    def __init__(self, opt):
        self.L = []
        self.opt = opt
        self.nlab = 0

    def __call__(self, s):
        self.L.append("    " + s)

    def lab(self, name):
        self.L.append(name + ":")

    def newlab(self, base):
        self.nlab += 1
        return "L_%s_%d" % (base, self.nlab)

    def nop(self, n):
        while n > 0:
            k = min(n, 16)
            self("s_nop %d" % (k - 1))
            n -= k

    def ts(self, idx):
        if self.opt.get("ts"):
            self("s_memrealtime s[76:77]")
            self("s_waitcnt lgkmcnt(0)")
            self("s_mov_b32 s%d, s76" % (80 + idx))


def vr(a, n=1):
    return "v%d" % a if n == 1 else "v[%d:%d]" % (a, a + n - 1)


def gen(opt):
    g = G(opt)
    A = g
    NT = opt.get("nt", "nt")
    WNT = opt.get("wnt", "nt")
    NPF = int(opt.get("npf", 3))
    PACE = int(opt.get("pace", 2))
    NS = int(opt.get("ns", 35))
    TAP = int(opt.get("tap", 0))
    ROT = int(opt.get('rot', 8))
    NP0 = 7 * NPF + 1
    assert NS >= NP0 and 5 * NS + 24 <= 256
    NA = 256 - 5 * NS - 24
    NL = NA + 256
    vLane, vI, vG = 1, 2, 3
    vKX, vKY, vV, vTkA = 4, 5, 6, 7
    vMask = 8
    vQ0, vQ1, vSel = 12, 16, 16
    vAcc, vM, vL = 20, 24, 25
    T = list(range(26, 48))
    vBa, vBb = 48, 52
    vH = 57
    vXR, vBias, vXs = 58, 62, 63
    P = 64
    PL = 112
    XF = 120
    SB = 128
    vW = SB + 32
    W2 = [SB + 96 + 4 * k for k in range(8)] + [96 + 4 * k for k in range(4)]
    sW, sH, sT, sBA = 3, 4, 5, 6
    sTmp, sTmp2, sPh, sNext, sOff = 7, 8, 9, 10, 11
    sHB, sCnt, sRole, sRA = 12, 13, 14, 15
    pX, pK, pV, pWQ, pWO, pW1, pB1, pW2, pB2, pOUT, pDBG, pWS = 16, 18, 20, 22, 24, 28, 30, 32, 34, 36, 38, 40
    sLB, sQU = 42, 43
    rK, rV, rWS, rA, rB, rDBG = 44, 48, 52, 56, 60, 64
    sScale, sL2E = 68, 69
    sMi1, sRet, sMg1 = 70, 72, 74
    sCB, sSBW, sTag, sPo = 94, 95, 96, 97
    sTkA = 98
    sDry, sOS = 100, 101
    DRY = bool(opt.get('dry'))

    def srd(r):
        return "s[%d:%d]" % (r, r + 3)

    def mk_srd(r, p, nbytes):
        A("s_mov_b32 s%d, s%d" % (r, p))
        A("s_and_b32 s%d, s%d, 0xffff" % (r + 1, p + 1))
        A("s_mov_b32 s%d, 0x%x" % (r + 2, nbytes))
        A("s_mov_b32 s%d, 0x20000" % (r + 3))

    def exec_set(lo, hi=0):
        A("s_mov_b32 exec_lo, 0x%x" % lo)
        A("s_mov_b32 exec_hi, 0x%x" % hi)

    def exec_all():
        A("s_mov_b64 exec, -1")

    def bf16_round(dst, src):
        A("v_cvt_pk_bf16_f32 v%d, v%d, v%d" % (dst, src, src))
        A("v_and_b32 v%d, 0xffff0000, v%d" % (dst, dst))

    def dpp(op, dst, src0, src1, ctrl, bank="0xf"):
        A("%s_dpp v%d, v%d, v%d %s row_mask:0xf bank_mask:%s" % (op, dst, src0, src1, ctrl, bank))

    def multi_xrow(kind, op, xs, ts):
        ins = "v_permlane16_swap_b32" if kind == 16 else "v_permlane32_swap_b32"
        for x, t in zip(xs, ts):
            A("v_mov_b32 v%d, v%d" % (t, x))
        g.nop(2 if len(xs) < 3 else 1)
        for x, t in zip(xs, ts):
            A("%s v%d, v%d" % (ins, x, t))
        g.nop(1)
        for x, t in zip(xs, ts):
            A("%s v%d, v%d, v%d" % (op, x, x, t))

    def xrow16(op, x, t):
        multi_xrow(16, op, [x], [t])

    def xrow32(op, x, t):
        multi_xrow(32, op, [x], [t])

    def mfma(d, a, b, c):
        A("v_mfma_f32_16x16x32_bf16 %s, %s, %s, %s" % (vr(d, 4), vr(a, 4), vr(b, 4), "0" if c is None else vr(c, 4)))

    def issue_K(kb, soff):
        A("buffer_load_dwordx4 %s, v%d, %s, s%d offen %s" % (vr(kb, 4), vKX, srd(rK), soff, NT))
        A("buffer_load_dwordx4 %s, v%d, %s, s%d offen offset:1024 %s" % (vr(kb + 4, 4), vKX, srd(rK), soff, NT))
        A("buffer_load_dwordx4 %s, v%d, %s, s%d offen %s" % (vr(kb + 8, 4), vKY, srd(rK), soff, NT))
        A("buffer_load_dwordx4 %s, v%d, %s, s%d offen offset:1024 %s" % (vr(kb + 12, 4), vKY, srd(rK), soff, NT))

    def issue_V(vb, soff):
        for j in range(4):
            A("buffer_load_dwordx4 %s, v%d, %s, s%d offen offset:%d %s" % (vr(vb + 4 * j, 4), vV, srd(rV), soff, 1024 * j, NT))

    def ln_scalars(vmean, vvar):
        bf16_round(vmean, vmean)
        bf16_round(vvar, vvar)
        A("v_add_f32 v%d, %s, v%d" % (vvar, f32(1e-5), vvar))
        bf16_round(vvar, vvar)
        A("v_sqrt_f32 v%d, v%d" % (vvar, vvar))
        g.nop(1)
        bf16_round(vvar, vvar)

    def div_refined(q, a, b, rb, t):
        A("v_mul_f32 v%d, v%d, v%d" % (q, a, rb))
        A("v_fma_f32 v%d, -v%d, v%d, v%d" % (t, q, b, a))
        A("v_fmac_f32 v%d, v%d, v%d" % (q, t, rb))

    def sentinel_check(regs, t, lab_ok):
        regs = list(regs)
        cur = None
        while regs:
            if cur is None:
                A("v_max3_u32 v%d, v%d, v%d, v%d" % (t, regs[0], regs[1], regs[2]))
                regs = regs[3:]
                cur = t
            elif len(regs) >= 2:
                A("v_max3_u32 v%d, v%d, v%d, v%d" % (t, t, regs[0], regs[1]))
                regs = regs[2:]
            else:
                A("v_max_u32 v%d, v%d, v%d" % (t, t, regs[0]))
                regs = []
        A("v_cmp_eq_u32 vcc, -1, v%d" % t)
        A("s_cbranch_vccz %s" % lab_ok)

    def poll(loads, regs, t, name, toggle=None):
        lp, lok = g.newlab(name + "p"), g.newlab(name + "ok")
        if toggle:
            A("s_mov_b32 s%d, s%d" % (sLB, toggle[0]))
        g.lab(lp)
        loads()
        if toggle:
            A("s_and_b32 s%d, s%d, %d" % (sNext, sCnt, int(opt.get("lr", 7))))
            A("s_cselect_b32 s%d, 0, 0x%x" % (sNext, toggle[1]))
            A("s_xor_b32 s%d, s%d, s%d" % (toggle[0], sLB, sNext))
        A("s_waitcnt vmcnt(0)")
        sentinel_check(regs, t, lok)
        A("s_mov_b64 exec, vcc")
        A("s_sub_u32 s%d, s%d, 1" % (sCnt, sCnt))
        A("s_cmp_gt_i32 s%d, 0" % sCnt)
        A("s_cbranch_scc1 %s" % lp)
        g.lab(lok)
        exec_all()

    def tail_barrier():
        if DRY:
            lb_ = g.newlab("nb")
            A("s_cmp_eq_u32 s%d, 1" % sDry)
            A("s_cbranch_scc1 %s" % lb_)
            A("s_barrier")
            g.lab(lb_)
        else:
            A("s_barrier")

    hdr = ["; generated by work/gen14.py - fused preLN + cached MHA decode + GELU FFN, one persistent launch",
           "; @launch grid=(256,1,1) block=(512,1,1) lds=%d" % LDS_BYTES,
           '.amdgcn_target "amdgcn-amd-amdhsa--gfx950"', ".text", ".globl %s_kernel" % NAME, ".p2align 8",
           ".type %s_kernel,@function" % NAME, "%s_kernel:" % NAME]

    vFl, vFA = T[20], T[21]
    A("s_cmp_ge_u32 s2, 256")
    A("s_cbranch_scc1 L_end")
    A("s_load_dwordx16 s[16:31], s[0:1], 0")
    A("s_load_dwordx8 s[32:39], s[0:1], 64")
    A("s_load_dwordx2 s[40:41], s[0:1], 96")
    if opt.get("ts"):
        A("s_memrealtime s[78:79]")
    A("v_and_b32 v%d, 63, v0" % vLane)
    A("v_lshrrev_b32 v%d, 6, v0" % T[0])
    A("v_lshlrev_b32 v%d, 4, v%d" % (vV, vLane))
    A("v_readfirstlane_b32 s%d, v%d" % (sW, T[0]))
    for k in range(4):
        A("v_mov_b32 v%d, 0" % (T[6] + k))
    A("ds_write_b128 v%d, %s offset:%d" % (T[6], vr(T[6], 4), LCNT))
    if not opt.get("nopf"):
        lpf = g.newlab("nopf")
        A("s_cmp_lt_u32 s%d, 4" % sW)
        A("s_cbranch_scc1 %s" % lpf)
        A("s_getpc_b64 s[%d:%d]" % (rB, rB + 1))
        g.lab("L_pcref")
        A("s_sub_u32 s%d, s%d, L_pcref-%s_kernel" % (rB, rB, NAME))
        A("s_subb_u32 s%d, s%d, 0" % (rB + 1, rB + 1))
        A("s_and_b32 s%d, s%d, 0xffff" % (rB + 1, rB + 1))
        A("s_mov_b32 s%d, L_codeend-%s_kernel" % (rB + 2, NAME))
        A("s_mov_b32 s%d, 0x20000" % (rB + 3))
        A("s_sub_u32 s%d, s%d, 4" % (sTmp, sW))
        A("s_lshl_b32 s%d, s%d, 12" % (sTmp, sTmp))
        for k in range(4):
            A("buffer_load_dwordx4 %s, v%d, %s, s%d offen offset:%d" % (vr(P + 4 * k, 4), vV, srd(rB), sTmp, 1024 * k))
        g.lab(lpf)
    A("v_and_b32 v%d, 8, v0" % T[1])
    A("v_lshlrev_b32 v%d, 8, v%d" % (T[1], T[1]))
    A("v_add_u32 v%d, v%d, v%d" % (vKX, vV, T[1]))
    A("v_sub_u32 v%d, v%d, v%d" % (vKY, vV, T[1]))
    A("v_add_u32 v%d, 0x800, v%d" % (vKY, vKY))
    A("v_and_b32 v%d, 15, v0" % vI)
    A("v_bfe_u32 v%d, v0, 4, 2" % vG)
    A("s_lshr_b32 s%d, s2, 3" % sH)
    A("s_and_b32 s%d, s2, 7" % sT)
    sLt = sOS
    A("s_cmp_lt_u32 s%d, 5" % sT)
    A("s_cselect_b32 s%d, 1, 0" % sLt)
    A("s_andn2_b32 s%d, s%d, s%d" % (sLt, sLt, sT))
    A("s_sub_u32 s%d, s%d, 1" % (sSBW, sT))
    A("s_cmp_gt_u32 s%d, 2" % sT)
    A("s_subb_u32 s%d, s%d, 0" % (sSBW, sSBW))
    A("s_cmp_gt_u32 s%d, 4" % sT)
    A("s_subb_u32 s%d, s%d, 0" % (sSBW, sSBW))
    A("s_mul_i32 s%d, s%d, %d" % (sSBW, sSBW, NS))
    A("s_lshl_b32 s%d, s%d, 2" % (sTmp2, sT))
    A("s_add_u32 s%d, s%d, %d" % (sTmp2, sTmp2, 5 * NS + 1))
    A("s_cmp_eq_u32 s%d, 1" % sLt)
    A("s_cselect_b32 s%d, s%d, s%d" % (sSBW, sTmp2, sSBW))
    A("s_cselect_b32 s%d, -1, %d" % (sQU, 7 * NPF))
    sH0 = sDry
    A("s_mul_i32 s%d, s%d, %d" % (sTmp, sH, ROT))
    A("s_add_u32 s%d, s%d, s%d" % (sSBW, sSBW, sTmp))
    A("s_add_u32 s%d, s%d, s%d" % (sQU, sQU, sSBW))
    A("s_lshl_b32 s%d, s%d, 20" % (sH0, sH))
    if opt.get("bswap"):
        A("s_and_b32 s%d, s%d, 1" % (sTmp, sH))
        A("s_lshl_b32 s%d, s%d, 25" % (sTmp, sTmp))
        A("s_add_u32 s%d, s%d, s%d" % (sH0, sH0, sTmp))
    A("s_lshl_b32 s%d, s%d, 12" % (sSBW, sSBW))
    A("s_lshl_b32 s%d, s%d, 12" % (sQU, sQU))
    A("s_and_b32 s%d, s%d, 0xfffff" % (sQU, sQU))
    A("s_add_u32 s%d, s%d, s%d" % (sQU, sQU, sH0))
    A("v_cmp_eq_u32 vcc, 0, v%d" % vLane)
    A("v_mov_b32 v%d, 0x%x" % (T[5], WS_BYTES))
    A("s_sub_u32 s%d, s%d, 1" % (sTmp, sW))
    A("s_lshl_b32 s%d, s%d, 12" % (sTmp, sTmp))
    A("s_add_u32 s%d, s%d, s%d" % (sNext, sSBW, sTmp))
    A("s_and_b32 s%d, s%d, 0xfffff" % (sOff, sNext))
    A("s_add_u32 s%d, s%d, s%d" % (sOff, sOff, sH0))
    A("v_cndmask_b32 v%d, v%d, 0, vcc" % (vTkA, T[5]))
    A("s_waitcnt lgkmcnt(0)")
    mk_srd(rK, pK, 64 << 20)
    mk_srd(rV, pV, 64 << 20)
    mk_srd(rWS, pWS, WS_BYTES)
    mk_srd(rDBG, pDBG, 256)
    lQ, lsetup, lq2, lwaitq = g.newlab("qpath"), g.newlab("setup"), g.newlab("q2"), g.newlab("waitq")
    A("s_cmp_eq_u32 s%d, 0" % sW)
    A("s_cbranch_scc1 %s" % lQ)
    lsk, lpre = g.newlab("skipclr"), g.newlab("pre")
    A("s_cmp_lg_u32 s%d, 4" % sT)
    A("s_cbranch_scc1 %s" % lsk)
    A("s_cmp_lg_u32 s%d, 1" % sW)
    A("s_cbranch_scc1 %s" % lsk)
    CV = T[8]
    for k in range(4):
        A("v_mov_b32 v%d, -1" % (CV + k))
    A("v_mov_b32 v%d, 0" % T[12])
    A("v_mov_b32 v%d, 1" % T[13])
    A("s_mul_i32 s%d, s%d, 6144" % (sTmp, sH))
    A("s_add_u32 s%d, s%d, 4096" % (sTmp2, sTmp))
    for k in range(6):
        A("buffer_store_dwordx4 %s, v%d, %s, s%d offen offset:%d sc1" % (vr(CV, 4), vV, srd(rWS), sTmp if k < 4 else sTmp2, 1024 * (k & 3)))
    A("s_lshl_b32 s%d, s%d, 11" % (sTmp, sH))
    A("s_add_u32 s%d, s%d, 0x%x" % (sTmp, sTmp, WS_ST))
    A("v_lshlrev_b32 v%d, 7, v%d" % (T[14], vLane))
    exec_set(0xffff)
    A("buffer_store_dwordx2 %s, v%d, %s, s%d offen sc1" % (vr(CV, 2), T[14], srd(rWS), sTmp))
    exec_all()
    A("s_lshl_b32 s%d, s%d, 8" % (sTmp, sH))
    A("s_add_u32 s%d, s%d, 0x%x" % (sTmp, sTmp, WS_TK))
    A("buffer_store_dword v%d, v%d, %s, s%d offen sc1" % (T[12], vTkA, srd(rWS), sTmp))
    A("s_lshl_b32 s%d, s%d, 2" % (sTmp, sH))
    A("s_barrier")
    A("s_waitcnt vmcnt(0)")
    A("buffer_store_dword v%d, v%d, %s, s%d offen sc1" % (T[13], vTkA, srd(rDBG), sTmp))
    A("s_branch %s" % lpre)
    g.lab(lsk)
    A("s_barrier")
    g.lab(lpre)
    A("s_cmp_eq_u32 s%d, 1" % sLt)
    A("s_cbranch_scc1 %s" % lsetup)
    B0N = int(opt.get("b0n", 1))
    n_ = 0
    for k in range(NPF):
        bb = SB + 32 * k
        for kind in ("K", "V"):
            if n_ == B0N:
                A("s_barrier")
            elif n_ > B0N:
                A("s_waitcnt vmcnt(%d)" % PACE)
            if kind == "K":
                issue_K(bb, sOff)
            else:
                issue_V(bb + 16, sOff)
            n_ += 1
        if k < NPF - 1:
            A("s_add_u32 s%d, s%d, 0x7000" % (sNext, sNext))
            A("s_and_b32 s%d, s%d, 0xfffff" % (sOff, sNext))
            A("s_add_u32 s%d, s%d, s%d" % (sOff, sOff, sH0))
    A("s_branch %s" % lsetup)

    g.lab(lQ)
    A("s_setprio 3")
    A("s_load_dword s%d, s[%d:%d], 0x%x" % (sTag, pWS, pWS + 1, WS_EP))
    mk_srd(rA, pX, 2048)
    mk_srd(rB, pWQ, 4 << 20)
    vWQ = 64
    vXA, vXE = SB + 96, SB + 104
    F = [SB + 108 + k for k in range(16)]
    vAx, vAxe, vAwq = T[2], T[3], T[4]
    A("v_lshlrev_b32 v%d, 5, v%d" % (vAx, vLane))
    A("buffer_load_dwordx4 %s, v%d, %s, 0 offen" % (vr(vXA, 4), vAx, srd(rA)))
    A("buffer_load_dwordx4 %s, v%d, %s, 0 offen offset:16" % (vr(vXA + 4, 4), vAx, srd(rA)))
    A("v_lshl_add_u32 v%d, v%d, 2, v%d" % (vAxe, vI, vG))
    A("v_lshlrev_b32 v%d, 1, v%d" % (vAxe, vAxe))
    A("s_lshl_b32 s%d, s%d, 7" % (sTmp, sT))
    A("buffer_load_ushort v%d, v%d, %s, s%d offen" % (vXE, vAxe, srd(rA), sTmp))
    A("buffer_load_ushort v%d, v%d, %s, s%d offen offset:1024" % (vXE + 1, vAxe, srd(rA), sTmp))
    A("v_lshlrev_b32 v%d, 13, v%d" % (vAwq, vG))
    A("v_lshl_add_u32 v%d, v%d, 4, v%d" % (vAwq, vI, vAwq))
    A("s_lshl_b32 s%d, s%d, 19" % (sTmp, sT))
    A("s_lshl_b32 s%d, s%d, 8" % (sTmp2, sH))
    A("s_add_u32 s%d, s%d, s%d" % (sTmp, sTmp, sTmp2))
    for j in range(16):
        A("buffer_load_dwordx4 %s, v%d, %s, s%d offen %s" % (vr(vWQ + 4 * j, 4), vAwq, srd(rB), sTmp, WNT))
        if j < 15:
            A("s_add_u32 s%d, s%d, 0x8000" % (sTmp, sTmp))
    if opt.get("late"):
        A("s_waitcnt vmcnt(%d)" % int(opt.get("late")))
    A("s_barrier")

    g.lab(lsetup)
    if opt.get("ts"):
        A("s_mov_b32 s80, s78")
        for k in range(81, 94):
            A("s_mov_b32 s%d, 0" % k)
    mk_srd(rA, pX, 2048)
    A("s_lshl_b32 s%d, s%d, 8" % (sTmp, sH))
    A("s_add_u32 s%d, s%d, 0x%x" % (sTmp, sTmp, WS_TK))
    A("s_add_u32 s%d, s%d, s%d" % (sTkA, pWS, sTmp))
    A("s_addc_u32 s%d, s%d, 0" % (sTkA + 1, pWS + 1))
    A("s_mul_i32 s%d, s%d, %d" % (sBA, sH, ROT))
    A("s_add_u32 s%d, s%d, %d" % (sBA, sBA, 256 - NA))
    A("s_xor_b32 s%d, s%d, 0x2000000" % (sHB, sH0))
    A("s_mov_b32 s%d, %s" % (sScale, f32(128 ** -0.5)))
    A("s_mov_b32 s%d, %s" % (sL2E, f32(1.4426950408889634)))
    A("s_mov_b32 s%d, %d" % (sCnt, POLL_LIMIT))
    A("s_and_b32 s%d, s%d, 15" % (sRA, sH))
    A("s_cmp_lt_u32 s%d, 16" % sH)
    A("s_cselect_b32 s%d, 2, 3" % sRole)
    A("s_cmp_eq_u32 s%d, 2" % sT)
    A("s_cselect_b32 s%d, s%d, 0" % (sRole, sRole))
    A("s_cmp_eq_u32 s%d, 0" % sT)
    A("s_cselect_b32 s%d, 1, s%d" % (sRole, sRole))
    A("v_and_b32 v%d, 1, v%d" % (T[2], vG))
    A("v_cmp_eq_u32 s[%d:%d], 1, v%d" % (sMg1, sMg1 + 1, T[2]))
    A("v_and_b32 v%d, 1, v0" % T[3])
    A("v_cmp_eq_u32 s[%d:%d], 1, v%d" % (sMi1, sMi1 + 1, T[3]))
    A("v_lshlrev_b32 v%d, 4, v%d" % (T[3], T[3]))
    A("v_mov_b32 v%d, 0xffff" % T[4])
    A("v_lshlrev_b32 v%d, v%d, v%d" % (T[4], T[3], T[4]))
    A("v_bfe_u32 v%d, v0, 1, 2" % T[5])
    for d in range(4):
        A("v_cmp_eq_u32 vcc, %d, v%d" % (d, T[5]))
        g.nop(2)
        A("v_cndmask_b32 v%d, 0, v%d, vcc" % (vMask + d, T[4]))
    A("s_cmp_eq_u32 s%d, 0" % sW)
    A("s_cbranch_scc1 %s" % lq2)
    A("s_cmp_eq_u32 s%d, 0" % sLt)
    A("s_cbranch_scc1 %s" % lwaitq)
    A("s_barrier")
    issue_K(SB, sOff)
    issue_V(SB + 16, sOff)
    A("s_cmp_eq_u32 s%d, 0" % sRole)
    A("s_cbranch_scc1 %s" % lwaitq)
    A("s_call_b64 s[%d:%d], L_prep" % (sRet, sRet + 1))
    A("s_branch %s" % lwaitq)

    g.lab(lq2)
    A("v_and_b32 v%d, 31, v%d" % (vFA, vLane))
    A("v_lshlrev_b32 v%d, 2, v%d" % (vFA, vFA))
    A("v_lshrrev_b32 v%d, 3, v%d" % (T[6], vI))
    A("v_mul_u32_u24 v%d, 0x0202, v%d" % (T[6], T[6]))
    A("v_add_u32 v%d, 0x0100, v%d" % (T[6], T[6]))
    A("v_lshl_or_b32 v%d, v%d, 16, v%d" % (T[6], T[6], T[6]))
    A("v_mov_b32 v%d, 0x0c0c0c0c" % T[7])
    for d in range(4):
        A("v_bfi_b32 v%d, v%d, v%d, v%d" % (vSel + d, vMask + d, T[6], T[7]))
    A("s_waitcnt vmcnt(18)")
    for k in range(8):
        A("v_lshlrev_b32 v%d, 16, v%d" % (F[2 * k], vXA + k))
        A("v_and_b32 v%d, 0xffff0000, v%d" % (F[2 * k + 1], vXA + k))
    S = T[0:8]
    for k in range(8):
        A("v_add_f32 v%d, v%d, v%d" % (S[k], F[2 * k], F[2 * k + 1]))
    for st in (4, 2, 1):
        for k in range(st):
            A("v_add_f32 v%d, v%d, v%d" % (S[k], S[k], S[k + st]))

    def reduce32_add(x, t):
        for ctrl in ("quad_perm:[1,0,3,2]", "quad_perm:[2,3,0,1]", "row_half_mirror", "row_mirror"):
            g.nop(2)
            dpp("v_add_f32", x, x, x, ctrl)
        xrow16("v_add_f32", x, t)

    vMean, vVar = T[8], T[9]
    reduce32_add(S[0], T[10])
    A("v_mul_f32 v%d, %s, v%d" % (vMean, f32(1.0 / 512), S[0]))
    for k in range(16):
        A("v_sub_f32 v%d, v%d, v%d" % (F[k], F[k], vMean))
    for k in range(4):
        A("v_mul_f32 v%d, v%d, v%d" % (S[k], F[k], F[k]))
    for k in range(4, 16):
        A("v_fmac_f32 v%d, v%d, v%d" % (S[k & 3], F[k], F[k]))
    A("v_add_f32 v%d, v%d, v%d" % (S[0], S[0], S[1]))
    A("v_add_f32 v%d, v%d, v%d" % (S[2], S[2], S[3]))
    A("v_add_f32 v%d, v%d, v%d" % (S[0], S[0], S[2]))
    reduce32_add(S[0], T[10])
    A("v_mul_f32 v%d, %s, v%d" % (vVar, f32(1.0 / 512), S[0]))
    ln_scalars(vMean, vVar)
    A("v_mov_b32 v%d, v%d" % (T[10], vMean))
    A("v_mov_b32 v%d, v%d" % (T[11], vVar))
    g.nop(2)
    A("v_permlane32_swap_b32 v%d, v%d" % (vMean, T[10]))
    A("v_permlane32_swap_b32 v%d, v%d" % (vVar, T[11]))
    g.nop(1)
    A("v_rcp_f32 v%d, v%d" % (T[12], vVar))
    A("v_rcp_f32 v%d, v%d" % (T[13], T[11]))
    A("s_waitcnt vmcnt(16)")
    xn = [T[14], T[15]]
    vXN = T[18]
    for b in range(2):
        mm_, ss_, rr_ = (vMean, vVar, T[12]) if b == 0 else (T[10], T[11], T[13])
        A("v_lshlrev_b32 v%d, 16, v%d" % (T[16], vXE + b))
        A("v_sub_f32 v%d, v%d, v%d" % (T[16], T[16], mm_))
        bf16_round(T[16], T[16])
        div_refined(xn[b], T[16], ss_, rr_, T[17])
    A("v_cvt_pk_bf16_f32 v%d, v%d, v%d" % (vXN, xn[0], xn[1]))
    A("s_waitcnt lgkmcnt(0)")
    A("s_add_u32 s%d, s%d, 1" % (sTag, sTag))
    for j in range(16):
        B = vBa if j % 2 == 0 else vBb
        A("v_mov_b32_dpp v%d, v%d row_newbcast:%d %s" % (T[0], vXN, j, DPPALL))
        for d in range(4):
            A("v_perm_b32 v%d, v%d, v%d, v%d" % (B + d, T[0], T[0], vSel + d))
        A("s_waitcnt vmcnt(%d)" % (15 - j))
        g.nop(1)
        mfma(vAcc, vWQ + 4 * j, B, None if j == 0 else vAcc)
    A("v_lshrrev_b32 v%d, 3, v%d" % (T[4], vI))
    A("v_lshlrev_b32 v%d, 8, v%d" % (T[4], T[4]))
    A("v_lshl_add_u32 v%d, v%d, 6, v%d" % (T[4], vG, T[4]))
    A("v_and_b32 v%d, 7, v%d" % (T[5], vI))
    A("v_lshl_add_u32 v%d, v%d, 1, v%d" % (T[4], T[5], T[4]))
    A("s_lshl_b32 s%d, s2, 11" % sTmp)
    A("s_add_u32 s%d, s%d, 0x%x" % (sTmp, sTmp, WS_QP))
    A("s_lshl_b32 s%d, s%d, 14" % (sTmp2, sH))
    A("s_add_u32 s%d, s%d, 0x%x" % (sTmp2, sTmp2, WS_QP))
    QS = T[6]
    for r in range(4):
        A("v_mov_b32 v%d, s%d" % (QS + 2 * r + 1, sTag))
    for r in range(4):
        A("v_mov_b32 v%d, v%d" % (QS + 2 * r, vAcc + r))
    A("buffer_store_dwordx4 %s, v%d, %s, s%d offen sc1" % (vr(QS, 4), vV, srd(rWS), sTmp))
    A("buffer_store_dwordx4 %s, v%d, %s, s%d offen offset:1024 sc1" % (vr(QS + 4, 4), vV, srd(rWS), sTmp))
    g.ts(2)
    lqf, lqdone = g.newlab("qf"), g.newlab("qdone")
    A("v_lshlrev_b32 v%d, 3, v%d" % (T[19], vLane))
    A("s_cmp_lg_u32 s%d, 4" % sT)
    A("s_cbranch_scc1 %s" % lqf)
    lp, lok = g.newlab("qp"), g.newlab("qok")
    sPend = sPh
    QR = 64
    A("s_mov_b32 s%d, 0x1ff" % sPend)
    g.lab(lp)
    for k in range(8):
        lk = g.newlab("qs")
        A("s_bitcmp0_b32 s%d, %d" % (sPend, k))
        A("s_cbranch_scc1 %s" % lk)
        A("s_add_u32 s%d, s%d, %d" % (sOff, sTmp2, 2048 * k))
        A("buffer_load_dwordx4 %s, v%d, %s, s%d offen sc1" % (vr(QR + 8 * k, 4), vV, srd(rWS), sOff))
        A("buffer_load_dwordx4 %s, v%d, %s, s%d offen offset:1024 sc1" % (vr(QR + 8 * k + 4, 4), vV, srd(rWS), sOff))
        g.lab(lk)
    lk = g.newlab("qs")
    A("s_bitcmp0_b32 s%d, 8" % sPend)
    A("s_cbranch_scc1 %s" % lk)
    A("buffer_load_dword v%d, v%d, %s, 0 offen sc1" % (vFl, vFA, srd(rDBG)))
    g.lab(lk)
    A("s_waitcnt vmcnt(0)")
    A("v_cmp_ne_u32 vcc, 1, v%d" % vFl)
    A("s_cmp_lg_u64 vcc, 0")
    A("s_cselect_b32 s%d, 0x100, 0" % sPend)
    for k in range(8):
        q_ = QR + 8 * k
        A("v_xor_b32 v%d, s%d, v%d" % (T[5], sTag, q_ + 1))
        A("v_xor_b32 v%d, s%d, v%d" % (T[16], sTag, q_ + 3))
        A("v_xor_b32 v%d, s%d, v%d" % (T[17], sTag, q_ + 5))
        A("v_xor_b32 v%d, s%d, v%d" % (T[18], sTag, q_ + 7))
        A("v_or3_b32 v%d, v%d, v%d, v%d" % (T[5], T[5], T[16], T[17]))
        A("v_or_b32 v%d, v%d, v%d" % (T[5], T[5], T[18]))
        A("v_cmp_ne_u32 vcc, 0, v%d" % T[5])
        A("s_cmp_lg_u64 vcc, 0")
        A("s_cselect_b32 s%d, %d, 0" % (sNext, 1 << k))
        A("s_or_b32 s%d, s%d, s%d" % (sPend, sPend, sNext))
    A("s_cmp_eq_u32 s%d, 0" % sPend)
    A("s_cbranch_scc1 %s" % lok)
    A("s_sub_u32 s%d, s%d, 1" % (sCnt, sCnt))
    A("s_cmp_gt_i32 s%d, 0" % sCnt)
    A("s_cbranch_scc1 %s" % lp)
    g.lab(lok)
    for st in (4, 2, 1):
        for k in range(st):
            for r in range(4):
                A("v_add_f32 v%d, v%d, v%d" % (QR + 8 * k + 2 * r, QR + 8 * k + 2 * r, QR + 8 * (k + st) + 2 * r))
    A("v_cvt_pk_bf16_f32 v%d, v%d, v%d" % (T[10], QR, QR + 2))
    A("v_cvt_pk_bf16_f32 v%d, v%d, v%d" % (T[11], QR + 4, QR + 6))
    A("v_mov_b32 v%d, 1" % T[2])
    A("v_mov_b32 v%d, 0" % T[3])
    A("ds_write_b16 v%d, v%d offset:%d" % (T[4], T[10], LQF))
    A("ds_write_b16_d16_hi v%d, v%d offset:%d" % (T[4], T[10], LQF + 16))
    A("ds_write_b16 v%d, v%d offset:%d" % (T[4], T[11], LQF + 32))
    A("ds_write_b16_d16_hi v%d, v%d offset:%d" % (T[4], T[11], LQF + 48))
    A("ds_read_b64 %s, v%d offset:%d" % (vr(T[10], 2), T[19], LQF))
    A("s_lshl_b32 s%d, s%d, 10" % (sTmp2, sH))
    A("s_add_u32 s%d, s%d, 0x%x" % (sTmp2, sTmp2, WS_QF))
    A("s_waitcnt lgkmcnt(0)")
    A("v_mov_b32 v%d, v%d" % (QS, T[10]))
    A("v_mov_b32 v%d, v%d" % (QS + 2, T[11]))
    A("buffer_store_dwordx4 %s, v%d, %s, s%d offen sc1" % (vr(QS, 4), vV, srd(rWS), sTmp2))
    A("s_barrier")
    A("s_branch %s" % lqdone)
    g.lab(lqf)
    A("s_barrier")
    A("s_lshl_b32 s%d, s%d, 10" % (sTmp2, sH))
    A("s_add_u32 s%d, s%d, 0x%x" % (sTmp2, sTmp2, WS_QF))
    A("s_add_u32 s%d, s%d, s%d" % (sRet, pWS, sTmp2))
    A("s_addc_u32 s%d, s%d, 0" % (sRet + 1, pWS + 1))
    lpr, lprd = g.newlab("probe"), g.newlab("probed")
    A("s_mov_b32 s%d, 400" % sPend)
    g.lab(lpr)
    A("s_load_dword s%d, s[%d:%d], 0x3fc glc" % (sTmp, sRet, sRet + 1))
    A("s_waitcnt lgkmcnt(0)")
    A("s_cmp_eq_u32 s%d, s%d" % (sTmp, sTag))
    A("s_cbranch_scc1 %s" % lprd)
    A("s_sleep 1")
    A("s_sub_u32 s%d, s%d, 1" % (sPend, sPend))
    A("s_cmp_gt_i32 s%d, 0" % sPend)
    A("s_cbranch_scc1 %s" % lpr)
    g.lab(lprd)
    g.ts(1)
    lf1, lf2 = g.newlab("qfl"), g.newlab("qfok")
    g.lab(lf1)
    A("buffer_load_dwordx4 %s, v%d, %s, s%d offen sc1" % (vr(QS, 4), vV, srd(rWS), sTmp2))
    A("s_waitcnt vmcnt(0)")
    A("v_xor_b32 v%d, s%d, v%d" % (T[16], sTag, QS + 1))
    A("v_xor_b32 v%d, s%d, v%d" % (T[17], sTag, QS + 3))
    A("v_or_b32 v%d, v%d, v%d" % (T[16], T[16], T[17]))
    A("v_cmp_ne_u32 vcc, 0, v%d" % T[16])
    A("s_cbranch_vccz %s" % lf2)
    A("s_sub_u32 s%d, s%d, 1" % (sCnt, sCnt))
    A("s_cmp_gt_i32 s%d, 0" % sCnt)
    A("s_cbranch_scc1 %s" % lf1)
    g.lab(lf2)
    A("v_add_u32 v%d, %d, v%d" % (T[19], LQF, T[19]))
    A("v_mov_b32 v%d, 1" % T[2])
    A("v_mov_b32 v%d, 0" % T[3])
    A("ds_write2_b32 v%d, v%d, v%d offset0:0 offset1:1" % (T[19], QS, QS + 2))
    g.lab(lqdone)
    A("ds_write_b32 v%d, v%d offset:%d" % (T[3], T[2], LCNT + 12))
    A("s_setprio 0")
    issue_K(SB + 0, sQU)
    issue_V(SB + 16, sQU)

    g.lab(lwaitq)
    A("v_mov_b32 v%d, 0" % T[3])
    A("v_lshlrev_b32 v%d, 4, v%d" % (T[4], vI))
    lsp, lgo = g.newlab("qspin"), g.newlab("qgo")
    g.lab(lsp)
    A("ds_read_b32 v%d, v%d offset:%d" % (T[2], T[3], LCNT + 12))
    A("s_waitcnt lgkmcnt(0)")
    A("v_cmp_eq_u32 vcc, 1, v%d" % T[2])
    A("s_cbranch_vccnz %s" % lgo)
    A("s_sleep 1")
    A("s_branch %s" % lsp)
    g.lab(lgo)
    if opt.get("bswap"):
        A("s_and_b32 s%d, s%d, 1" % (sTmp, sH))
        A("s_lshl_b32 s%d, s%d, 8" % (sTmp, sTmp))
        A("v_add_u32 v%d, s%d, v%d" % (T[4], sTmp, T[4]))
        A("v_xor_b32 v%d, 0x100, v%d" % (T[5], T[4]))
        A("ds_read_b128 %s, v%d offset:%d" % (vr(vQ0, 4), T[4], LQF))
        A("ds_read_b128 %s, v%d offset:%d" % (vr(vQ1, 4), T[5], LQF))
    else:
        A("ds_read_b128 %s, v%d offset:%d" % (vr(vQ0, 4), T[4], LQF))
        A("ds_read_b128 %s, v%d offset:%d" % (vr(vQ1, 4), T[4], LQF + 256))

    def reset_state():
        for r in range(4):
            A("v_mov_b32 v%d, 0" % (vAcc + r))
        A("v_mov_b32 v%d, 0xff7fffff" % vM)
        A("v_mov_b32 v%d, 0" % vL)

    reset_state()
    A("s_waitcnt lgkmcnt(0)")
    g.ts(3)
    if opt.get("prog"):
        A("s_mov_b32 m0, 0")
        A("v_mov_b32 v56, 0")

    tX0, tX1, tY0, tY1 = T[0], T[1], T[2], T[3]
    r0, r1, u = T[4], T[5], T[6]
    sv, mx, tm, al, p, pd, ps = T[7], T[8], T[9], T[10], T[11], T[12], T[13]

    def H1(kb, q, kwait, filler=None):
        if kwait is not None:
            A("s_waitcnt vmcnt(%d)" % kwait)
        accs = [tX0, tX1, tY0, tY1]
        for e in range(4):
            for a in range(4):
                c = "0" if e == 0 else "v%d" % accs[a]
                A("v_dot2_f32_bf16 v%d, v%d, v%d, %s" % (accs[a], kb + 4 * a + e, q + e, c))
        if filler:
            filler()
        else:
            g.nop(3)
        dpp("v_add_f32", r0, tY0, tX0, "row_ror:8")
        dpp("v_add_f32", r1, tY1, tX1, "row_ror:8")

    def H2(vb, vwait_base):
        dpp("v_add_f32", u, r0, r0, "row_shl:4", "0x5")
        dpp("v_add_f32", u, r1, r1, "row_shr:4", "0xa")
        g.nop(2)
        dpp("v_add_f32", u, u, u, "quad_perm:[2,3,0,1]")
        g.nop(2)
        dpp("v_add_f32", u, u, u, "quad_perm:[1,0,3,2]")
        bf16_round(sv, u)
        A("v_mul_f32 v%d, s%d, v%d" % (sv, sScale, sv))
        bf16_round(sv, sv)
        g.nop(2)
        dpp("v_max_f32", mx, sv, sv, "row_ror:4")
        g.nop(2)
        dpp("v_max_f32", mx, mx, mx, "row_ror:8")
        xrow16("v_max_f32", mx, tm)
        xrow32("v_max_f32", mx, tm)
        A("v_max_f32 v%d, v%d, v%d" % (mx, mx, vM))
        A("v_sub_f32 v%d, v%d, v%d" % (p, sv, mx))
        A("v_sub_f32 v%d, v%d, v%d" % (al, vM, mx))
        A("v_mul_f32 v%d, s%d, v%d" % (p, sL2E, p))
        A("v_mul_f32 v%d, s%d, v%d" % (al, sL2E, al))
        A("v_exp_f32 v%d, v%d" % (p, p))
        A("v_exp_f32 v%d, v%d" % (al, al))
        A("v_mov_b32 v%d, v%d" % (vM, mx))
        A("v_cvt_pk_bf16_f32 v%d, v%d, v%d" % (pd, p, p))
        for r in range(4):
            A("v_mul_f32 v%d, v%d, v%d" % (vAcc + r, vAcc + r, al))
        dpp("v_add_f32", ps, p, p, "row_ror:4")
        for d in range(4):
            dpp("v_and_b32", vBa + d, pd, vMask + d, "row_newbcast:0")
        dpp("v_add_f32", ps, ps, ps, "row_ror:8")
        for d in range(4):
            dpp("v_and_b32", vBb + d, pd, vMask + d, "row_newbcast:4")
        xrow16("v_add_f32", ps, tm)
        xrow32("v_add_f32", ps, tm)
        A("v_fma_f32 v%d, v%d, v%d, v%d" % (vL, vL, al, ps))
        for j in range(4):
            B = vBa if j % 2 == 0 else vBb
            if j >= 2:
                for d in range(4):
                    dpp("v_and_b32", B + d, pd, vMask + d, "row_newbcast:%d" % (4 * j))
                g.nop(1)
            if vwait_base is not None:
                A("s_waitcnt vmcnt(%d)" % (vwait_base + 3 - j))
            else:
                g.nop(1)
            mfma(vAcc, vb + 4 * j, B, vAcc)
        if opt.get("prog"):
            A("s_memrealtime s[76:77]")
            A("s_waitcnt lgkmcnt(0)")
            A("v_writelane_b32 v56, s76, m0")
            A("s_add_u32 m0, m0, 1")

    def dump_and_combine(b):
        A("s_lshl_b32 s%d, s%d, 10" % (sTmp, sW))
        A("v_add_u32 v%d, s%d, v%d" % (T[0], sTmp, vV))
        A("s_lshl_b32 s%d, s%d, 3" % (sTmp, sW))
        A("v_mov_b32 v%d, s%d" % (T[1], sTmp))
        A("v_mov_b32 v%d, 1" % T[2])
        A("v_mov_b32 v%d, 0" % T[3])
        A("ds_write_b64 v%d, %s offset:%d" % (T[1], vr(vM, 2), LML + 64 * b))
        A("s_mov_b32 s%d, %d" % (sCB, b))
        A("ds_write_b128 v%d, %s offset:%d" % (T[0], vr(vAcc, 4), LC + 8192 * b))
        exec_set(1)
        A("ds_add_rtn_u32 v%d, v%d, v%d offset:%d" % (T[2], T[3], T[2], LCNT + 4 * b))
        exec_all()
        A("s_waitcnt lgkmcnt(0)")
        A("v_readfirstlane_b32 s%d, v%d" % (sTmp, T[2]))
        lno = g.newlab("nocomb")
        g.nop(1)
        A("s_cmp_lg_u32 s%d, 7" % sTmp)
        A("s_cbranch_scc1 %s" % lno)
        A("s_call_b64 s[%d:%d], L_combine" % (sRet, sRet + 1))
        g.lab(lno)

    vLT, vLA = T[14], T[15]
    A("v_mov_b32 v%d, 0" % vLA)
    A("s_mov_b32 s%d, 2" % sPh)
    A("s_cmp_eq_u32 s%d, 1" % sLt)
    A("s_cselect_b32 s%d, 1, %d" % (sPo, 0 if NS > NP0 else 1))
    lloop, lexit, lsw, lextra, lcont = (g.newlab(n) for n in ("loop", "exit", "switch", "extra", "cont"))
    lg1, lg2, lg3, lg4 = (g.newlab(n) for n in ("tk", "tk", "tk", "tk"))
    g.lab(lloop)
    A("s_mov_b32 s%d, 1" % sNext)
    A("s_cmp_eq_u32 s%d, 0" % sPo)
    A("s_cbranch_scc1 %s" % lg1)
    A("s_atomic_add s%d, s[%d:%d], 0 glc" % (sNext, sTkA, sTkA + 1))
    A("s_branch %s" % lg2)
    g.lab(lg1)
    A("v_mov_b32 v%d, 1" % vLT)
    exec_set(1)
    A("ds_add_rtn_u32 v%d, v%d, v%d offset:%d" % (vLT, vLA, vLT, LCNT + 8))
    exec_all()
    g.lab(lg2)

    def fill():
        A("s_waitcnt lgkmcnt(0)")
        A("s_cmp_eq_u32 s%d, 1" % sPo)
        A("s_cbranch_scc1 %s" % lg3)
        A("v_readfirstlane_b32 s%d, v%d" % (sTmp, vLT))
        g.nop(1)
        A("s_add_u32 s%d, s%d, %d" % (sTmp, sTmp, NP0))
        A("s_lshl_b32 s%d, s%d, 12" % (sOff, sTmp))
        A("s_add_u32 s%d, s%d, s%d" % (sOff, sOff, sSBW))
        A("s_and_b32 s%d, s%d, 0xfffff" % (sOff, sOff))
        A("s_add_u32 s%d, s%d, s%d" % (sOff, sOff, sH0))
        A("s_mov_b32 s%d, -1" % sNext)
        A("s_cmp_lt_u32 s%d, %d" % (sTmp, NS))
        A("s_cbranch_scc1 %s" % lg4)
        A("s_mov_b32 s%d, 1" % sPo)
        A("s_mov_b32 s%d, 1" % sNext)
        A("s_atomic_add s%d, s[%d:%d], 0 glc" % (sNext, sTkA, sTkA + 1))
        A("s_waitcnt lgkmcnt(0)")
        g.lab(lg3)
        A("s_cmp_lt_u32 s%d, %d" % (sNext, NA))
        A("s_cselect_b32 s%d, s%d, s%d" % (sTmp, sH0, sHB))
        A("s_add_u32 s%d, s%d, s%d" % (sOff, sNext, sBA))
        A("s_and_b32 s%d, s%d, 255" % (sOff, sOff))
        A("s_lshl_b32 s%d, s%d, 12" % (sOff, sOff))
        A("s_add_u32 s%d, s%d, s%d" % (sOff, sOff, sTmp))
        A("s_cmp_lt_u32 s%d, %d" % (sNext, NL))
        A("s_cselect_b32 s%d, s%d, 0x4000000" % (sOff, sOff))
        g.lab(lg4)

    H1(SB + 0, vQ0, 4, fill)
    issue_K(SB + 0, sOff)
    H2(SB + 16, 4)
    issue_V(SB + 16, sOff)
    A("s_cmp_eq_u32 s%d, 2" % sPh)
    A("s_cbranch_scc1 %s" % lextra)
    g.lab(lcont)
    A("s_cmp_lt_i32 s%d, %d" % (sNext, NA))
    A("s_cbranch_scc1 %s" % lloop)
    A("s_cmp_eq_u32 s%d, 0" % sPh)
    A("s_cbranch_scc1 %s" % lsw)
    llast = g.newlab("last")
    lchk = g.newlab("chk")
    g.lab(lchk)
    if TAP:
        A("s_cmp_lt_u32 s%d, %d" % (sNext, NL - TAP))
        A("s_cbranch_scc1 %s" % lloop)
        A("s_cmp_ge_u32 s%d, %d" % (sNext, NL))
        A("s_cbranch_scc1 %s" % lexit)
        A("s_cmp_lt_u32 s%d, 4" % sW)
        A("s_cbranch_scc1 %s" % lloop)
        H1(SB + 0, vQ0, 4)
        g.nop(1)
        H2(SB + 16, 0)
        g.nop(4)
        A("s_branch %s" % lexit)
    else:
        A("s_cmp_lt_u32 s%d, %d" % (sNext, NL))
        A("s_cbranch_scc1 %s" % lloop)
        A("s_branch %s" % lexit)
    g.lab(lextra)
    lqw, lj = g.newlab("qw"), g.newlab("join")
    A("s_cmp_eq_u32 s%d, 0" % sW)
    A("s_cbranch_scc1 %s" % lqw)
    A("s_cmp_eq_u32 s%d, 1" % sLt)
    A("s_cbranch_scc1 %s" % lj)
    for k in range(1, NPF):
        bb = SB + 32 * k
        H1(bb, vQ0, 8)
        g.nop(1)
        H2(bb + 16, None)
    A("s_branch %s" % lj)
    g.lab(lqw)
    A("s_cmp_eq_u32 s%d, 0" % sRole)
    A("s_cbranch_scc1 %s" % lj)
    A("s_call_b64 s[%d:%d], L_prep" % (sRet, sRet + 1))
    g.lab(lj)
    A("s_mov_b32 s%d, 0" % sPh)
    A("s_branch %s" % lcont)
    g.lab(lsw)
    dump_and_combine(0)
    g.ts(4)
    reset_state()
    for d in range(4):
        A("v_mov_b32 v%d, v%d" % (vQ0 + d, vQ1 + d))
    A("s_mov_b32 s%d, 1" % sPh)
    A("s_branch %s" % lchk)
    g.lab(lexit)
    g.ts(5)
    dump_and_combine(1)
    g.ts(6)

    lF2, lfin, lnext = g.newlab("roleF2"), g.newlab("fin"), g.newlab("next")
    A("s_cmp_eq_u32 s%d, 0" % sRole)
    A("s_cbranch_scc1 %s" % lfin)
    g.lab("L_tail")
    A("s_mov_b32 s%d, %d" % (sCnt, POLL_LIMIT - 1))
    if opt.get("pf2"):
        A("s_getpc_b64 s[%d:%d]" % (rB, rB + 1))
        g.lab("L_pcref2")
        A("s_and_b32 s%d, s%d, 0xffff" % (rB + 1, rB + 1))
        A("s_mov_b32 s%d, L_combine-L_pcref2" % (rB + 2))
        A("s_mov_b32 s%d, 0x20000" % (rB + 3))
        A("s_lshl_b32 s%d, s%d, 10" % (sTmp, sW))
        A("buffer_load_dwordx4 %s, v%d, %s, s%d offen" % (vr(P + 20, 4), vV, srd(rB), sTmp))
    A("s_cmp_lg_u32 s%d, 1" % sRole)
    A("s_cbranch_scc1 %s" % lnext)
    DD = SB
    A("v_lshlrev_b32 v%d, 8, v%d" % (T[0], vI))
    A("v_lshl_add_u32 v%d, v%d, 4, v%d" % (T[0], vG, T[0]))
    A("s_and_b32 s%d, s%d, 24" % (sTmp, sH))
    A("s_add_u32 s%d, s%d, s%d" % (sTmp, sTmp, sW))
    A("s_lshl_b32 s%d, s%d, 11" % (sTmp2, sTmp))
    A("s_add_u32 s%d, s%d, 0x%x" % (sTmp2, sTmp2, WS_ST))
    A("s_lshl_b32 s%d, s%d, 12" % (sTmp, sTmp))
    A("v_and_b32 v%d, 7, v%d" % (T[1], vI))
    A("v_and_b32 v%d, 1, v%d" % (T[2], vG))
    A("v_lshlrev_b32 v%d, 2, v%d" % (T[2], T[2]))
    A("v_xor_b32 v%d, v%d, v%d" % (T[1], T[1], T[2]))
    A("v_lshlrev_b32 v%d, 7, v%d" % (T[1], T[1]))
    A("v_lshrrev_b32 v%d, 1, v%d" % (T[2], vG))
    A("v_lshl_add_u32 v%d, v%d, 10, v%d" % (T[1], T[2], T[1]))

    def ldW():
        for j in range(4):
            A("buffer_load_dwordx4 %s, v%d, %s, s%d offen offset:%d sc1" % (vr(P + 4 * j, 4), T[0], srd(rWS), sTmp, 64 * j))
        A("buffer_load_dwordx2 %s, v%d, %s, s%d offen sc1" % (vr(P + 16, 2), T[1], srd(rWS), sTmp2))
    poll(ldW, range(P, P + 18), T[5], "w")
    g.ts(7)
    mm, ee, ll = T[10], T[11], T[12]
    chain = [
        lambda: dpp("v_max_f32", mm, P + 16, P + 16, "quad_perm:[1,0,3,2]"),
        lambda: A("s_lshl_b32 s%d, s%d, 10" % (sOff, sW)),
        lambda: dpp("v_max_f32", mm, mm, mm, "quad_perm:[2,3,0,1]"),
        lambda: A("v_add_u32 v%d, s%d, v%d" % (T[4], sOff, vV)),
        lambda: dpp("v_max_f32", mm, mm, mm, "row_half_mirror"),
        lambda: A("v_sub_f32 v%d, v%d, v%d" % (ee, P + 16, mm)),
        lambda: A("v_mul_f32 v%d, s%d, v%d" % (ee, sL2E, ee)),
        lambda: A("v_exp_f32 v%d, v%d" % (ee, ee)),
        lambda: A("v_mul_f32 v%d, v%d, v%d" % (ll, ee, P + 17)),
        lambda: A("v_lshlrev_b32 v%d, 11, v%d" % (T[0], T[2])),
        lambda: dpp("v_add_f32", ll, ll, ll, "quad_perm:[1,0,3,2]"),
        lambda: A("v_lshl_add_u32 v%d, v%d, 4, v%d" % (T[0], vI, T[0])),
        lambda: dpp("v_add_f32", ll, ll, ll, "quad_perm:[2,3,0,1]"),
        lambda: A("s_lshr_b32 s%d, s%d, 3" % (sTmp, sH)),
        lambda: dpp("v_add_f32", ll, ll, ll, "row_half_mirror"),
        lambda: A("v_rcp_f32 v%d, v%d" % (ll, ll))]
    n_ = 0
    for j in range(4):
        for c in range(4):
            mfma(DD + 4 * c, P + 4 * j, vW + 16 * j + 4 * c, None if j == 0 else DD + 4 * c)
            chain[n_]()
            n_ += 1
    A("s_lshl_b32 s%d, s%d, 12" % (sTmp, sTmp))
    A("v_mul_f32 v%d, v%d, v%d" % (ee, ee, ll))
    A("s_and_b32 s%d, s%d, 7" % (sTmp2, sH))
    A("s_lshl_b32 s%d, s%d, 8" % (sTmp2, sTmp2))
    Y = T[14]
    for c in range(4):
        dpp("v_mul_f32", Y + c, ee, DD + 4 * c, "row_newbcast:0")
        for r in range(1, 4):
            dpp("v_fmac_f32", Y + c, ee, DD + 4 * c + r, "row_newbcast:%d" % r)
    A("ds_write_b128 v%d, %s offset:%d" % (T[4], vr(Y, 4), LR))
    A("s_add_u32 s%d, s%d, s%d" % (sTmp, sTmp, sTmp2))
    A("s_add_u32 s%d, s%d, 0x%x" % (sTmp2, sTmp, WS_AP))
    A("s_add_u32 s%d, s%d, 0x%x" % (sTmp, sTmp, WS_AP))
    A("s_waitcnt lgkmcnt(0)")
    tail_barrier()
    A("s_cmp_lg_u32 s%d, 0" % sW)
    A("s_cbranch_scc1 %s" % lfin)
    for k in range(8):
        A("ds_read_b128 %s, v%d offset:%d" % (vr(P + 4 * k, 4), vV, LR + 1024 * k))
    A("s_waitcnt lgkmcnt(6)")
    for r in range(4):
        A("v_add_f32 v%d, v%d, v%d" % (P + r, P + r, P + 4 + r))
    A("s_waitcnt lgkmcnt(4)")
    for r in range(4):
        A("v_add_f32 v%d, v%d, v%d" % (P + 8 + r, P + 8 + r, P + 12 + r))
    A("s_waitcnt lgkmcnt(2)")
    for r in range(4):
        A("v_add_f32 v%d, v%d, v%d" % (P + 16 + r, P + 16 + r, P + 20 + r))
    for r in range(4):
        A("v_add_f32 v%d, v%d, v%d" % (P + r, P + r, P + 8 + r))
    A("s_waitcnt lgkmcnt(0)")
    for r in range(4):
        A("v_add_f32 v%d, v%d, v%d" % (P + 24 + r, P + 24 + r, P + 28 + r))
    for r in range(4):
        A("v_add_f32 v%d, v%d, v%d" % (P + 16 + r, P + 16 + r, P + 24 + r))
    for r in range(4):
        A("v_add_f32 v%d, v%d, v%d" % (P + r, P + r, P + 16 + r))
    multi_xrow(16, "v_add_f32", [P + r for r in range(4)], [T[6 + r] for r in range(4)])
    for r in range(4):
        A("v_min_u32 v%d, -2, v%d" % (P + r, P + r))
    exec_set(0x0000ffff, 0x0000ffff)
    A("buffer_store_dwordx4 %s, v%d, %s, s%d offen sc1" % (vr(P, 4), T[0], srd(rWS), sTmp2))
    exec_all()
    g.ts(8)
    A("s_branch %s" % lfin)
    g.lab(lnext)
    A("s_cmp_eq_u32 s%d, 3" % sRole)
    A("s_cbranch_scc1 %s" % lF2)

    A("v_lshrrev_b32 v%d, 2, v%d" % (T[0], vI))
    A("v_lshlrev_b32 v%d, 12, v%d" % (T[0], T[0]))
    A("v_and_b32 v%d, 1, v%d" % (T[1], vI))
    A("v_lshl_add_u32 v%d, v%d, 11, v%d" % (T[0], T[1], T[0]))
    A("v_bfe_u32 v%d, v%d, 1, 1" % (T[2], vI))
    A("v_lshl_add_u32 v%d, v%d, 7, v%d" % (T[0], T[2], T[0]))
    A("v_lshl_add_u32 v%d, v%d, 5, v%d" % (T[0], vG, T[0]))
    A("s_lshl_b32 s%d, s%d, 8" % (sTmp, sW))
    A("s_add_u32 s%d, s%d, 0x%x" % (sTmp, sTmp, WS_AP))
    A("v_and_b32 v%d, 31, v%d" % (T[4], vLane))
    A("v_lshlrev_b32 v%d, 5, v%d" % (T[4], T[4]))
    A("s_lshl_b32 s%d, s%d, 2" % (sOff, sW))
    A("v_add_u32 v%d, s%d, v%d" % (T[4], sOff, T[4]))
    A("v_lshlrev_b32 v%d, 6, v%d" % (T[5], T[1]))
    A("s_lshl_b32 s%d, s%d, 3" % (sOff, sW))
    A("v_add_u32 v%d, s%d, v%d" % (T[5], sOff, T[5]))
    A("v_lshlrev_b32 v%d, 5, v%d" % (T[3], vLane))
    A("s_lshl_b32 s%d, s%d, 11" % (sOff, sW))
    A("v_add_u32 v%d, s%d, v%d" % (T[3], sOff, T[3]))
    A("v_lshrrev_b32 v%d, 1, v%d" % (T[21], vG))
    A("v_lshlrev_b32 v%d, 5, v%d" % (T[20], vI))
    A("v_lshl_add_u32 v%d, v%d, 9, v%d" % (T[20], T[21], T[20]))
    A("s_lshl_b32 s%d, s%d, 10" % (sOff, sW))
    A("v_add_u32 v%d, s%d, v%d" % (T[20], sOff, T[20]))
    for d in range(4):
        A("v_mov_b32 v%d, 0x3f803f80" % (vBa + d))
    A("v_lshl_add_u32 v%d, v%d, 4, v%d" % (T[21], T[21], vI))
    A("s_lshl_b32 s%d, s%d, 5" % (sOff, sW))
    A("v_add_u32 v%d, s%d, v%d" % (T[21], sOff, T[21]))
    A("v_cmp_gt_u32 vcc, 88, v%d" % T[21])
    A("s_mul_i32 s%d, s%d, 88" % (sOff, sRA))
    A("v_add_u32 v%d, s%d, v%d" % (T[21], sOff, T[21]))
    A("v_lshrrev_b32 v%d, 5, v%d" % (T[1], T[21]))
    A("v_and_b32 v%d, 30, v%d" % (T[2], T[21]))
    A("v_lshlrev_b32 v%d, 1, v%d" % (T[2], T[2]))
    A("v_lshl_add_u32 v%d, v%d, 7, v%d" % (T[1], T[1], T[2]))
    A("v_and_b32 v%d, 1, v%d" % (T[2], vG))
    A("v_lshl_add_u32 v%d, v%d, 6, v%d" % (T[1], T[2], T[1]))
    A("v_mov_b32 v%d, 0x%x" % (T[19], WS_BYTES))
    A("v_cndmask_b32 v%d, v%d, v%d, vcc" % (T[1], T[19], T[1]))
    A("v_cmp_gt_u32 vcc, 1376, v%d" % T[21])
    A("v_lshlrev_b32 v%d, 6, v%d" % (T[2], T[2]))
    g.nop(1)
    A("v_cndmask_b32 v%d, v%d, v%d, vcc" % (T[21], T[19], T[1]))

    def ldF1():
        A("buffer_load_dwordx4 %s, v%d, %s, s%d offen sc1" % (vr(PL, 4), T[0], srd(rWS), sTmp))
        A("buffer_load_dwordx4 %s, v%d, %s, s%d offen offset:16 sc1" % (vr(PL + 4, 4), T[0], srd(rWS), sTmp))
    poll(ldF1, range(PL, PL + 8), T[6], "f1")
    g.ts(9)
    for k in range(8):
        dpp("v_add_f32", P + k, PL + k, PL + k, "row_ror:4")
    for k in range(8):
        dpp("v_add_f32", P + k, P + k, P + k, "row_ror:8")
    HP, AP_ = T[6], T[10]
    for k in range(4):
        A("v_cvt_pk_bf16_f32 v%d, v%d, v%d" % (AP_ + k, P + 2 * k, P + 2 * k + 1))
    for k in range(4):
        A("v_lshlrev_b32 v%d, 16, v%d" % (P + 2 * k, AP_ + k))
        A("v_and_b32 v%d, 0xffff0000, v%d" % (P + 2 * k + 1, AP_ + k))
    for k in range(8):
        A("v_add_f32 v%d, v%d, v%d" % (P + k, P + k, XF + k))
    for k in range(4):
        A("v_cvt_pk_bf16_f32 v%d, v%d, v%d" % (HP + k, P + 2 * k, P + 2 * k + 1))
    g.nop(2)
    DF = vW
    DS, DQ = vW + 48, vW + 52
    mfma(DS, HP, vBa, None)
    mfma(DQ, HP, HP, None)
    SS, QQ = T[14], T[15]
    post = []
    post.append(["v_add_f32 v%d, v%d, v%d" % (T[16], DS, DS + 2),
                 "v_add_f32 v%d, v%d, v%d" % (T[17], DS + 1, DS + 3),
                 "v_cndmask_b32 v%d, v%d, v%d, s[%d:%d]" % (T[18], DQ, DQ + 1, sMi1, sMi1 + 1),
                 "v_cndmask_b32 v%d, v%d, v%d, s[%d:%d]" % (T[19], DQ + 2, DQ + 3, sMi1, sMi1 + 1),
                 "v_cndmask_b32 v%d, v%d, v%d, s[%d:%d]" % (SS, T[16], T[17], sMi1, sMi1 + 1),
                 "s_nop 0",
                 "v_add_f32_dpp v%d, v%d, v%d quad_perm:[2,3,0,1] %s" % (QQ, T[19], T[18], DPPALL),
                 "s_mov_b32 exec_lo, 3", "s_mov_b32 exec_hi, 0",
                 "ds_write_b64 v%d, %s offset:%d" % (T[5], vr(SS, 2), LST),
                 "s_mov_b64 exec, -1"])
    for c in range(6):
        post.append(["v_add_f32 v%d, v%d, v%d" % (T[18], DF + 4 * c, DF + 24 + 4 * c + 2),
                     "v_add_f32 v%d, v%d, v%d" % (T[19], DF + 4 * c + 1, DF + 24 + 4 * c + 3),
                     "v_cndmask_b32 v%d, v%d, v%d, s[%d:%d]" % (P + 12 + c, T[18], T[19], sMg1, sMg1 + 1),
                     "ds_write_b32 v%d, v%d offset:%d" % (T[4], P + 12 + c, LR2 + 1024 * c)])
    for c in range(6):
        for j in range(2):
            mfma(DF + 24 * j + 4 * c, HP, W2[6 * j + c], None)
        if c >= 4:
            for s_ in post[c - 4]:
                A(s_)
    for k in range(2, 7):
        for s_ in post[k]:
            A(s_)
    A("s_waitcnt lgkmcnt(0)")
    tail_barrier()
    A("s_cmp_ge_u32 s%d, 3" % sW)
    A("s_cbranch_scc1 %s" % lfin)
    Z, SQ, CSr = P, P + 12, T[8]
    for k in range(4):
        A("ds_read_b128 %s, v%d offset:%d" % (vr(SQ + 4 * k, 4), T[2], LST + 16 * k))
    A("ds_read_b128 %s, v%d offset:%d" % (vr(Z, 4), T[3], LR2))
    A("ds_read_b128 %s, v%d offset:%d" % (vr(Z + 4, 4), T[3], LR2 + 16))
    A("ds_read_b128 %s, v%d offset:%d" % (vr(CSr, 4), T[20], LCS))
    A("ds_read_b128 %s, v%d offset:%d" % (vr(CSr + 4, 4), T[20], LCS + 16))
    A("s_mov_b32 s%d, 0x%x" % (sTmp, WS_GL))
    A("s_mov_b32 s%d, 0x%x" % (sTmp2, WS_G))
    A("s_waitcnt lgkmcnt(4)")
    for st in (8, 4, 2):
        for k in range(st):
            A("v_add_f32 v%d, v%d, v%d" % (SQ + k, SQ + k, SQ + k + st))
    mean, var = T[5], T[6]
    A("v_mul_f32 v%d, %s, v%d" % (mean, f32(1.0 / 512), SQ))
    A("v_mul_f32 v%d, %s, v%d" % (var, f32(1.0 / 512), SQ + 1))
    A("v_fma_f32 v%d, -v%d, v%d, v%d" % (var, mean, mean, var))
    A("v_max_f32 v%d, 0, v%d" % (var, var))
    ln_scalars(mean, var)
    A("v_rcp_f32 v%d, v%d" % (T[7], var))
    A("s_waitcnt lgkmcnt(0)")
    for st in (4, 2, 1):
        for k in range(st):
            A("v_add_f32 v%d, v%d, v%d" % (Z + k, Z + k, Z + k + st))
            A("v_add_f32 v%d, v%d, v%d" % (CSr + k, CSr + k, CSr + k + st))
    A("v_fma_f32 v%d, -v%d, v%d, v%d" % (Z, mean, CSr, Z))
    div_refined(T[8], Z, var, T[7], T[9])
    bf16_round(T[8], T[8])
    A("v_add_f32 v%d, v%d, v%d" % (T[8], T[8], vBias))
    bf16_round(T[8], T[8])
    kk = 2.0 * 0.7978845608028654 * 1.4426950408889634
    A("v_mul_f32 v%d, v%d, v%d" % (T[9], T[8], T[8]))
    A("v_mov_b32 v%d, %s" % (T[10], f32(-kk)))
    A("v_fmac_f32 v%d, %s, v%d" % (T[10], f32(-kk * 0.044715), T[9]))
    A("v_mul_f32 v%d, v%d, v%d" % (T[9], T[10], T[8]))
    A("v_exp_f32 v%d, v%d" % (T[9], T[9]))
    g.nop(1)
    A("v_add_f32 v%d, 1.0, v%d" % (T[9], T[9]))
    A("v_rcp_f32 v%d, v%d" % (T[9], T[9]))
    g.nop(1)
    A("v_mul_f32 v%d, v%d, v%d" % (T[8], T[8], T[9]))
    g.nop(2)
    A("v_mov_b32_dpp v%d, v%d quad_perm:[1,1,3,3] %s" % (T[10], T[8], DPPALL))
    A("v_cvt_pk_bf16_f32 v%d, v%d, v%d" % (T[9], T[8], T[10]))
    A("v_min_u32 v%d, -2, v%d" % (T[9], T[9]))
    exec_set(0x55555555, 0x55555555)
    A("buffer_store_dword v%d, v%d, %s, s%d offen" % (T[9], T[21], srd(rWS), sTmp))
    A("buffer_store_dword v%d, v%d, %s, s%d offen sc1" % (T[9], T[21], srd(rWS), sTmp2))
    exec_all()
    g.ts(10)
    A("s_branch %s" % lfin)

    g.lab(lF2)
    rO = rDBG
    mk_srd(rO, pOUT, 2048)
    A("v_and_b32 v%d, 1, v%d" % (T[0], vI))
    A("v_lshlrev_b32 v%d, 6, v%d" % (T[0], T[0]))
    A("v_lshl_add_u32 v%d, v%d, 4, v%d" % (T[0], vG, T[0]))
    A("s_lshl_b32 s%d, s%d, 7" % (sTmp, sW))
    A("v_add_u32 v%d, s%d, v%d" % (T[0], sTmp, T[0]))
    A("v_add_u32 v%d, 0x1000, v%d" % (T[1], T[0]))
    A("s_cmp_lt_u32 s%d, 3" % sW)
    A("s_cselect_b32 s%d, 0x1400, 0x%x" % (sTmp, 0) if False else "s_cselect_b32 s%d, 0, 1" % sTmp)
    A("s_lshl_b32 s%d, s%d, 28" % (sTmp, sTmp))
    A("s_add_u32 s%d, s%d, 0x1400" % (sTmp, sTmp))
    A("v_add_u32 v%d, s%d, v%d" % (T[2], sTmp, T[0]))
    A("v_and_b32 v%d, 31, v%d" % (T[3], vLane))
    A("v_lshlrev_b32 v%d, 5, v%d" % (T[3], T[3]))
    A("s_lshl_b32 s%d, s%d, 2" % (sOff, sW))
    A("v_add_u32 v%d, s%d, v%d" % (T[4], sOff, T[3]))
    A("v_lshlrev_b32 v%d, 5, v%d" % (T[3], vLane))
    lnh = g.newlab("noh")
    A("s_cmp_lg_u32 s%d, 0" % sW)
    A("s_cbranch_scc1 %s" % lnh)
    A("v_and_b32 v%d, 1, v%d" % (T[5], vG))
    A("v_lshlrev_b32 v%d, 11, v%d" % (T[5], T[5]))
    A("v_lshl_add_u32 v%d, v%d, 4, v%d" % (T[5], vI, T[5]))
    A("v_lshrrev_b32 v%d, 1, v%d" % (T[6], vG))
    A("v_lshl_add_u32 v%d, v%d, 2, v%d" % (T[5], T[6], T[5]))
    A("v_add_u32 v%d, 0x1000, v%d" % (T[7], T[5]))
    A("v_add_u32 v%d, 0x2000, v%d" % (T[8], T[5]))
    A("v_add_u32 v%d, 0x3000, v%d" % (T[9], T[5]))
    A("s_lshr_b32 s%d, s%d, 1" % (sTmp, sRA))
    A("s_lshl_b32 s%d, s%d, 8" % (sTmp, sTmp))
    A("s_and_b32 s%d, s%d, 1" % (sTmp2, sRA))
    A("s_lshl_b32 s%d, s%d, 3" % (sTmp2, sTmp2))
    A("s_add_u32 s%d, s%d, s%d" % (sTmp, sTmp, sTmp2))
    A("s_add_u32 s%d, s%d, 0x%x" % (sTmp, sTmp, WS_AP))

    def ldH():
        for k, a_ in enumerate((T[5], T[7], T[8], T[9])):
            A("buffer_load_dword v%d, v%d, %s, s%d offen sc1" % (PL + k, a_, srd(rWS), sTmp))
    poll(ldH, range(PL, PL + 4), T[6], "h")
    A("v_add_f32 v%d, v%d, v%d" % (PL, PL, PL + 3))
    A("v_add_f32 v%d, v%d, v%d" % (PL + 2, PL + 2, PL + 1))
    A("v_add_f32 v%d, v%d, v%d" % (PL, PL, PL + 2))
    bf16_round(PL, PL)
    A("v_add_f32 v%d, v%d, v%d" % (vH, PL, vXs))
    bf16_round(vH, vH)
    g.lab(lnh)
    A("s_mov_b32 s%d, 0x%x" % (sTmp, WS_GL))

    def ldF2():
        for k in range(6):
            a_, o_ = (T[0], 1024 * k) if k < 4 else ((T[1], 0) if k == 4 else (T[2], 0))
            A("buffer_load_dwordx4 %s, v%d, %s, s%d offen offset:%d sc1" % (vr(P + 4 * k, 4), a_, srd(rWS), sTmp, o_))
    poll(ldF2, range(P, P + 24), T[6], "f2", (sTmp, WS_G ^ WS_GL))
    g.ts(9)
    for k in range(6):
        for c in range(2):
            mfma(DD + 4 * c, P + 4 * k, W2[2 * k + c], None if k == 0 else DD + 4 * c)
    A("v_and_b32 v%d, 1, v%d" % (T[0], vG))
    A("v_lshlrev_b32 v%d, 10, v%d" % (T[0], T[0]))
    A("v_lshl_add_u32 v%d, v%d, 1, v%d" % (T[0], vI, T[0]))
    A("v_lshrrev_b32 v%d, 1, v%d" % (T[1], vG))
    A("v_lshl_add_u32 v%d, v%d, 5, v%d" % (T[0], T[1], T[0]))
    A("s_lshl_b32 s%d, s%d, 6" % (sTmp, sRA))
    g.nop(1)
    A("v_cndmask_b32 v%d, v%d, v%d, s[%d:%d]" % (T[10], DD, DD + 1, sMg1, sMg1 + 1))
    A("ds_write_b32 v%d, v%d offset:%d" % (T[4], T[10], LR2))
    A("v_cndmask_b32 v%d, v%d, v%d, s[%d:%d]" % (T[11], DD + 4, DD + 5, sMg1, sMg1 + 1))
    A("ds_write_b32 v%d, v%d offset:%d" % (T[4], T[11], LR2 + 1024))
    A("s_waitcnt lgkmcnt(0)")
    tail_barrier()
    A("s_cmp_lg_u32 s%d, 0" % sW)
    A("s_cbranch_scc1 %s" % lfin)
    A("ds_read_b128 %s, v%d offset:%d" % (vr(P, 4), T[3], LR2))
    A("ds_read_b128 %s, v%d offset:%d" % (vr(P + 4, 4), T[3], LR2 + 16))
    A("s_waitcnt lgkmcnt(0)")
    for st in (4, 2, 1):
        for k in range(st):
            A("v_add_f32 v%d, v%d, v%d" % (P + k, P + k, P + k + st))
    bf16_round(P, P)
    A("v_add_f32 v%d, v%d, v%d" % (P, P, vBias))
    bf16_round(P, P)
    A("v_add_f32 v%d, v%d, v%d" % (P, P, vH))
    g.nop(2)
    A("v_mov_b32_dpp v%d, v%d quad_perm:[1,1,3,3] %s" % (T[10], P, DPPALL))
    A("v_cvt_pk_bf16_f32 v%d, v%d, v%d" % (T[9], P, T[10]))
    exec_set(0x55555555, 0x55555555)
    A("buffer_store_dword v%d, v%d, %s, s%d offen" % (T[9], T[0], srd(rO), sTmp))
    exec_all()
    lep = g.newlab("noep")
    A("s_cmp_lg_u32 s%d, 0" % sRA)
    A("s_cbranch_scc1 %s" % lep)
    A("v_mov_b32 v%d, s%d" % (T[10], sTag))
    A("s_mov_b32 s%d, 0x%x" % (sTmp, WS_EP))
    A("buffer_store_dword v%d, v%d, %s, s%d offen" % (T[10], vTkA, srd(rWS), sTmp))
    g.lab(lep)
    g.ts(10)

    g.lab(lfin)
    if DRY:
        A("s_cmp_eq_u32 s%d, 1" % sDry)
        A("s_cbranch_scc1 L_resume")
    if opt.get("ts"):
        g.ts(11)
        A("s_waitcnt vmcnt(0)")
        A("s_lshl_b32 s%d, s2, 3" % sTmp)
        A("s_add_u32 s%d, s%d, s%d" % (sTmp, sTmp, sW))
        A("s_lshl_b32 s%d, s%d, 6" % (sTmp, sTmp))
        A("s_add_u32 s%d, s%d, 0x%x" % (sTmp, sTmp, WS_TS))
        for k in range(12):
            A("v_mov_b32 v%d, s%d" % (P + k, 80 + k))
        for k in range(3):
            A("buffer_store_dwordx4 %s, v%d, %s, s%d offen offset:%d" % (vr(P + 4 * k, 4), vTkA, srd(rWS), sTmp, 16 * k))
    if opt.get("prog"):
        A("s_lshl_b32 s%d, s2, 3" % sTmp)
        A("s_add_u32 s%d, s%d, s%d" % (sTmp, sTmp, sW))
        A("s_lshl_b32 s%d, s%d, 8" % (sTmp, sTmp))
        A("s_add_u32 s%d, s%d, 0x200000" % (sTmp, sTmp))
        A("v_lshlrev_b32 v%d, 2, v%d" % (T[0], vLane))
        A("buffer_store_dword v56, v%d, %s, s%d offen" % (T[0], srd(rWS), sTmp))
    g.lab("L_end")
    A("s_endpgm")

    g.lab("L_combine")
    C = P
    A("v_and_b32 v%d, 7, v%d" % (T[0], vI))
    A("v_lshl_add_u32 v%d, v%d, 4, v%d" % (T[1], vG, T[0]))
    A("v_lshlrev_b32 v%d, 4, v%d" % (T[1], T[1]))
    A("v_lshrrev_b32 v%d, 3, v%d" % (T[2], vI))
    A("v_lshl_add_u32 v%d, v%d, 12, v%d" % (T[1], T[2], T[1]))
    A("s_lshl_b32 s%d, s%d, 13" % (sTmp, sCB))
    A("v_add_u32 v%d, s%d, v%d" % (T[1], sTmp, T[1]))
    A("s_lshl_b32 s%d, s%d, 6" % (sTmp, sCB))
    A("v_lshlrev_b32 v%d, 5, v%d" % (T[3], T[2]))
    A("v_add_u32 v%d, s%d, v%d" % (T[3], sTmp, T[3]))
    A("v_xor_b32 v%d, 32, v%d" % (T[4], T[3]))
    A("ds_read_b128 %s, v%d offset:%d" % (vr(C + 16, 4), T[3], LML))
    A("ds_read_b128 %s, v%d offset:%d" % (vr(C + 20, 4), T[3], LML + 16))
    A("ds_read_b128 %s, v%d offset:%d" % (vr(C + 24, 4), T[4], LML))
    A("ds_read_b128 %s, v%d offset:%d" % (vr(C + 28, 4), T[4], LML + 16))
    for k in range(4):
        A("ds_read_b128 %s, v%d offset:%d" % (vr(C + 4 * k, 4), T[1], LC + 1024 * k))
    A("v_lshl_add_u32 v%d, v%d, 3, v%d" % (T[5], vG, T[0]))
    A("v_lshlrev_b32 v%d, 3, v%d" % (T[5], T[5]))
    if opt.get("bswap"):
        A("s_xor_b32 s%d, s%d, s%d" % (sTmp2, sCB, sH))
        A("s_and_b32 s%d, s%d, 1" % (sTmp2, sTmp2))
        A("s_lshl_b32 s%d, s%d, 3" % (sTmp2, sTmp2))
    else:
        A("s_lshl_b32 s%d, s%d, 3" % (sTmp2, sCB))
    A("s_add_u32 s%d, s%d, s%d" % (sTmp2, sTmp2, sT))
    A("s_lshl_b32 s%d, s%d, 4" % (sTmp, sH))
    A("s_add_u32 s%d, s%d, s%d" % (sTmp2, sTmp2, sTmp))
    A("s_lshl_b32 s%d, s%d, 8" % (sTmp, sTmp2))
    A("s_lshl_b32 s%d, s%d, 7" % (sTmp2, sTmp2))
    A("s_add_u32 s%d, s%d, 0x%x" % (sTmp2, sTmp2, WS_ST))
    A("v_add_u32 v%d, s%d, v%d" % (T[5], sTmp, T[5]))
    A("v_cmp_eq_u32 vcc, 8, v%d" % vLane)
    A("v_mov_b32 v%d, s%d" % (T[18], sTmp2))
    g.nop(1)
    A("v_cndmask_b32 v%d, v%d, v%d, vcc" % (T[5], T[5], T[18]))
    A("s_waitcnt lgkmcnt(4)")
    Mx, Ls = T[6], T[7]
    A("v_max3_f32 v%d, v%d, v%d, v%d" % (Mx, C + 16, C + 18, C + 20))
    A("v_max3_f32 v%d, v%d, v%d, v%d" % (T[8], C + 22, C + 24, C + 26))
    A("v_max3_f32 v%d, v%d, v%d, v%d" % (Mx, Mx, C + 28, C + 30))
    A("v_max_f32 v%d, v%d, v%d" % (Mx, Mx, T[8]))
    Fk = T[8:12]
    for k in range(4):
        A("v_sub_f32 v%d, v%d, v%d" % (Fk[k], C + 16 + 2 * k, Mx))
    for k in range(4):
        A("v_mul_f32 v%d, s%d, v%d" % (Fk[k], sL2E, Fk[k]))
    for k in range(4):
        A("v_exp_f32 v%d, v%d" % (Fk[k], Fk[k]))
    A("s_waitcnt lgkmcnt(0)")
    A("v_mul_f32 v%d, v%d, v%d" % (Ls, Fk[0], C + 17))
    O = [T[12], T[13], T[16], T[17]]
    for r in range(4):
        A("v_mul_f32 v%d, v%d, v%d" % (O[r], Fk[0], C + r))
    for k in range(1, 4):
        A("v_fmac_f32 v%d, v%d, v%d" % (Ls, Fk[k], C + 17 + 2 * k))
        for r in range(4):
            A("v_fmac_f32 v%d, v%d, v%d" % (O[r], Fk[k], C + 4 * k + r))
    dpp("v_add_f32", Ls, Ls, Ls, "row_ror:8")
    g.nop(1)
    for r in range(4):
        dpp("v_add_f32", O[r], O[r], O[r], "row_ror:8")
    P0 = T[18]
    A("v_cvt_pk_bf16_f32 v%d, v%d, v%d" % (P0, O[0], O[1]))
    A("v_cvt_pk_bf16_f32 v%d, v%d, v%d" % (P0 + 1, O[2], O[3]))
    A("v_cndmask_b32 v%d, v%d, v%d, vcc" % (P0, P0, Mx))
    A("v_cndmask_b32 v%d, v%d, v%d, vcc" % (P0 + 1, P0 + 1, Ls))
    A("v_min_u32 v%d, -2, v%d" % (P0, P0))
    A("v_min_u32 v%d, -2, v%d" % (P0 + 1, P0 + 1))
    exec_set(0x00ff01ff, 0x00ff00ff)
    A("buffer_store_dwordx2 %s, v%d, %s, 0 offen sc1" % (vr(P0, 2), T[5], srd(rWS)))
    exec_all()
    A("s_setpc_b64 s[%d:%d]" % (sRet, sRet + 1))

    g.lab("L_prep")
    lb2, lbd = g.newlab("b2"), g.newlab("bd")
    if opt.get("nowl"):
        A("s_branch %s" % lbd)
    vr_, vc_, vLW, vTR = T[3], T[4], T[2], T[5]
    A("s_setprio 2")
    A("v_bfe_u32 v%d, v%d, 2, 2" % (vr_, vLane))
    A("v_and_b32 v%d, 3, v%d" % (vc_, vLane))
    A("s_mul_i32 s%d, s%d, %d" % (sLB, sW, LWS))
    A("v_add_u32 v%d, s%d, v%d" % (vLW, sLB, vV))
    A("v_lshrrev_b32 v%d, 3, v%d" % (T[6], vLane))
    A("v_and_b32 v%d, 7, v%d" % (T[7], vLane))
    A("v_lshlrev_b32 v%d, 4, v%d" % (T[7], T[7]))
    lb1 = g.newlab("b1")
    A("s_cmp_lg_u32 s%d, 1" % sRole)
    A("s_cbranch_scc1 %s" % lb1)
    mk_srd(rB, pWO, 4 << 20)
    A("v_lshl_add_u32 v%d, v%d, 10, v%d" % (T[8], T[6], T[7]))
    A("s_and_b32 s%d, s%d, 24" % (sTmp, sH))
    A("s_add_u32 s%d, s%d, s%d" % (sTmp, sTmp, sW))
    A("s_lshl_b32 s%d, s%d, 17" % (sTmp, sTmp))
    A("s_and_b32 s%d, s%d, 7" % (sTmp2, sH))
    A("s_lshl_b32 s%d, s%d, 7" % (sTmp2, sTmp2))
    A("s_add_u32 s%d, s%d, s%d" % (sTmp, sTmp, sTmp2))
    for k in range(16):
        A("buffer_load_dwordx4 %s, v%d, %s, s%d offen %s" % (vr(vW + 4 * k, 4), T[8], srd(rB), sTmp, WNT))
        if k < 15:
            A("s_add_u32 s%d, s%d, 0x2000" % (sTmp, sTmp))
    A("v_lshlrev_b32 v%d, 1, v%d" % (vTR, vG))
    A("v_lshl_add_u32 v%d, v%d, 3, v%d" % (vTR, vr_, vTR))
    A("v_lshlrev_b32 v%d, 7, v%d" % (vTR, vTR))
    A("v_lshl_add_u32 v%d, v%d, 3, v%d" % (vTR, vc_, vTR))
    A("v_add_u32 v%d, s%d, v%d" % (vTR, sLB, vTR))

    def w_transpose(younger):
        for half in range(2):
            A("s_waitcnt vmcnt(%d)" % (younger + (8 if half == 0 else 0)))
            for k in range(8):
                A("ds_write_b128 v%d, %s offset:%d" % (vLW, vr(vW + 32 * half + 4 * k, 4), LW + 1024 * k))
            A("s_waitcnt lgkmcnt(0)")
            for jj in range(2):
                for c in range(4):
                    d = vW + 32 * half + 16 * jj + 4 * c
                    A("ds_read_b64_tr_b16 %s, v%d offset:%d" % (vr(d, 2), vTR, LW + 4096 * jj + 32 * c))
                    A("ds_read_b64_tr_b16 %s, v%d offset:%d" % (vr(d + 2, 2), vTR, LW + 4096 * jj + 32 * c + 128))
            A("s_waitcnt lgkmcnt(0)")

    w_transpose(0)
    A("s_branch %s" % lbd)
    g.lab(lb1)
    A("s_cmp_eq_u32 s%d, 3" % sRole)
    A("s_cbranch_scc1 %s" % lb2)
    mk_srd(rB, pW1, 512 * 2752)
    A("v_mul_u32_u24 v%d, 43, v%d" % (T[6], vLane))
    A("v_lshrrev_b32 v%d, 9, v%d" % (T[6], T[6]))
    A("v_mul_u32_u24 v%d, 12, v%d" % (T[7], T[6]))
    A("v_sub_u32 v%d, v%d, v%d" % (T[7], vLane, T[7]))
    A("v_mul_u32_u24 v%d, 2752, v%d" % (T[8], T[6]))
    A("v_lshl_add_u32 v%d, v%d, 4, v%d" % (T[8], T[7], T[8]))
    A("s_mul_i32 s%d, s%d, %d" % (sTmp, sW, 64 * 2752))
    A("s_mul_i32 s%d, s%d, 176" % (sTmp2, sRA))
    A("s_add_u32 s%d, s%d, s%d" % (sTmp, sTmp, sTmp2))
    stg = W2 + [P + 28]
    for k in range(13):
        A("buffer_load_dwordx4 %s, v%d, %s, s%d offen %s" % (vr(stg[k], 4), T[8], srd(rB), sTmp, WNT))
        if k < 12:
            A("s_add_u32 s%d, s%d, %d" % (sTmp, sTmp, 5 * 2752))
    A("v_and_b32 v%d, 1, v%d" % (T[9], vI))
    A("v_lshlrev_b32 v%d, 10, v%d" % (T[9], T[9]))
    A("v_bfe_u32 v%d, v%d, 1, 1" % (T[10], vI))
    A("v_lshl_add_u32 v%d, v%d, 4, v%d" % (T[10], T[10], T[9]))
    A("v_lshl_add_u32 v%d, v%d, 2, v%d" % (T[10], vG, T[10]))
    A("s_lshl_b32 s%d, s%d, 7" % (sTmp, sW))
    for r in range(4):
        A("buffer_load_dword v%d, v%d, %s, s%d offen offset:%d" % (vXR + r, T[10], srd(rA), sTmp, 32 * r))
    mk_srd(rB, pB1, 2752)
    A("v_lshrrev_b32 v%d, 1, v%d" % (T[10], vG))
    A("v_lshlrev_b32 v%d, 1, v%d" % (T[9], vI))
    A("v_lshl_add_u32 v%d, v%d, 5, v%d" % (T[9], T[10], T[9]))
    A("s_lshl_b32 s%d, s%d, 6" % (sTmp, sW))
    A("s_add_u32 s%d, s%d, s%d" % (sTmp, sTmp, sTmp2))
    A("buffer_load_ushort v%d, v%d, %s, s%d offen" % (vBias, T[9], srd(rB), sTmp))
    A("v_lshlrev_b32 v%d, 1, v%d" % (vTR, vG))
    A("v_lshl_add_u32 v%d, v%d, 4, v%d" % (vTR, vr_, vTR))
    A("v_mul_u32_u24 v%d, 192, v%d" % (vTR, vTR))
    A("v_lshl_add_u32 v%d, v%d, 3, v%d" % (vTR, vc_, vTR))
    A("v_add_u32 v%d, s%d, v%d" % (vTR, sLB, vTR))
    A("s_waitcnt vmcnt(0)")
    for k in range(13):
        A("ds_write_b128 v%d, %s offset:%d" % (vLW, vr(stg[k], 4), LW + 960 * k))
    A("s_waitcnt lgkmcnt(0)")
    for jj in range(2):
        for c in range(6):
            d = W2[6 * jj + c]
            A("ds_read_b64_tr_b16 %s, v%d offset:%d" % (vr(d, 2), vTR, LW + 1536 * jj + 32 * c))
            A("ds_read_b64_tr_b16 %s, v%d offset:%d" % (vr(d + 2, 2), vTR, LW + 1536 * jj + 32 * c + 192))
    for r in range(4):
        A("v_lshlrev_b32 v%d, 16, v%d" % (XF + r, vXR + r))
        A("v_and_b32 v%d, 0xffff0000, v%d" % (XF + 4 + r, vXR + r))
    A("v_lshlrev_b32 v%d, 16, v%d" % (vBias, vBias))
    for d in range(4):
        A("v_mov_b32 v%d, 0x3f803f80" % (vBa + d))
    A("s_waitcnt lgkmcnt(0)")
    for c in range(6):
        mfma(P + 4 * c, vBa, W2[c], None)
    for c in range(6):
        mfma(P + 4 * c, vBa, W2[6 + c], P + 4 * c)
    A("s_lshl_b32 s%d, s%d, 2" % (sTmp, sW))
    A("v_lshlrev_b32 v%d, 5, v%d" % (T[2], vI))
    A("v_add_u32 v%d, s%d, v%d" % (T[2], sTmp, T[2]))
    g.nop(8)
    for c in range(6):
        A("ds_write_b32 v%d, v%d offset:%d" % (T[2], P + 4 * c, LCS + 512 * c))
    A("s_waitcnt lgkmcnt(0)")
    A("s_branch %s" % lbd)
    g.lab(lb2)
    mk_srd(rB, pW2, 1376 * 1024)
    A("v_lshrrev_b32 v%d, 2, v%d" % (T[8], vLane))
    A("v_lshlrev_b32 v%d, 10, v%d" % (T[8], T[8]))
    A("v_lshl_add_u32 v%d, v%d, 4, v%d" % (T[8], vc_, T[8]))
    A("s_lshl_b32 s%d, s%d, 15" % (sTmp, sW))
    A("s_lshl_b32 s%d, s%d, 6" % (sTmp2, sRA))
    A("s_add_u32 s%d, s%d, s%d" % (sTmp, sTmp, sTmp2))
    for k in range(6):
        A("buffer_load_dwordx4 %s, v%d, %s, s%d offen %s" % (vr(W2[2 * k], 4), T[8], srd(rB), sTmp, WNT))
        A("s_add_u32 s%d, s%d, 0x4000" % (sTmp, sTmp))
        A("buffer_load_dwordx4 %s, v%d, %s, s%d offen %s" % (vr(W2[2 * k + 1], 4), T[8], srd(rB), sTmp, WNT))
        if k < 5:
            A("s_add_u32 s%d, s%d, 0x3c000" % (sTmp, sTmp))
    A("v_lshrrev_b32 v%d, 1, v%d" % (T[10], vG))
    A("v_lshlrev_b32 v%d, 1, v%d" % (T[9], vI))
    A("v_lshl_add_u32 v%d, v%d, 5, v%d" % (T[9], T[10], T[9]))
    A("v_and_b32 v%d, 1, v%d" % (T[10], vG))
    A("v_lshl_add_u32 v%d, v%d, 10, v%d" % (T[10], T[10], T[9]))
    A("buffer_load_ushort v%d, v%d, %s, s%d offen" % (vXs, T[10], srd(rA), sTmp2))
    mk_srd(rB, pB2, 1024)
    A("buffer_load_ushort v%d, v%d, %s, s%d offen" % (vBias, T[9], srd(rB), sTmp2))
    A("v_lshl_add_u32 v%d, v%d, 3, v%d" % (vTR, vG, vr_))
    A("v_lshlrev_b32 v%d, 6, v%d" % (vTR, vTR))
    A("v_lshl_add_u32 v%d, v%d, 3, v%d" % (vTR, vc_, vTR))
    A("v_add_u32 v%d, s%d, v%d" % (vTR, sLB, vTR))
    A("s_waitcnt vmcnt(0)")
    for k in range(12):
        A("ds_write_b128 v%d, %s offset:%d" % (vLW, vr(W2[k], 4), LW + 1024 * k))
    A("s_waitcnt lgkmcnt(0)")
    for k in range(6):
        for c in range(2):
            d = W2[2 * k + c]
            A("ds_read_b64_tr_b16 %s, v%d offset:%d" % (vr(d, 2), vTR, LW + 2048 * k + 32 * c))
            A("ds_read_b64_tr_b16 %s, v%d offset:%d" % (vr(d + 2, 2), vTR, LW + 2048 * k + 32 * c + 256))
    A("v_lshlrev_b32 v%d, 16, v%d" % (vXs, vXs))
    A("v_lshlrev_b32 v%d, 16, v%d" % (vBias, vBias))
    A("s_waitcnt lgkmcnt(0)")
    g.lab(lbd)
    A("s_setprio 0")
    A("s_setpc_b64 s[%d:%d]" % (sRet, sRet + 1))
    g.lab("L_codeend")

    tail = ['.section .rodata,"a"', ".p2align 6", ".amdhsa_kernel %s_kernel" % NAME,
            "  .amdhsa_next_free_vgpr 256", "  .amdhsa_next_free_sgpr 102", "  .amdhsa_accum_offset 256",
            "  .amdhsa_group_segment_fixed_size 0", "  .amdhsa_kernarg_size 104", "  .amdhsa_user_sgpr_count 2",
            "  .amdhsa_user_sgpr_kernarg_segment_ptr 1", "  .amdhsa_system_sgpr_workgroup_id_x 1",
            "  .amdhsa_float_denorm_mode_32 3", ".end_amdhsa_kernel"]
    return "\n".join(hdr + g.L + tail) + "\n"


if __name__ == "__main__":
    out = sys.argv[1]
    opt = {}
    for a in sys.argv[2:]:
        k, _, v = a.partition("=")
        opt[k] = v if v else True
    open(out, "w").write(gen(opt))
```

```python
import sys, struct

NAME = "sequential_preLN__mha_block_cached__dense_activation_gelu__decode"


def f32(x):
    return "0x%08x" % struct.unpack("<I", struct.pack("<f", x))[0]


WS_OP = 0x00000
WS_AP = 0x20000
WS_APL = 0x24000
WS_G = 0x28000
WS_GL = 0x2a000
WS_ST = 0x30000
WS_TK = 0x40000
WS_EP = 0x44000
WS_QF = 0x48000
WS_QP = 0x80000
WS_TS = 0x100000
WS_BYTES = 0x10000000

LR = 0
LR2 = 8192
LQF = 14336
LML = 14848
LCNT = 14976
LST = 15040
LCS = 15360
LC = 18432
LW = 34816
LWS = 13312
LDS_BYTES = LW + 8 * LWS

POLL_LIMIT = 1 << 18
DPPALL = "row_mask:0xf bank_mask:0xf"


class G:
    def __init__(self, opt):
        self.L = []
        self.opt = opt
        self.nlab = 0

    def __call__(self, s):
        self.L.append("    " + s)

    def lab(self, name):
        self.L.append(name + ":")

    def newlab(self, base):
        self.nlab += 1
        return "L_%s_%d" % (base, self.nlab)

    def nop(self, n):
        while n > 0:
            k = min(n, 16)
            self("s_nop %d" % (k - 1))
            n -= k

    def ts(self, idx):
        if self.opt.get("ts"):
            self("s_memrealtime s[76:77]")
            self("s_waitcnt lgkmcnt(0)")
            self("s_mov_b32 s%d, s76" % (80 + idx))


def vr(a, n=1):
    return "v%d" % a if n == 1 else "v[%d:%d]" % (a, a + n - 1)


def gen(opt):
    g = G(opt)
    A = g
    NT = opt.get("nt", "nt")
    WNT = opt.get("wnt", "nt")
    NPF = int(opt.get("npf", 3))
    PACE = int(opt.get("pace", 2))
    NS = int(opt.get("ns", 35))
    TAP = int(opt.get("tap", 0))
    ROT = int(opt.get('rot', 8))
    NP0 = 7 * NPF + 1
    assert NS >= NP0 and 5 * NS + 24 <= 256
    NA = 256 - 5 * NS - 24
    NL = NA + 256
    vLane, vI, vG = 1, 2, 3
    vKX, vKY, vV, vTkA = 4, 5, 6, 7
    vMask = 8
    vQ0, vQ1, vSel = 12, 16, 16
    vAcc, vM, vL = 20, 24, 25
    T = list(range(26, 48))
    vBa, vBb = 48, 52
    vH = 57
    vXR, vBias, vXs = 58, 62, 63
    P = 64
    PL = 112
    XF = 120
    SB = 128
    vW = SB + 32
    W2 = [SB + 96 + 4 * k for k in range(8)] + [96 + 4 * k for k in range(4)]
    sW, sH, sT, sBA = 3, 4, 5, 6
    sTmp, sTmp2, sPh, sNext, sOff = 7, 8, 9, 10, 11
    sHB, sCnt, sRole, sRA = 12, 13, 14, 15
    pX, pK, pV, pWQ, pWO, pW1, pB1, pW2, pB2, pOUT, pDBG, pWS = 16, 18, 20, 22, 24, 28, 30, 32, 34, 36, 38, 40
    sLB, sQU = 42, 43
    rK, rV, rWS, rA, rB, rDBG = 44, 48, 52, 56, 60, 64
    sScale, sL2E = 68, 69
    sMi1, sRet, sMg1 = 70, 72, 74
    sCB, sSBW, sTag, sPo = 94, 95, 96, 97
    sTkA = 98
    sDry, sOS = 100, 101
    DRY = bool(opt.get('dry'))

    def srd(r):
        return "s[%d:%d]" % (r, r + 3)

    def mk_srd(r, p, nbytes):
        A("s_mov_b32 s%d, s%d" % (r, p))
        A("s_and_b32 s%d, s%d, 0xffff" % (r + 1, p + 1))
        A("s_mov_b32 s%d, 0x%x" % (r + 2, nbytes))
        A("s_mov_b32 s%d, 0x20000" % (r + 3))

    def exec_set(lo, hi=0):
        A("s_mov_b32 exec_lo, 0x%x" % lo)
        A("s_mov_b32 exec_hi, 0x%x" % hi)

    def exec_all():
        A("s_mov_b64 exec, -1")

    def bf16_round(dst, src):
        A("v_cvt_pk_bf16_f32 v%d, v%d, v%d" % (dst, src, src))
        A("v_and_b32 v%d, 0xffff0000, v%d" % (dst, dst))

    def dpp(op, dst, src0, src1, ctrl, bank="0xf"):
        A("%s_dpp v%d, v%d, v%d %s row_mask:0xf bank_mask:%s" % (op, dst, src0, src1, ctrl, bank))

    def multi_xrow(kind, op, xs, ts):
        ins = "v_permlane16_swap_b32" if kind == 16 else "v_permlane32_swap_b32"
        for x, t in zip(xs, ts):
            A("v_mov_b32 v%d, v%d" % (t, x))
        g.nop(2 if len(xs) < 3 else 1)
        for x, t in zip(xs, ts):
            A("%s v%d, v%d" % (ins, x, t))
        g.nop(1)
        for x, t in zip(xs, ts):
            A("%s v%d, v%d, v%d" % (op, x, x, t))

    def xrow16(op, x, t):
        multi_xrow(16, op, [x], [t])

    def xrow32(op, x, t):
        multi_xrow(32, op, [x], [t])

    def mfma(d, a, b, c):
        A("v_mfma_f32_16x16x32_bf16 %s, %s, %s, %s" % (vr(d, 4), vr(a, 4), vr(b, 4), "0" if c is None else vr(c, 4)))

    def issue_K(kb, soff):
        A("buffer_load_dwordx4 %s, v%d, %s, s%d offen %s" % (vr(kb, 4), vKX, srd(rK), soff, NT))
        A("buffer_load_dwordx4 %s, v%d, %s, s%d offen offset:1024 %s" % (vr(kb + 4, 4), vKX, srd(rK), soff, NT))
        A("buffer_load_dwordx4 %s, v%d, %s, s%d offen %s" % (vr(kb + 8, 4), vKY, srd(rK), soff, NT))
        A("buffer_load_dwordx4 %s, v%d, %s, s%d offen offset:1024 %s" % (vr(kb + 12, 4), vKY, srd(rK), soff, NT))

    def issue_V(vb, soff):
        for j in range(4):
            A("buffer_load_dwordx4 %s, v%d, %s, s%d offen offset:%d %s" % (vr(vb + 4 * j, 4), vV, srd(rV), soff, 1024 * j, NT))

    def ln_scalars(vmean, vvar):
        bf16_round(vmean, vmean)
        bf16_round(vvar, vvar)
        A("v_add_f32 v%d, %s, v%d" % (vvar, f32(1e-5), vvar))
        bf16_round(vvar, vvar)
        A("v_sqrt_f32 v%d, v%d" % (vvar, vvar))
        g.nop(1)
        bf16_round(vvar, vvar)

    def div_refined(q, a, b, rb, t):
        A("v_mul_f32 v%d, v%d, v%d" % (q, a, rb))
        A("v_fma_f32 v%d, -v%d, v%d, v%d" % (t, q, b, a))
        A("v_fmac_f32 v%d, v%d, v%d" % (q, t, rb))

    def sentinel_check(regs, t, lab_ok):
        regs = list(regs)
        cur = None
        while regs:
            if cur is None:
                A("v_max3_u32 v%d, v%d, v%d, v%d" % (t, regs[0], regs[1], regs[2]))
                regs = regs[3:]
                cur = t
            elif len(regs) >= 2:
                A("v_max3_u32 v%d, v%d, v%d, v%d" % (t, t, regs[0], regs[1]))
                regs = regs[2:]
            else:
                A("v_max_u32 v%d, v%d, v%d" % (t, t, regs[0]))
                regs = []
        A("v_cmp_eq_u32 vcc, -1, v%d" % t)
        A("s_cbranch_vccz %s" % lab_ok)

    def poll(loads, regs, t, name, toggle=None):
        lp, lok = g.newlab(name + "p"), g.newlab(name + "ok")
        if toggle:
            A("s_mov_b32 s%d, s%d" % (sLB, toggle[0]))
        g.lab(lp)
        loads()
        if toggle:
            A("s_and_b32 s%d, s%d, %d" % (sNext, sCnt, int(opt.get("lr", 7))))
            A("s_cselect_b32 s%d, 0, 0x%x" % (sNext, toggle[1]))
            A("s_xor_b32 s%d, s%d, s%d" % (toggle[0], sLB, sNext))
        A("s_waitcnt vmcnt(0)")
        sentinel_check(regs, t, lok)
        A("s_mov_b64 exec, vcc")
        A("s_sub_u32 s%d, s%d, 1" % (sCnt, sCnt))
        A("s_cmp_gt_i32 s%d, 0" % sCnt)
        A("s_cbranch_scc1 %s" % lp)
        g.lab(lok)
        exec_all()

    def tail_barrier():
        if DRY:
            lb_ = g.newlab("nb")
            A("s_cmp_eq_u32 s%d, 1" % sDry)
            A("s_cbranch_scc1 %s" % lb_)
            A("s_barrier")
            g.lab(lb_)
        else:
            A("s_barrier")

    hdr = ["; generated by work/gen14.py - fused preLN + cached MHA decode + GELU FFN, one persistent launch",
           "; @launch grid=(256,1,1) block=(512,1,1) lds=%d" % LDS_BYTES,
           '.amdgcn_target "amdgcn-amd-amdhsa--gfx950"', ".text", ".globl %s_kernel" % NAME, ".p2align 8",
           ".type %s_kernel,@function" % NAME, "%s_kernel:" % NAME]

    vFl, vFA = T[20], T[21]
    A("s_cmp_ge_u32 s2, 256")
    A("s_cbranch_scc1 L_end")
    A("s_load_dwordx16 s[16:31], s[0:1], 0")
    A("s_load_dwordx8 s[32:39], s[0:1], 64")
    A("s_load_dwordx2 s[40:41], s[0:1], 96")
    if opt.get("ts"):
        A("s_memrealtime s[78:79]")
    A("v_and_b32 v%d, 63, v0" % vLane)
    A("v_lshrrev_b32 v%d, 6, v0" % T[0])
    A("v_lshlrev_b32 v%d, 4, v%d" % (vV, vLane))
    A("v_readfirstlane_b32 s%d, v%d" % (sW, T[0]))
    for k in range(4):
        A("v_mov_b32 v%d, 0" % (T[6] + k))
    A("ds_write_b128 v%d, %s offset:%d" % (T[6], vr(T[6], 4), LCNT))
    if not opt.get("nopf"):
        lpf = g.newlab("nopf")
        A("s_cmp_lt_u32 s%d, 4" % sW)
        A("s_cbranch_scc1 %s" % lpf)
        A("s_getpc_b64 s[%d:%d]" % (rB, rB + 1))
        g.lab("L_pcref")
        A("s_sub_u32 s%d, s%d, L_pcref-%s_kernel" % (rB, rB, NAME))
        A("s_subb_u32 s%d, s%d, 0" % (rB + 1, rB + 1))
        A("s_and_b32 s%d, s%d, 0xffff" % (rB + 1, rB + 1))
        A("s_mov_b32 s%d, L_codeend-%s_kernel" % (rB + 2, NAME))
        A("s_mov_b32 s%d, 0x20000" % (rB + 3))
        A("s_sub_u32 s%d, s%d, 4" % (sTmp, sW))
        A("s_lshl_b32 s%d, s%d, 12" % (sTmp, sTmp))
        for k in range(4):
            A("buffer_load_dwordx4 %s, v%d, %s, s%d offen offset:%d" % (vr(P + 4 * k, 4), vV, srd(rB), sTmp, 1024 * k))
        g.lab(lpf)
    A("v_and_b32 v%d, 8, v0" % T[1])
    A("v_lshlrev_b32 v%d, 8, v%d" % (T[1], T[1]))
    A("v_add_u32 v%d, v%d, v%d" % (vKX, vV, T[1]))
    A("v_sub_u32 v%d, v%d, v%d" % (vKY, vV, T[1]))
    A("v_add_u32 v%d, 0x800, v%d" % (vKY, vKY))
    A("v_and_b32 v%d, 15, v0" % vI)
    A("v_bfe_u32 v%d, v0, 4, 2" % vG)
    A("s_lshr_b32 s%d, s2, 3" % sH)
    A("s_and_b32 s%d, s2, 7" % sT)
    sLt = sOS
    A("s_cmp_lt_u32 s%d, 5" % sT)
    A("s_cselect_b32 s%d, 1, 0" % sLt)
    A("s_andn2_b32 s%d, s%d, s%d" % (sLt, sLt, sT))
    A("s_sub_u32 s%d, s%d, 1" % (sSBW, sT))
    A("s_cmp_gt_u32 s%d, 2" % sT)
    A("s_subb_u32 s%d, s%d, 0" % (sSBW, sSBW))
    A("s_cmp_gt_u32 s%d, 4" % sT)
    A("s_subb_u32 s%d, s%d, 0" % (sSBW, sSBW))
    A("s_mul_i32 s%d, s%d, %d" % (sSBW, sSBW, NS))
    A("s_lshl_b32 s%d, s%d, 2" % (sTmp2, sT))
    A("s_add_u32 s%d, s%d, %d" % (sTmp2, sTmp2, 5 * NS + 1))
    A("s_cmp_eq_u32 s%d, 1" % sLt)
    A("s_cselect_b32 s%d, s%d, s%d" % (sSBW, sTmp2, sSBW))
    A("s_cselect_b32 s%d, -1, %d" % (sQU, 7 * NPF))
    sH0 = sDry
    A("s_mul_i32 s%d, s%d, %d" % (sTmp, sH, ROT))
    A("s_add_u32 s%d, s%d, s%d" % (sSBW, sSBW, sTmp))
    A("s_add_u32 s%d, s%d, s%d" % (sQU, sQU, sSBW))
    A("s_lshl_b32 s%d, s%d, 20" % (sH0, sH))
    if opt.get("bswap"):
        A("s_and_b32 s%d, s%d, 1" % (sTmp, sH))
        A("s_lshl_b32 s%d, s%d, 25" % (sTmp, sTmp))
        A("s_add_u32 s%d, s%d, s%d" % (sH0, sH0, sTmp))
    A("s_lshl_b32 s%d, s%d, 12" % (sSBW, sSBW))
    A("s_lshl_b32 s%d, s%d, 12" % (sQU, sQU))
    A("s_and_b32 s%d, s%d, 0xfffff" % (sQU, sQU))
    A("s_add_u32 s%d, s%d, s%d" % (sQU, sQU, sH0))
    A("v_cmp_eq_u32 vcc, 0, v%d" % vLane)
    A("v_mov_b32 v%d, 0x%x" % (T[5], WS_BYTES))
    A("s_sub_u32 s%d, s%d, 1" % (sTmp, sW))
    A("s_lshl_b32 s%d, s%d, 12" % (sTmp, sTmp))
    A("s_add_u32 s%d, s%d, s%d" % (sNext, sSBW, sTmp))
    A("s_and_b32 s%d, s%d, 0xfffff" % (sOff, sNext))
    A("s_add_u32 s%d, s%d, s%d" % (sOff, sOff, sH0))
    A("v_cndmask_b32 v%d, v%d, 0, vcc" % (vTkA, T[5]))
    A("s_waitcnt lgkmcnt(0)")
    mk_srd(rK, pK, 64 << 20)
    mk_srd(rV, pV, 64 << 20)
    mk_srd(rWS, pWS, WS_BYTES)
    mk_srd(rDBG, pDBG, 256)
    lQ, lsetup, lq2, lwaitq = g.newlab("qpath"), g.newlab("setup"), g.newlab("q2"), g.newlab("waitq")
    A("s_cmp_eq_u32 s%d, 0" % sW)
    A("s_cbranch_scc1 %s" % lQ)
    lsk, lpre = g.newlab("skipclr"), g.newlab("pre")
    A("s_cmp_lg_u32 s%d, 4" % sT)
    A("s_cbranch_scc1 %s" % lsk)
    A("s_cmp_lg_u32 s%d, 1" % sW)
    A("s_cbranch_scc1 %s" % lsk)
    CV = T[8]
    for k in range(4):
        A("v_mov_b32 v%d, -1" % (CV + k))
    A("v_mov_b32 v%d, 0" % T[12])
    A("v_mov_b32 v%d, 1" % T[13])
    A("s_mul_i32 s%d, s%d, 6144" % (sTmp, sH))
    A("s_add_u32 s%d, s%d, 4096" % (sTmp2, sTmp))
    for k in range(6):
        A("buffer_store_dwordx4 %s, v%d, %s, s%d offen offset:%d sc1" % (vr(CV, 4), vV, srd(rWS), sTmp if k < 4 else sTmp2, 1024 * (k & 3)))
    A("s_lshl_b32 s%d, s%d, 11" % (sTmp, sH))
    A("s_add_u32 s%d, s%d, 0x%x" % (sTmp, sTmp, WS_ST))
    A("v_lshlrev_b32 v%d, 7, v%d" % (T[14], vLane))
    exec_set(0xffff)
    A("buffer_store_dwordx2 %s, v%d, %s, s%d offen sc1" % (vr(CV, 2), T[14], srd(rWS), sTmp))
    exec_all()
    A("s_lshl_b32 s%d, s%d, 8" % (sTmp, sH))
    A("s_add_u32 s%d, s%d, 0x%x" % (sTmp, sTmp, WS_TK))
    A("buffer_store_dword v%d, v%d, %s, s%d offen sc1" % (T[12], vTkA, srd(rWS), sTmp))
    A("s_lshl_b32 s%d, s%d, 2" % (sTmp, sH))
    A("s_add_u32 s%d, s%d, 128" % (sTmp, sTmp))
    A("s_barrier")
    A("s_waitcnt vmcnt(0)")
    A("buffer_store_dword v%d, v%d, %s, s%d offen sc1" % (T[13], vTkA, srd(rDBG), sTmp))
    A("s_branch %s" % lpre)
    g.lab(lsk)
    A("s_barrier")
    g.lab(lpre)
    A("s_cmp_eq_u32 s%d, 1" % sLt)
    A("s_cbranch_scc1 %s" % lsetup)
    B0N = int(opt.get("b0n", 1))
    n_ = 0
    for k in range(NPF):
        bb = SB + 32 * k
        for kind in ("K", "V"):
            if n_ == B0N:
                A("s_barrier")
            elif n_ > B0N:
                A("s_waitcnt vmcnt(%d)" % PACE)
            if kind == "K":
                issue_K(bb, sOff)
            else:
                issue_V(bb + 16, sOff)
            n_ += 1
        if k < NPF - 1:
            A("s_add_u32 s%d, s%d, 0x7000" % (sNext, sNext))
            A("s_and_b32 s%d, s%d, 0xfffff" % (sOff, sNext))
            A("s_add_u32 s%d, s%d, s%d" % (sOff, sOff, sH0))
    A("s_branch %s" % lsetup)

    g.lab(lQ)
    A("s_setprio 3")
    A("s_load_dword s%d, s[%d:%d], 0x%x" % (sTag, pWS, pWS + 1, WS_EP))
    mk_srd(rA, pX, 2048)
    mk_srd(rB, pWQ, 4 << 20)
    vWQ = 64
    vXA, vXE = SB + 96, SB + 104
    F = [SB + 108 + k for k in range(16)]
    vAx, vAxe, vAwq = T[2], T[3], T[4]
    A("v_lshlrev_b32 v%d, 5, v%d" % (vAx, vLane))
    A("buffer_load_dwordx4 %s, v%d, %s, 0 offen" % (vr(vXA, 4), vAx, srd(rA)))
    A("buffer_load_dwordx4 %s, v%d, %s, 0 offen offset:16" % (vr(vXA + 4, 4), vAx, srd(rA)))
    A("v_lshl_add_u32 v%d, v%d, 2, v%d" % (vAxe, vI, vG))
    A("v_lshlrev_b32 v%d, 1, v%d" % (vAxe, vAxe))
    A("s_lshl_b32 s%d, s%d, 7" % (sTmp, sT))
    A("buffer_load_ushort v%d, v%d, %s, s%d offen" % (vXE, vAxe, srd(rA), sTmp))
    A("buffer_load_ushort v%d, v%d, %s, s%d offen offset:1024" % (vXE + 1, vAxe, srd(rA), sTmp))
    A("v_lshlrev_b32 v%d, 13, v%d" % (vAwq, vG))
    A("v_lshl_add_u32 v%d, v%d, 4, v%d" % (vAwq, vI, vAwq))
    A("s_lshl_b32 s%d, s%d, 19" % (sTmp, sT))
    A("s_lshl_b32 s%d, s%d, 8" % (sTmp2, sH))
    A("s_add_u32 s%d, s%d, s%d" % (sTmp, sTmp, sTmp2))
    for j in range(16):
        A("buffer_load_dwordx4 %s, v%d, %s, s%d offen %s" % (vr(vWQ + 4 * j, 4), vAwq, srd(rB), sTmp, WNT))
        if j < 15:
            A("s_add_u32 s%d, s%d, 0x8000" % (sTmp, sTmp))
    if opt.get("late"):
        A("s_waitcnt vmcnt(%d)" % int(opt.get("late")))
    A("s_barrier")

    g.lab(lsetup)
    if opt.get("ts"):
        A("s_mov_b32 s80, s78")
        for k in range(81, 94):
            A("s_mov_b32 s%d, 0" % k)
    mk_srd(rA, pX, 2048)
    A("s_lshl_b32 s%d, s%d, 8" % (sTmp, sH))
    A("s_add_u32 s%d, s%d, 0x%x" % (sTmp, sTmp, WS_TK))
    A("s_add_u32 s%d, s%d, s%d" % (sTkA, pWS, sTmp))
    A("s_addc_u32 s%d, s%d, 0" % (sTkA + 1, pWS + 1))
    A("s_mul_i32 s%d, s%d, %d" % (sBA, sH, ROT))
    A("s_add_u32 s%d, s%d, %d" % (sBA, sBA, 256 - NA))
    A("s_xor_b32 s%d, s%d, 0x2000000" % (sHB, sH0))
    A("s_mov_b32 s%d, %s" % (sScale, f32(128 ** -0.5)))
    A("s_mov_b32 s%d, %s" % (sL2E, f32(1.4426950408889634)))
    A("s_mov_b32 s%d, %d" % (sCnt, POLL_LIMIT))
    A("s_and_b32 s%d, s%d, 15" % (sRA, sH))
    A("s_cmp_lt_u32 s%d, 16" % sH)
    A("s_cselect_b32 s%d, 2, 3" % sRole)
    A("s_cmp_eq_u32 s%d, 2" % sT)
    A("s_cselect_b32 s%d, s%d, 0" % (sRole, sRole))
    A("s_cmp_eq_u32 s%d, 0" % sT)
    A("s_cselect_b32 s%d, 1, s%d" % (sRole, sRole))
    A("v_and_b32 v%d, 1, v%d" % (T[2], vG))
    A("v_cmp_eq_u32 s[%d:%d], 1, v%d" % (sMg1, sMg1 + 1, T[2]))
    A("v_and_b32 v%d, 1, v0" % T[3])
    A("v_cmp_eq_u32 s[%d:%d], 1, v%d" % (sMi1, sMi1 + 1, T[3]))
    A("v_lshlrev_b32 v%d, 4, v%d" % (T[3], T[3]))
    A("v_mov_b32 v%d, 0xffff" % T[4])
    A("v_lshlrev_b32 v%d, v%d, v%d" % (T[4], T[3], T[4]))
    A("v_bfe_u32 v%d, v0, 1, 2" % T[5])
    for d in range(4):
        A("v_cmp_eq_u32 vcc, %d, v%d" % (d, T[5]))
        g.nop(2)
        A("v_cndmask_b32 v%d, 0, v%d, vcc" % (vMask + d, T[4]))
    A("s_cmp_eq_u32 s%d, 0" % sW)
    A("s_cbranch_scc1 %s" % lq2)
    A("s_cmp_eq_u32 s%d, 0" % sLt)
    A("s_cbranch_scc1 %s" % lwaitq)
    A("s_barrier")
    issue_K(SB, sOff)
    issue_V(SB + 16, sOff)
    A("s_cmp_eq_u32 s%d, 0" % sRole)
    A("s_cbranch_scc1 %s" % lwaitq)
    A("s_call_b64 s[%d:%d], L_prep" % (sRet, sRet + 1))
    A("s_branch %s" % lwaitq)

    g.lab(lq2)
    A("v_and_b32 v%d, 31, v%d" % (vFA, vLane))
    A("v_lshlrev_b32 v%d, 2, v%d" % (vFA, vFA))
    A("v_lshrrev_b32 v%d, 3, v%d" % (T[6], vI))
    A("v_mul_u32_u24 v%d, 0x0202, v%d" % (T[6], T[6]))
    A("v_add_u32 v%d, 0x0100, v%d" % (T[6], T[6]))
    A("v_lshl_or_b32 v%d, v%d, 16, v%d" % (T[6], T[6], T[6]))
    A("v_mov_b32 v%d, 0x0c0c0c0c" % T[7])
    for d in range(4):
        A("v_bfi_b32 v%d, v%d, v%d, v%d" % (vSel + d, vMask + d, T[6], T[7]))
    A("s_waitcnt vmcnt(18)")
    for k in range(8):
        A("v_lshlrev_b32 v%d, 16, v%d" % (F[2 * k], vXA + k))
        A("v_and_b32 v%d, 0xffff0000, v%d" % (F[2 * k + 1], vXA + k))
    S = T[0:8]
    for k in range(8):
        A("v_add_f32 v%d, v%d, v%d" % (S[k], F[2 * k], F[2 * k + 1]))
    for st in (4, 2, 1):
        for k in range(st):
            A("v_add_f32 v%d, v%d, v%d" % (S[k], S[k], S[k + st]))

    def reduce32_add(x, t):
        for ctrl in ("quad_perm:[1,0,3,2]", "quad_perm:[2,3,0,1]", "row_half_mirror", "row_mirror"):
            g.nop(2)
            dpp("v_add_f32", x, x, x, ctrl)
        xrow16("v_add_f32", x, t)

    vMean, vVar = T[8], T[9]
    reduce32_add(S[0], T[10])
    A("v_mul_f32 v%d, %s, v%d" % (vMean, f32(1.0 / 512), S[0]))
    for k in range(16):
        A("v_sub_f32 v%d, v%d, v%d" % (F[k], F[k], vMean))
    for k in range(4):
        A("v_mul_f32 v%d, v%d, v%d" % (S[k], F[k], F[k]))
    for k in range(4, 16):
        A("v_fmac_f32 v%d, v%d, v%d" % (S[k & 3], F[k], F[k]))
    A("v_add_f32 v%d, v%d, v%d" % (S[0], S[0], S[1]))
    A("v_add_f32 v%d, v%d, v%d" % (S[2], S[2], S[3]))
    A("v_add_f32 v%d, v%d, v%d" % (S[0], S[0], S[2]))
    reduce32_add(S[0], T[10])
    A("v_mul_f32 v%d, %s, v%d" % (vVar, f32(1.0 / 512), S[0]))
    ln_scalars(vMean, vVar)
    A("v_mov_b32 v%d, v%d" % (T[10], vMean))
    A("v_mov_b32 v%d, v%d" % (T[11], vVar))
    g.nop(2)
    A("v_permlane32_swap_b32 v%d, v%d" % (vMean, T[10]))
    A("v_permlane32_swap_b32 v%d, v%d" % (vVar, T[11]))
    g.nop(1)
    A("v_rcp_f32 v%d, v%d" % (T[12], vVar))
    A("v_rcp_f32 v%d, v%d" % (T[13], T[11]))
    A("s_waitcnt vmcnt(16)")
    xn = [T[14], T[15]]
    vXN = T[18]
    for b in range(2):
        mm_, ss_, rr_ = (vMean, vVar, T[12]) if b == 0 else (T[10], T[11], T[13])
        A("v_lshlrev_b32 v%d, 16, v%d" % (T[16], vXE + b))
        A("v_sub_f32 v%d, v%d, v%d" % (T[16], T[16], mm_))
        bf16_round(T[16], T[16])
        div_refined(xn[b], T[16], ss_, rr_, T[17])
    A("v_cvt_pk_bf16_f32 v%d, v%d, v%d" % (vXN, xn[0], xn[1]))
    A("s_waitcnt lgkmcnt(0)")
    A("s_add_u32 s%d, s%d, 1" % (sTag, sTag))
    for j in range(16):
        B = vBa if j % 2 == 0 else vBb
        A("v_mov_b32_dpp v%d, v%d row_newbcast:%d %s" % (T[0], vXN, j, DPPALL))
        for d in range(4):
            A("v_perm_b32 v%d, v%d, v%d, v%d" % (B + d, T[0], T[0], vSel + d))
        A("s_waitcnt vmcnt(%d)" % (15 - j))
        g.nop(1)
        mfma(vAcc, vWQ + 4 * j, B, None if j == 0 else vAcc)
    A("v_lshrrev_b32 v%d, 3, v%d" % (T[4], vI))
    A("v_lshlrev_b32 v%d, 8, v%d" % (T[4], T[4]))
    A("v_lshl_add_u32 v%d, v%d, 6, v%d" % (T[4], vG, T[4]))
    A("v_and_b32 v%d, 7, v%d" % (T[5], vI))
    A("v_lshl_add_u32 v%d, v%d, 1, v%d" % (T[4], T[5], T[4]))
    A("s_lshl_b32 s%d, s2, 11" % sTmp)
    A("s_add_u32 s%d, s%d, 0x%x" % (sTmp, sTmp, WS_QP))
    A("s_lshl_b32 s%d, s%d, 14" % (sTmp2, sH))
    A("s_add_u32 s%d, s%d, 0x%x" % (sTmp2, sTmp2, WS_QP))
    QS = T[6]
    for r in range(4):
        A("v_mov_b32 v%d, s%d" % (QS + 2 * r + 1, sTag))
    for r in range(4):
        A("v_mov_b32 v%d, v%d" % (QS + 2 * r, vAcc + r))
    A("buffer_store_dwordx4 %s, v%d, %s, s%d offen sc1" % (vr(QS, 4), vV, srd(rWS), sTmp))
    A("buffer_store_dwordx4 %s, v%d, %s, s%d offen offset:1024 sc1" % (vr(QS + 4, 4), vV, srd(rWS), sTmp))
    g.ts(2)
    lqf, lqdone = g.newlab("qf"), g.newlab("qdone")
    A("v_lshlrev_b32 v%d, 3, v%d" % (T[19], vLane))
    A("s_cmp_lg_u32 s%d, 4" % sT)
    A("s_cbranch_scc1 %s" % lqf)
    lp, lok = g.newlab("qp"), g.newlab("qok")
    sPend = sPh
    QR = 64
    A("s_mov_b32 s%d, 0x1ff" % sPend)
    g.lab(lp)
    for k in range(8):
        lk = g.newlab("qs")
        A("s_bitcmp0_b32 s%d, %d" % (sPend, k))
        A("s_cbranch_scc1 %s" % lk)
        A("s_add_u32 s%d, s%d, %d" % (sOff, sTmp2, 2048 * k))
        A("buffer_load_dwordx4 %s, v%d, %s, s%d offen sc1" % (vr(QR + 8 * k, 4), vV, srd(rWS), sOff))
        A("buffer_load_dwordx4 %s, v%d, %s, s%d offen offset:1024 sc1" % (vr(QR + 8 * k + 4, 4), vV, srd(rWS), sOff))
        g.lab(lk)
    lk = g.newlab("qs")
    A("s_bitcmp0_b32 s%d, 8" % sPend)
    A("s_cbranch_scc1 %s" % lk)
    A("buffer_load_dword v%d, v%d, %s, 0 offen offset:128 sc1" % (vFl, vFA, srd(rDBG)))
    g.lab(lk)
    A("s_waitcnt vmcnt(0)")
    A("v_cmp_ne_u32 vcc, 1, v%d" % vFl)
    A("s_cmp_lg_u64 vcc, 0")
    A("s_cselect_b32 s%d, 0x100, 0" % sPend)
    for k in range(8):
        q_ = QR + 8 * k
        A("v_xor_b32 v%d, s%d, v%d" % (T[5], sTag, q_ + 1))
        A("v_xor_b32 v%d, s%d, v%d" % (T[16], sTag, q_ + 3))
        A("v_xor_b32 v%d, s%d, v%d" % (T[17], sTag, q_ + 5))
        A("v_xor_b32 v%d, s%d, v%d" % (T[18], sTag, q_ + 7))
        A("v_or3_b32 v%d, v%d, v%d, v%d" % (T[5], T[5], T[16], T[17]))
        A("v_or_b32 v%d, v%d, v%d" % (T[5], T[5], T[18]))
        A("v_cmp_ne_u32 vcc, 0, v%d" % T[5])
        A("s_cmp_lg_u64 vcc, 0")
        A("s_cselect_b32 s%d, %d, 0" % (sNext, 1 << k))
        A("s_or_b32 s%d, s%d, s%d" % (sPend, sPend, sNext))
    A("s_cmp_eq_u32 s%d, 0" % sPend)
    A("s_cbranch_scc1 %s" % lok)
    A("s_sub_u32 s%d, s%d, 1" % (sCnt, sCnt))
    A("s_cmp_gt_i32 s%d, 0" % sCnt)
    A("s_cbranch_scc1 %s" % lp)
    g.lab(lok)
    for st in (4, 2, 1):
        for k in range(st):
            for r in range(4):
                A("v_add_f32 v%d, v%d, v%d" % (QR + 8 * k + 2 * r, QR + 8 * k + 2 * r, QR + 8 * (k + st) + 2 * r))
    A("v_cvt_pk_bf16_f32 v%d, v%d, v%d" % (T[10], QR, QR + 2))
    A("v_cvt_pk_bf16_f32 v%d, v%d, v%d" % (T[11], QR + 4, QR + 6))
    A("v_mov_b32 v%d, 1" % T[2])
    A("v_mov_b32 v%d, 0" % T[3])
    A("ds_write_b16 v%d, v%d offset:%d" % (T[4], T[10], LQF))
    A("ds_write_b16_d16_hi v%d, v%d offset:%d" % (T[4], T[10], LQF + 16))
    A("ds_write_b16 v%d, v%d offset:%d" % (T[4], T[11], LQF + 32))
    A("ds_write_b16_d16_hi v%d, v%d offset:%d" % (T[4], T[11], LQF + 48))
    A("ds_read_b64 %s, v%d offset:%d" % (vr(T[10], 2), T[19], LQF))
    A("s_lshl_b32 s%d, s%d, 10" % (sTmp2, sH))
    A("s_add_u32 s%d, s%d, 0x%x" % (sTmp2, sTmp2, WS_QF))
    A("s_waitcnt lgkmcnt(0)")
    A("v_mov_b32 v%d, v%d" % (QS, T[10]))
    A("v_mov_b32 v%d, v%d" % (QS + 2, T[11]))
    A("buffer_store_dwordx4 %s, v%d, %s, s%d offen sc1" % (vr(QS, 4), vV, srd(rWS), sTmp2))
    A("s_barrier")
    A("s_branch %s" % lqdone)
    g.lab(lqf)
    A("s_barrier")
    A("s_lshl_b32 s%d, s%d, 10" % (sTmp2, sH))
    A("s_add_u32 s%d, s%d, 0x%x" % (sTmp2, sTmp2, WS_QF))
    A("s_add_u32 s%d, s%d, s%d" % (sRet, pWS, sTmp2))
    A("s_addc_u32 s%d, s%d, 0" % (sRet + 1, pWS + 1))
    lpr, lprd = g.newlab("probe"), g.newlab("probed")
    A("s_mov_b32 s%d, 400" % sPend)
    g.lab(lpr)
    A("s_load_dword s%d, s[%d:%d], 0x3fc glc" % (sTmp, sRet, sRet + 1))
    A("s_waitcnt lgkmcnt(0)")
    A("s_cmp_eq_u32 s%d, s%d" % (sTmp, sTag))
    A("s_cbranch_scc1 %s" % lprd)
    A("s_sleep 1")
    A("s_sub_u32 s%d, s%d, 1" % (sPend, sPend))
    A("s_cmp_gt_i32 s%d, 0" % sPend)
    A("s_cbranch_scc1 %s" % lpr)
    g.lab(lprd)
    g.ts(1)
    lf1, lf2 = g.newlab("qfl"), g.newlab("qfok")
    g.lab(lf1)
    A("buffer_load_dwordx4 %s, v%d, %s, s%d offen sc1" % (vr(QS, 4), vV, srd(rWS), sTmp2))
    A("s_waitcnt vmcnt(0)")
    A("v_xor_b32 v%d, s%d, v%d" % (T[16], sTag, QS + 1))
    A("v_xor_b32 v%d, s%d, v%d" % (T[17], sTag, QS + 3))
    A("v_or_b32 v%d, v%d, v%d" % (T[16], T[16], T[17]))
    A("v_cmp_ne_u32 vcc, 0, v%d" % T[16])
    A("s_cbranch_vccz %s" % lf2)
    A("s_sub_u32 s%d, s%d, 1" % (sCnt, sCnt))
    A("s_cmp_gt_i32 s%d, 0" % sCnt)
    A("s_cbranch_scc1 %s" % lf1)
    g.lab(lf2)
    A("v_add_u32 v%d, %d, v%d" % (T[19], LQF, T[19]))
    A("v_mov_b32 v%d, 1" % T[2])
    A("v_mov_b32 v%d, 0" % T[3])
    A("ds_write2_b32 v%d, v%d, v%d offset0:0 offset1:1" % (T[19], QS, QS + 2))
    g.lab(lqdone)
    A("ds_write_b32 v%d, v%d offset:%d" % (T[3], T[2], LCNT + 12))
    A("s_setprio 0")
    issue_K(SB + 0, sQU)
    issue_V(SB + 16, sQU)

    g.lab(lwaitq)
    A("v_mov_b32 v%d, 0" % T[3])
    A("v_lshlrev_b32 v%d, 4, v%d" % (T[4], vI))
    lsp, lgo = g.newlab("qspin"), g.newlab("qgo")
    g.lab(lsp)
    A("ds_read_b32 v%d, v%d offset:%d" % (T[2], T[3], LCNT + 12))
    A("s_waitcnt lgkmcnt(0)")
    A("v_cmp_eq_u32 vcc, 1, v%d" % T[2])
    A("s_cbranch_vccnz %s" % lgo)
    A("s_sleep 1")
    A("s_branch %s" % lsp)
    g.lab(lgo)
    if opt.get("bswap"):
        A("s_and_b32 s%d, s%d, 1" % (sTmp, sH))
        A("s_lshl_b32 s%d, s%d, 8" % (sTmp, sTmp))
        A("v_add_u32 v%d, s%d, v%d" % (T[4], sTmp, T[4]))
        A("v_xor_b32 v%d, 0x100, v%d" % (T[5], T[4]))
        A("ds_read_b128 %s, v%d offset:%d" % (vr(vQ0, 4), T[4], LQF))
        A("ds_read_b128 %s, v%d offset:%d" % (vr(vQ1, 4), T[5], LQF))
    else:
        A("ds_read_b128 %s, v%d offset:%d" % (vr(vQ0, 4), T[4], LQF))
        A("ds_read_b128 %s, v%d offset:%d" % (vr(vQ1, 4), T[4], LQF + 256))

    def reset_state():
        for r in range(4):
            A("v_mov_b32 v%d, 0" % (vAcc + r))
        A("v_mov_b32 v%d, 0xff7fffff" % vM)
        A("v_mov_b32 v%d, 0" % vL)

    reset_state()
    A("s_waitcnt lgkmcnt(0)")
    g.ts(3)
    if opt.get("prog"):
        A("s_mov_b32 m0, 0")
        A("v_mov_b32 v56, 0")

    tX0, tX1, tY0, tY1 = T[0], T[1], T[2], T[3]
    r0, r1, u = T[4], T[5], T[6]
    sv, mx, tm, al, p, pd, ps = T[7], T[8], T[9], T[10], T[11], T[12], T[13]

    def H1(kb, q, kwait, filler=None):
        if kwait is not None:
            A("s_waitcnt vmcnt(%d)" % kwait)
        accs = [tX0, tX1, tY0, tY1]
        for e in range(4):
            for a in range(4):
                c = "0" if e == 0 else "v%d" % accs[a]
                A("v_dot2_f32_bf16 v%d, v%d, v%d, %s" % (accs[a], kb + 4 * a + e, q + e, c))
        if filler:
            filler()
        else:
            g.nop(3)
        dpp("v_add_f32", r0, tY0, tX0, "row_ror:8")
        dpp("v_add_f32", r1, tY1, tX1, "row_ror:8")

    def H2(vb, vwait_base):
        dpp("v_add_f32", u, r0, r0, "row_shl:4", "0x5")
        dpp("v_add_f32", u, r1, r1, "row_shr:4", "0xa")
        g.nop(2)
        dpp("v_add_f32", u, u, u, "quad_perm:[2,3,0,1]")
        g.nop(2)
        dpp("v_add_f32", u, u, u, "quad_perm:[1,0,3,2]")
        bf16_round(sv, u)
        A("v_mul_f32 v%d, s%d, v%d" % (sv, sScale, sv))
        bf16_round(sv, sv)
        g.nop(2)
        dpp("v_max_f32", mx, sv, sv, "row_ror:4")
        g.nop(2)
        dpp("v_max_f32", mx, mx, mx, "row_ror:8")
        xrow16("v_max_f32", mx, tm)
        xrow32("v_max_f32", mx, tm)
        A("v_max_f32 v%d, v%d, v%d" % (mx, mx, vM))
        A("v_sub_f32 v%d, v%d, v%d" % (p, sv, mx))
        A("v_sub_f32 v%d, v%d, v%d" % (al, vM, mx))
        A("v_mul_f32 v%d, s%d, v%d" % (p, sL2E, p))
        A("v_mul_f32 v%d, s%d, v%d" % (al, sL2E, al))
        A("v_exp_f32 v%d, v%d" % (p, p))
        A("v_exp_f32 v%d, v%d" % (al, al))
        A("v_mov_b32 v%d, v%d" % (vM, mx))
        A("v_cvt_pk_bf16_f32 v%d, v%d, v%d" % (pd, p, p))
        for r in range(4):
            A("v_mul_f32 v%d, v%d, v%d" % (vAcc + r, vAcc + r, al))
        dpp("v_add_f32", ps, p, p, "row_ror:4")
        for d in range(4):
            dpp("v_and_b32", vBa + d, pd, vMask + d, "row_newbcast:0")
        dpp("v_add_f32", ps, ps, ps, "row_ror:8")
        for d in range(4):
            dpp("v_and_b32", vBb + d, pd, vMask + d, "row_newbcast:4")
        xrow16("v_add_f32", ps, tm)
        xrow32("v_add_f32", ps, tm)
        A("v_fma_f32 v%d, v%d, v%d, v%d" % (vL, vL, al, ps))
        for j in range(4):
            B = vBa if j % 2 == 0 else vBb
            if j >= 2:
                for d in range(4):
                    dpp("v_and_b32", B + d, pd, vMask + d, "row_newbcast:%d" % (4 * j))
                g.nop(1)
            if vwait_base is not None:
                A("s_waitcnt vmcnt(%d)" % (vwait_base + 3 - j))
            else:
                g.nop(1)
            mfma(vAcc, vb + 4 * j, B, vAcc)
        if opt.get("prog"):
            A("s_memrealtime s[76:77]")
            A("s_waitcnt lgkmcnt(0)")
            A("v_writelane_b32 v56, s76, m0")
            A("s_add_u32 m0, m0, 1")

    def dump_and_combine(b):
        A("s_lshl_b32 s%d, s%d, 10" % (sTmp, sW))
        A("v_add_u32 v%d, s%d, v%d" % (T[0], sTmp, vV))
        A("s_lshl_b32 s%d, s%d, 3" % (sTmp, sW))
        A("v_mov_b32 v%d, s%d" % (T[1], sTmp))
        A("v_mov_b32 v%d, 1" % T[2])
        A("v_mov_b32 v%d, 0" % T[3])
        A("ds_write_b64 v%d, %s offset:%d" % (T[1], vr(vM, 2), LML + 64 * b))
        A("s_mov_b32 s%d, %d" % (sCB, b))
        A("ds_write_b128 v%d, %s offset:%d" % (T[0], vr(vAcc, 4), LC + 8192 * b))
        exec_set(1)
        A("ds_add_rtn_u32 v%d, v%d, v%d offset:%d" % (T[2], T[3], T[2], LCNT + 4 * b))
        exec_all()
        A("s_waitcnt lgkmcnt(0)")
        A("v_readfirstlane_b32 s%d, v%d" % (sTmp, T[2]))
        lno = g.newlab("nocomb")
        g.nop(1)
        A("s_cmp_lg_u32 s%d, 7" % sTmp)
        A("s_cbranch_scc1 %s" % lno)
        A("s_call_b64 s[%d:%d], L_combine" % (sRet, sRet + 1))
        g.lab(lno)

    vLT, vLA = T[14], T[15]
    A("v_mov_b32 v%d, 0" % vLA)
    A("s_mov_b32 s%d, 2" % sPh)
    A("s_cmp_eq_u32 s%d, 1" % sLt)
    A("s_cselect_b32 s%d, 1, %d" % (sPo, 0 if NS > NP0 else 1))
    lloop, lexit, lsw, lextra, lcont = (g.newlab(n) for n in ("loop", "exit", "switch", "extra", "cont"))
    lg1, lg2, lg3, lg4 = (g.newlab(n) for n in ("tk", "tk", "tk", "tk"))
    g.lab(lloop)
    A("s_mov_b32 s%d, 1" % sNext)
    A("s_cmp_eq_u32 s%d, 0" % sPo)
    A("s_cbranch_scc1 %s" % lg1)
    A("s_atomic_add s%d, s[%d:%d], 0 glc" % (sNext, sTkA, sTkA + 1))
    A("s_branch %s" % lg2)
    g.lab(lg1)
    A("v_mov_b32 v%d, 1" % vLT)
    exec_set(1)
    A("ds_add_rtn_u32 v%d, v%d, v%d offset:%d" % (vLT, vLA, vLT, LCNT + 8))
    exec_all()
    g.lab(lg2)

    def fill():
        A("s_waitcnt lgkmcnt(0)")
        A("s_cmp_eq_u32 s%d, 1" % sPo)
        A("s_cbranch_scc1 %s" % lg3)
        A("v_readfirstlane_b32 s%d, v%d" % (sTmp, vLT))
        g.nop(1)
        A("s_add_u32 s%d, s%d, %d" % (sTmp, sTmp, NP0))
        A("s_lshl_b32 s%d, s%d, 12" % (sOff, sTmp))
        A("s_add_u32 s%d, s%d, s%d" % (sOff, sOff, sSBW))
        A("s_and_b32 s%d, s%d, 0xfffff" % (sOff, sOff))
        A("s_add_u32 s%d, s%d, s%d" % (sOff, sOff, sH0))
        A("s_mov_b32 s%d, -1" % sNext)
        A("s_cmp_lt_u32 s%d, %d" % (sTmp, NS))
        A("s_cbranch_scc1 %s" % lg4)
        A("s_mov_b32 s%d, 1" % sPo)
        A("s_mov_b32 s%d, 1" % sNext)
        A("s_atomic_add s%d, s[%d:%d], 0 glc" % (sNext, sTkA, sTkA + 1))
        A("s_waitcnt lgkmcnt(0)")
        g.lab(lg3)
        A("s_cmp_lt_u32 s%d, %d" % (sNext, NA))
        A("s_cselect_b32 s%d, s%d, s%d" % (sTmp, sH0, sHB))
        A("s_add_u32 s%d, s%d, s%d" % (sOff, sNext, sBA))
        A("s_and_b32 s%d, s%d, 255" % (sOff, sOff))
        A("s_lshl_b32 s%d, s%d, 12" % (sOff, sOff))
        A("s_add_u32 s%d, s%d, s%d" % (sOff, sOff, sTmp))
        A("s_cmp_lt_u32 s%d, %d" % (sNext, NL))
        A("s_cselect_b32 s%d, s%d, 0x4000000" % (sOff, sOff))
        g.lab(lg4)

    H1(SB + 0, vQ0, 4, fill)
    issue_K(SB + 0, sOff)
    H2(SB + 16, 4)
    issue_V(SB + 16, sOff)
    A("s_cmp_eq_u32 s%d, 2" % sPh)
    A("s_cbranch_scc1 %s" % lextra)
    g.lab(lcont)
    A("s_cmp_lt_i32 s%d, %d" % (sNext, NA))
    A("s_cbranch_scc1 %s" % lloop)
    A("s_cmp_eq_u32 s%d, 0" % sPh)
    A("s_cbranch_scc1 %s" % lsw)
    llast = g.newlab("last")
    lchk = g.newlab("chk")
    g.lab(lchk)
    if TAP:
        A("s_cmp_lt_u32 s%d, %d" % (sNext, NL - TAP))
        A("s_cbranch_scc1 %s" % lloop)
        A("s_cmp_ge_u32 s%d, %d" % (sNext, NL))
        A("s_cbranch_scc1 %s" % lexit)
        A("s_cmp_lt_u32 s%d, 4" % sW)
        A("s_cbranch_scc1 %s" % lloop)
        H1(SB + 0, vQ0, 4)
        g.nop(1)
        H2(SB + 16, 0)
        g.nop(4)
        A("s_branch %s" % lexit)
    else:
        A("s_cmp_lt_u32 s%d, %d" % (sNext, NL))
        A("s_cbranch_scc1 %s" % lloop)
        A("s_branch %s" % lexit)
    g.lab(lextra)
    lqw, lj = g.newlab("qw"), g.newlab("join")
    A("s_cmp_eq_u32 s%d, 0" % sW)
    A("s_cbranch_scc1 %s" % lqw)
    A("s_cmp_eq_u32 s%d, 1" % sLt)
    A("s_cbranch_scc1 %s" % lj)
    for k in range(1, NPF):
        bb = SB + 32 * k
        H1(bb, vQ0, 8)
        g.nop(1)
        H2(bb + 16, None)
    A("s_branch %s" % lj)
    g.lab(lqw)
    A("s_cmp_eq_u32 s%d, 0" % sRole)
    A("s_cbranch_scc1 %s" % lj)
    A("s_call_b64 s[%d:%d], L_prep" % (sRet, sRet + 1))
    g.lab(lj)
    A("s_mov_b32 s%d, 0" % sPh)
    A("s_branch %s" % lcont)
    g.lab(lsw)
    dump_and_combine(0)
    g.ts(4)
    reset_state()
    for d in range(4):
        A("v_mov_b32 v%d, v%d" % (vQ0 + d, vQ1 + d))
    A("s_mov_b32 s%d, 1" % sPh)
    A("s_branch %s" % lchk)
    g.lab(lexit)
    g.ts(5)
    dump_and_combine(1)
    g.ts(6)

    lF2, lfin, lnext = g.newlab("roleF2"), g.newlab("fin"), g.newlab("next")
    A("s_cmp_eq_u32 s%d, 0" % sRole)
    A("s_cbranch_scc1 %s" % lfin)
    g.lab("L_tail")
    A("s_mov_b32 s%d, %d" % (sCnt, POLL_LIMIT - 1))
    if opt.get("pf2"):
        A("s_getpc_b64 s[%d:%d]" % (rB, rB + 1))
        g.lab("L_pcref2")
        A("s_and_b32 s%d, s%d, 0xffff" % (rB + 1, rB + 1))
        A("s_mov_b32 s%d, L_combine-L_pcref2" % (rB + 2))
        A("s_mov_b32 s%d, 0x20000" % (rB + 3))
        A("s_lshl_b32 s%d, s%d, 10" % (sTmp, sW))
        A("buffer_load_dwordx4 %s, v%d, %s, s%d offen" % (vr(P + 20, 4), vV, srd(rB), sTmp))
    A("s_cmp_lg_u32 s%d, 1" % sRole)
    A("s_cbranch_scc1 %s" % lnext)
    DD = SB
    A("v_lshlrev_b32 v%d, 8, v%d" % (T[0], vI))
    A("v_lshl_add_u32 v%d, v%d, 4, v%d" % (T[0], vG, T[0]))
    A("s_and_b32 s%d, s%d, 24" % (sTmp, sH))
    A("s_add_u32 s%d, s%d, s%d" % (sTmp, sTmp, sW))
    A("s_lshl_b32 s%d, s%d, 11" % (sTmp2, sTmp))
    A("s_add_u32 s%d, s%d, 0x%x" % (sTmp2, sTmp2, WS_ST))
    A("s_lshl_b32 s%d, s%d, 12" % (sTmp, sTmp))
    A("v_and_b32 v%d, 7, v%d" % (T[1], vI))
    A("v_and_b32 v%d, 1, v%d" % (T[2], vG))
    A("v_lshlrev_b32 v%d, 2, v%d" % (T[2], T[2]))
    A("v_xor_b32 v%d, v%d, v%d" % (T[1], T[1], T[2]))
    A("v_lshlrev_b32 v%d, 7, v%d" % (T[1], T[1]))
    A("v_lshrrev_b32 v%d, 1, v%d" % (T[2], vG))
    A("v_lshl_add_u32 v%d, v%d, 10, v%d" % (T[1], T[2], T[1]))

    def ldW():
        for j in range(4):
            A("buffer_load_dwordx4 %s, v%d, %s, s%d offen offset:%d sc1" % (vr(P + 4 * j, 4), T[0], srd(rWS), sTmp, 64 * j))
        A("buffer_load_dwordx2 %s, v%d, %s, s%d offen sc1" % (vr(P + 16, 2), T[1], srd(rWS), sTmp2))
    poll(ldW, range(P, P + 18), T[5], "w")
    g.ts(7)
    mm, ee, ll = T[10], T[11], T[12]
    chain = [
        lambda: dpp("v_max_f32", mm, P + 16, P + 16, "quad_perm:[1,0,3,2]"),
        lambda: A("s_lshl_b32 s%d, s%d, 10" % (sOff, sW)),
        lambda: dpp("v_max_f32", mm, mm, mm, "quad_perm:[2,3,0,1]"),
        lambda: A("v_add_u32 v%d, s%d, v%d" % (T[4], sOff, vV)),
        lambda: dpp("v_max_f32", mm, mm, mm, "row_half_mirror"),
        lambda: A("v_sub_f32 v%d, v%d, v%d" % (ee, P + 16, mm)),
        lambda: A("v_mul_f32 v%d, s%d, v%d" % (ee, sL2E, ee)),
        lambda: A("v_exp_f32 v%d, v%d" % (ee, ee)),
        lambda: A("v_mul_f32 v%d, v%d, v%d" % (ll, ee, P + 17)),
        lambda: A("v_lshlrev_b32 v%d, 11, v%d" % (T[0], T[2])),
        lambda: dpp("v_add_f32", ll, ll, ll, "quad_perm:[1,0,3,2]"),
        lambda: A("v_lshl_add_u32 v%d, v%d, 4, v%d" % (T[0], vI, T[0])),
        lambda: dpp("v_add_f32", ll, ll, ll, "quad_perm:[2,3,0,1]"),
        lambda: A("s_lshr_b32 s%d, s%d, 3" % (sTmp, sH)),
        lambda: dpp("v_add_f32", ll, ll, ll, "row_half_mirror"),
        lambda: A("v_rcp_f32 v%d, v%d" % (ll, ll))]
    n_ = 0
    for j in range(4):
        for c in range(4):
            mfma(DD + 4 * c, P + 4 * j, vW + 16 * j + 4 * c, None if j == 0 else DD + 4 * c)
            chain[n_]()
            n_ += 1
    A("s_lshl_b32 s%d, s%d, 12" % (sTmp, sTmp))
    A("v_mul_f32 v%d, v%d, v%d" % (ee, ee, ll))
    A("s_and_b32 s%d, s%d, 7" % (sTmp2, sH))
    A("s_lshl_b32 s%d, s%d, 8" % (sTmp2, sTmp2))
    Y = T[14]
    for c in range(4):
        dpp("v_mul_f32", Y + c, ee, DD + 4 * c, "row_newbcast:0")
        for r in range(1, 4):
            dpp("v_fmac_f32", Y + c, ee, DD + 4 * c + r, "row_newbcast:%d" % r)
    A("ds_write_b128 v%d, %s offset:%d" % (T[4], vr(Y, 4), LR))
    A("s_add_u32 s%d, s%d, s%d" % (sTmp, sTmp, sTmp2))
    A("s_add_u32 s%d, s%d, 0x%x" % (sTmp2, sTmp, WS_AP))
    A("s_add_u32 s%d, s%d, 0x%x" % (sTmp, sTmp, WS_AP))
    A("s_waitcnt lgkmcnt(0)")
    tail_barrier()
    A("s_cmp_lg_u32 s%d, 0" % sW)
    A("s_cbranch_scc1 %s" % lfin)
    for k in range(8):
        A("ds_read_b128 %s, v%d offset:%d" % (vr(P + 4 * k, 4), vV, LR + 1024 * k))
    A("s_waitcnt lgkmcnt(6)")
    for r in range(4):
        A("v_add_f32 v%d, v%d, v%d" % (P + r, P + r, P + 4 + r))
    A("s_waitcnt lgkmcnt(4)")
    for r in range(4):
        A("v_add_f32 v%d, v%d, v%d" % (P + 8 + r, P + 8 + r, P + 12 + r))
    A("s_waitcnt lgkmcnt(2)")
    for r in range(4):
        A("v_add_f32 v%d, v%d, v%d" % (P + 16 + r, P + 16 + r, P + 20 + r))
    for r in range(4):
        A("v_add_f32 v%d, v%d, v%d" % (P + r, P + r, P + 8 + r))
    A("s_waitcnt lgkmcnt(0)")
    for r in range(4):
        A("v_add_f32 v%d, v%d, v%d" % (P + 24 + r, P + 24 + r, P + 28 + r))
    for r in range(4):
        A("v_add_f32 v%d, v%d, v%d" % (P + 16 + r, P + 16 + r, P + 24 + r))
    for r in range(4):
        A("v_add_f32 v%d, v%d, v%d" % (P + r, P + r, P + 16 + r))
    multi_xrow(16, "v_add_f32", [P + r for r in range(4)], [T[6 + r] for r in range(4)])
    for r in range(4):
        A("v_min_u32 v%d, -2, v%d" % (P + r, P + r))
    exec_set(0x0000ffff, 0x0000ffff)
    A("buffer_store_dwordx4 %s, v%d, %s, s%d offen sc1" % (vr(P, 4), T[0], srd(rWS), sTmp2))
    exec_all()
    g.ts(8)
    A("s_branch %s" % lfin)
    g.lab(lnext)
    A("s_cmp_eq_u32 s%d, 3" % sRole)
    A("s_cbranch_scc1 %s" % lF2)

    A("v_lshrrev_b32 v%d, 2, v%d" % (T[0], vI))
    A("v_lshlrev_b32 v%d, 12, v%d" % (T[0], T[0]))
    A("v_and_b32 v%d, 1, v%d" % (T[1], vI))
    A("v_lshl_add_u32 v%d, v%d, 11, v%d" % (T[0], T[1], T[0]))
    A("v_bfe_u32 v%d, v%d, 1, 1" % (T[2], vI))
    A("v_lshl_add_u32 v%d, v%d, 7, v%d" % (T[0], T[2], T[0]))
    A("v_lshl_add_u32 v%d, v%d, 5, v%d" % (T[0], vG, T[0]))
    A("s_lshl_b32 s%d, s%d, 8" % (sTmp, sW))
    A("s_add_u32 s%d, s%d, 0x%x" % (sTmp, sTmp, WS_AP))
    A("v_and_b32 v%d, 31, v%d" % (T[4], vLane))
    A("v_lshlrev_b32 v%d, 5, v%d" % (T[4], T[4]))
    A("s_lshl_b32 s%d, s%d, 2" % (sOff, sW))
    A("v_add_u32 v%d, s%d, v%d" % (T[4], sOff, T[4]))
    A("v_lshlrev_b32 v%d, 6, v%d" % (T[5], T[1]))
    A("s_lshl_b32 s%d, s%d, 3" % (sOff, sW))
    A("v_add_u32 v%d, s%d, v%d" % (T[5], sOff, T[5]))
    A("v_lshlrev_b32 v%d, 5, v%d" % (T[3], vLane))
    A("s_lshl_b32 s%d, s%d, 11" % (sOff, sW))
    A("v_add_u32 v%d, s%d, v%d" % (T[3], sOff, T[3]))
    A("v_lshrrev_b32 v%d, 1, v%d" % (T[21], vG))
    A("v_lshlrev_b32 v%d, 5, v%d" % (T[20], vI))
    A("v_lshl_add_u32 v%d, v%d, 9, v%d" % (T[20], T[21], T[20]))
    A("s_lshl_b32 s%d, s%d, 10" % (sOff, sW))
    A("v_add_u32 v%d, s%d, v%d" % (T[20], sOff, T[20]))
    for d in range(4):
        A("v_mov_b32 v%d, 0x3f803f80" % (vBa + d))
    A("v_lshl_add_u32 v%d, v%d, 4, v%d" % (T[21], T[21], vI))
    A("s_lshl_b32 s%d, s%d, 5" % (sOff, sW))
    A("v_add_u32 v%d, s%d, v%d" % (T[21], sOff, T[21]))
    A("v_cmp_gt_u32 vcc, 88, v%d" % T[21])
    A("s_mul_i32 s%d, s%d, 88" % (sOff, sRA))
    A("v_add_u32 v%d, s%d, v%d" % (T[21], sOff, T[21]))
    A("v_lshrrev_b32 v%d, 5, v%d" % (T[1], T[21]))
    A("v_and_b32 v%d, 30, v%d" % (T[2], T[21]))
    A("v_lshlrev_b32 v%d, 1, v%d" % (T[2], T[2]))
    A("v_lshl_add_u32 v%d, v%d, 7, v%d" % (T[1], T[1], T[2]))
    A("v_and_b32 v%d, 1, v%d" % (T[2], vG))
    A("v_lshl_add_u32 v%d, v%d, 6, v%d" % (T[1], T[2], T[1]))
    A("v_mov_b32 v%d, 0x%x" % (T[19], WS_BYTES))
    A("v_cndmask_b32 v%d, v%d, v%d, vcc" % (T[1], T[19], T[1]))
    A("v_cmp_gt_u32 vcc, 1376, v%d" % T[21])
    A("v_lshlrev_b32 v%d, 6, v%d" % (T[2], T[2]))
    g.nop(1)
    A("v_cndmask_b32 v%d, v%d, v%d, vcc" % (T[21], T[19], T[1]))

    def ldF1():
        A("buffer_load_dwordx4 %s, v%d, %s, s%d offen sc1" % (vr(PL, 4), T[0], srd(rWS), sTmp))
        A("buffer_load_dwordx4 %s, v%d, %s, s%d offen offset:16 sc1" % (vr(PL + 4, 4), T[0], srd(rWS), sTmp))
    poll(ldF1, range(PL, PL + 8), T[6], "f1")
    g.ts(9)
    for k in range(8):
        dpp("v_add_f32", P + k, PL + k, PL + k, "row_ror:4")
    for k in range(8):
        dpp("v_add_f32", P + k, P + k, P + k, "row_ror:8")
    HP, AP_ = T[6], T[10]
    for k in range(4):
        A("v_cvt_pk_bf16_f32 v%d, v%d, v%d" % (AP_ + k, P + 2 * k, P + 2 * k + 1))
    for k in range(4):
        A("v_lshlrev_b32 v%d, 16, v%d" % (P + 2 * k, AP_ + k))
        A("v_and_b32 v%d, 0xffff0000, v%d" % (P + 2 * k + 1, AP_ + k))
    for k in range(8):
        A("v_add_f32 v%d, v%d, v%d" % (P + k, P + k, XF + k))
    for k in range(4):
        A("v_cvt_pk_bf16_f32 v%d, v%d, v%d" % (HP + k, P + 2 * k, P + 2 * k + 1))
    g.nop(2)
    DF = vW
    DS, DQ = vW + 48, vW + 52
    mfma(DS, HP, vBa, None)
    mfma(DQ, HP, HP, None)
    SS, QQ = T[14], T[15]
    post = []
    post.append(["v_add_f32 v%d, v%d, v%d" % (T[16], DS, DS + 2),
                 "v_add_f32 v%d, v%d, v%d" % (T[17], DS + 1, DS + 3),
                 "v_cndmask_b32 v%d, v%d, v%d, s[%d:%d]" % (T[18], DQ, DQ + 1, sMi1, sMi1 + 1),
                 "v_cndmask_b32 v%d, v%d, v%d, s[%d:%d]" % (T[19], DQ + 2, DQ + 3, sMi1, sMi1 + 1),
                 "v_cndmask_b32 v%d, v%d, v%d, s[%d:%d]" % (SS, T[16], T[17], sMi1, sMi1 + 1),
                 "s_nop 0",
                 "v_add_f32_dpp v%d, v%d, v%d quad_perm:[2,3,0,1] %s" % (QQ, T[19], T[18], DPPALL),
                 "s_mov_b32 exec_lo, 3", "s_mov_b32 exec_hi, 0",
                 "ds_write_b64 v%d, %s offset:%d" % (T[5], vr(SS, 2), LST),
                 "s_mov_b64 exec, -1"])
    for c in range(6):
        post.append(["v_add_f32 v%d, v%d, v%d" % (T[18], DF + 4 * c, DF + 24 + 4 * c + 2),
                     "v_add_f32 v%d, v%d, v%d" % (T[19], DF + 4 * c + 1, DF + 24 + 4 * c + 3),
                     "v_cndmask_b32 v%d, v%d, v%d, s[%d:%d]" % (P + 12 + c, T[18], T[19], sMg1, sMg1 + 1),
                     "ds_write_b32 v%d, v%d offset:%d" % (T[4], P + 12 + c, LR2 + 1024 * c)])
    for c in range(6):
        for j in range(2):
            mfma(DF + 24 * j + 4 * c, HP, W2[6 * j + c], None)
        if c >= 4:
            for s_ in post[c - 4]:
                A(s_)
    for k in range(2, 7):
        for s_ in post[k]:
            A(s_)
    A("s_waitcnt lgkmcnt(0)")
    tail_barrier()
    A("s_cmp_ge_u32 s%d, 3" % sW)
    A("s_cbranch_scc1 %s" % lfin)
    Z, SQ, CSr = P, P + 12, T[8]
    for k in range(4):
        A("ds_read_b128 %s, v%d offset:%d" % (vr(SQ + 4 * k, 4), T[2], LST + 16 * k))
    A("ds_read_b128 %s, v%d offset:%d" % (vr(Z, 4), T[3], LR2))
    A("ds_read_b128 %s, v%d offset:%d" % (vr(Z + 4, 4), T[3], LR2 + 16))
    A("ds_read_b128 %s, v%d offset:%d" % (vr(CSr, 4), T[20], LCS))
    A("ds_read_b128 %s, v%d offset:%d" % (vr(CSr + 4, 4), T[20], LCS + 16))
    A("s_mov_b32 s%d, 0x%x" % (sTmp, WS_GL))
    A("s_mov_b32 s%d, 0x%x" % (sTmp2, WS_G))
    A("s_waitcnt lgkmcnt(4)")
    for st in (8, 4, 2):
        for k in range(st):
            A("v_add_f32 v%d, v%d, v%d" % (SQ + k, SQ + k, SQ + k + st))
    mean, var = T[5], T[6]
    A("v_mul_f32 v%d, %s, v%d" % (mean, f32(1.0 / 512), SQ))
    A("v_mul_f32 v%d, %s, v%d" % (var, f32(1.0 / 512), SQ + 1))
    A("v_fma_f32 v%d, -v%d, v%d, v%d" % (var, mean, mean, var))
    A("v_max_f32 v%d, 0, v%d" % (var, var))
    ln_scalars(mean, var)
    A("v_rcp_f32 v%d, v%d" % (T[7], var))
    A("s_waitcnt lgkmcnt(0)")
    for st in (4, 2, 1):
        for k in range(st):
            A("v_add_f32 v%d, v%d, v%d" % (Z + k, Z + k, Z + k + st))
            A("v_add_f32 v%d, v%d, v%d" % (CSr + k, CSr + k, CSr + k + st))
    A("v_fma_f32 v%d, -v%d, v%d, v%d" % (Z, mean, CSr, Z))
    div_refined(T[8], Z, var, T[7], T[9])
    bf16_round(T[8], T[8])
    A("v_add_f32 v%d, v%d, v%d" % (T[8], T[8], vBias))
    bf16_round(T[8], T[8])
    kk = 2.0 * 0.7978845608028654 * 1.4426950408889634
    A("v_mul_f32 v%d, v%d, v%d" % (T[9], T[8], T[8]))
    A("v_mov_b32 v%d, %s" % (T[10], f32(-kk)))
    A("v_fmac_f32 v%d, %s, v%d" % (T[10], f32(-kk * 0.044715), T[9]))
    A("v_mul_f32 v%d, v%d, v%d" % (T[9], T[10], T[8]))
    A("v_exp_f32 v%d, v%d" % (T[9], T[9]))
    g.nop(1)
    A("v_add_f32 v%d, 1.0, v%d" % (T[9], T[9]))
    A("v_rcp_f32 v%d, v%d" % (T[9], T[9]))
    g.nop(1)
    A("v_mul_f32 v%d, v%d, v%d" % (T[8], T[8], T[9]))
    g.nop(2)
    A("v_mov_b32_dpp v%d, v%d quad_perm:[1,1,3,3] %s" % (T[10], T[8], DPPALL))
    A("v_cvt_pk_bf16_f32 v%d, v%d, v%d" % (T[9], T[8], T[10]))
    A("v_min_u32 v%d, -2, v%d" % (T[9], T[9]))
    exec_set(0x55555555, 0x55555555)
    A("buffer_store_dword v%d, v%d, %s, s%d offen" % (T[9], T[21], srd(rWS), sTmp))
    A("buffer_store_dword v%d, v%d, %s, s%d offen sc1" % (T[9], T[21], srd(rWS), sTmp2))
    exec_all()
    g.ts(10)
    A("s_branch %s" % lfin)

    g.lab(lF2)
    rO = rDBG
    mk_srd(rO, pOUT, 2048)
    A("v_and_b32 v%d, 1, v%d" % (T[0], vI))
    A("v_lshlrev_b32 v%d, 6, v%d" % (T[0], T[0]))
    A("v_lshl_add_u32 v%d, v%d, 4, v%d" % (T[0], vG, T[0]))
    A("s_lshl_b32 s%d, s%d, 7" % (sTmp, sW))
    A("v_add_u32 v%d, s%d, v%d" % (T[0], sTmp, T[0]))
    A("v_add_u32 v%d, 0x1000, v%d" % (T[1], T[0]))
    A("s_cmp_lt_u32 s%d, 3" % sW)
    A("s_cselect_b32 s%d, 0x1400, 0x%x" % (sTmp, 0) if False else "s_cselect_b32 s%d, 0, 1" % sTmp)
    A("s_lshl_b32 s%d, s%d, 28" % (sTmp, sTmp))
    A("s_add_u32 s%d, s%d, 0x1400" % (sTmp, sTmp))
    A("v_add_u32 v%d, s%d, v%d" % (T[2], sTmp, T[0]))
    A("v_and_b32 v%d, 31, v%d" % (T[3], vLane))
    A("v_lshlrev_b32 v%d, 5, v%d" % (T[3], T[3]))
    A("s_lshl_b32 s%d, s%d, 2" % (sOff, sW))
    A("v_add_u32 v%d, s%d, v%d" % (T[4], sOff, T[3]))
    A("v_lshlrev_b32 v%d, 5, v%d" % (T[3], vLane))
    lnh = g.newlab("noh")
    A("s_cmp_lg_u32 s%d, 0" % sW)
    A("s_cbranch_scc1 %s" % lnh)
    A("v_and_b32 v%d, 1, v%d" % (T[5], vG))
    A("v_lshlrev_b32 v%d, 11, v%d" % (T[5], T[5]))
    A("v_lshl_add_u32 v%d, v%d, 4, v%d" % (T[5], vI, T[5]))
    A("v_lshrrev_b32 v%d, 1, v%d" % (T[6], vG))
    A("v_lshl_add_u32 v%d, v%d, 2, v%d" % (T[5], T[6], T[5]))
    A("v_add_u32 v%d, 0x1000, v%d" % (T[7], T[5]))
    A("v_add_u32 v%d, 0x2000, v%d" % (T[8], T[5]))
    A("v_add_u32 v%d, 0x3000, v%d" % (T[9], T[5]))
    A("s_lshr_b32 s%d, s%d, 1" % (sTmp, sRA))
    A("s_lshl_b32 s%d, s%d, 8" % (sTmp, sTmp))
    A("s_and_b32 s%d, s%d, 1" % (sTmp2, sRA))
    A("s_lshl_b32 s%d, s%d, 3" % (sTmp2, sTmp2))
    A("s_add_u32 s%d, s%d, s%d" % (sTmp, sTmp, sTmp2))
    A("s_add_u32 s%d, s%d, 0x%x" % (sTmp, sTmp, WS_AP))

    def ldH():
        for k, a_ in enumerate((T[5], T[7], T[8], T[9])):
            A("buffer_load_dword v%d, v%d, %s, s%d offen sc1" % (PL + k, a_, srd(rWS), sTmp))
    poll(ldH, range(PL, PL + 4), T[6], "h")
    A("v_add_f32 v%d, v%d, v%d" % (PL, PL, PL + 3))
    A("v_add_f32 v%d, v%d, v%d" % (PL + 2, PL + 2, PL + 1))
    A("v_add_f32 v%d, v%d, v%d" % (PL, PL, PL + 2))
    bf16_round(PL, PL)
    A("v_add_f32 v%d, v%d, v%d" % (vH, PL, vXs))
    bf16_round(vH, vH)
    g.lab(lnh)
    A("s_mov_b32 s%d, 0x%x" % (sTmp, WS_GL))

    def ldF2():
        for k in range(6):
            a_, o_ = (T[0], 1024 * k) if k < 4 else ((T[1], 0) if k == 4 else (T[2], 0))
            A("buffer_load_dwordx4 %s, v%d, %s, s%d offen offset:%d sc1" % (vr(P + 4 * k, 4), a_, srd(rWS), sTmp, o_))
    poll(ldF2, range(P, P + 24), T[6], "f2", (sTmp, WS_G ^ WS_GL))
    g.ts(9)
    for k in range(6):
        for c in range(2):
            mfma(DD + 4 * c, P + 4 * k, W2[2 * k + c], None if k == 0 else DD + 4 * c)
    A("v_and_b32 v%d, 1, v%d" % (T[0], vG))
    A("v_lshlrev_b32 v%d, 10, v%d" % (T[0], T[0]))
    A("v_lshl_add_u32 v%d, v%d, 1, v%d" % (T[0], vI, T[0]))
    A("v_lshrrev_b32 v%d, 1, v%d" % (T[1], vG))
    A("v_lshl_add_u32 v%d, v%d, 5, v%d" % (T[0], T[1], T[0]))
    A("s_lshl_b32 s%d, s%d, 6" % (sTmp, sRA))
    g.nop(1)
    A("v_cndmask_b32 v%d, v%d, v%d, s[%d:%d]" % (T[10], DD, DD + 1, sMg1, sMg1 + 1))
    A("ds_write_b32 v%d, v%d offset:%d" % (T[4], T[10], LR2))
    A("v_cndmask_b32 v%d, v%d, v%d, s[%d:%d]" % (T[11], DD + 4, DD + 5, sMg1, sMg1 + 1))
    A("ds_write_b32 v%d, v%d offset:%d" % (T[4], T[11], LR2 + 1024))
    A("s_waitcnt lgkmcnt(0)")
    tail_barrier()
    A("s_cmp_lg_u32 s%d, 0" % sW)
    A("s_cbranch_scc1 %s" % lfin)
    A("ds_read_b128 %s, v%d offset:%d" % (vr(P, 4), T[3], LR2))
    A("ds_read_b128 %s, v%d offset:%d" % (vr(P + 4, 4), T[3], LR2 + 16))
    A("s_waitcnt lgkmcnt(0)")
    for st in (4, 2, 1):
        for k in range(st):
            A("v_add_f32 v%d, v%d, v%d" % (P + k, P + k, P + k + st))
    bf16_round(P, P)
    A("v_add_f32 v%d, v%d, v%d" % (P, P, vBias))
    bf16_round(P, P)
    A("v_add_f32 v%d, v%d, v%d" % (P, P, vH))
    g.nop(2)
    A("v_mov_b32_dpp v%d, v%d quad_perm:[1,1,3,3] %s" % (T[10], P, DPPALL))
    A("v_cvt_pk_bf16_f32 v%d, v%d, v%d" % (T[9], P, T[10]))
    exec_set(0x55555555, 0x55555555)
    A("buffer_store_dword v%d, v%d, %s, s%d offen" % (T[9], T[0], srd(rO), sTmp))
    exec_all()
    lep = g.newlab("noep")
    A("s_cmp_lg_u32 s%d, 0" % sRA)
    A("s_cbranch_scc1 %s" % lep)
    A("v_mov_b32 v%d, s%d" % (T[10], sTag))
    A("s_mov_b32 s%d, 0x%x" % (sTmp, WS_EP))
    A("buffer_store_dword v%d, v%d, %s, s%d offen" % (T[10], vTkA, srd(rWS), sTmp))
    g.lab(lep)
    g.ts(10)
    if opt.get("dbgspan"):
        mk_srd(rB, pDBG, 256)
        A("s_cmp_lt_u32 s%d, 8" % sRA)
        A("s_cselect_b32 s%d, s90, s85" % sTmp)
        A("s_sub_u32 s%d, s%d, s80" % (sTmp, sTmp))
        A("v_mov_b32 v%d, s%d" % (T[10], sTmp))
        A("s_lshl_b32 s%d, s%d, 2" % (sTmp, sRA))
        A("buffer_store_dword v%d, v%d, %s, s%d offen" % (T[10], vTkA, srd(rB), sTmp))

    g.lab(lfin)
    if DRY:
        A("s_cmp_eq_u32 s%d, 1" % sDry)
        A("s_cbranch_scc1 L_resume")
    if opt.get("ts"):
        g.ts(11)
        A("s_waitcnt vmcnt(0)")
        A("s_lshl_b32 s%d, s2, 3" % sTmp)
        A("s_add_u32 s%d, s%d, s%d" % (sTmp, sTmp, sW))
        A("s_lshl_b32 s%d, s%d, 6" % (sTmp, sTmp))
        A("s_add_u32 s%d, s%d, 0x%x" % (sTmp, sTmp, WS_TS))
        for k in range(12):
            A("v_mov_b32 v%d, s%d" % (P + k, 80 + k))
        for k in range(3):
            A("buffer_store_dwordx4 %s, v%d, %s, s%d offen offset:%d" % (vr(P + 4 * k, 4), vTkA, srd(rWS), sTmp, 16 * k))
    if opt.get("prog"):
        A("s_lshl_b32 s%d, s2, 3" % sTmp)
        A("s_add_u32 s%d, s%d, s%d" % (sTmp, sTmp, sW))
        A("s_lshl_b32 s%d, s%d, 8" % (sTmp, sTmp))
        A("s_add_u32 s%d, s%d, 0x200000" % (sTmp, sTmp))
        A("v_lshlrev_b32 v%d, 2, v%d" % (T[0], vLane))
        A("buffer_store_dword v56, v%d, %s, s%d offen" % (T[0], srd(rWS), sTmp))
    g.lab("L_end")
    A("s_endpgm")

    g.lab("L_combine")
    C = P
    A("v_and_b32 v%d, 7, v%d" % (T[0], vI))
    A("v_lshl_add_u32 v%d, v%d, 4, v%d" % (T[1], vG, T[0]))
    A("v_lshlrev_b32 v%d, 4, v%d" % (T[1], T[1]))
    A("v_lshrrev_b32 v%d, 3, v%d" % (T[2], vI))
    A("v_lshl_add_u32 v%d, v%d, 12, v%d" % (T[1], T[2], T[1]))
    A("s_lshl_b32 s%d, s%d, 13" % (sTmp, sCB))
    A("v_add_u32 v%d, s%d, v%d" % (T[1], sTmp, T[1]))
    A("s_lshl_b32 s%d, s%d, 6" % (sTmp, sCB))
    A("v_lshlrev_b32 v%d, 5, v%d" % (T[3], T[2]))
    A("v_add_u32 v%d, s%d, v%d" % (T[3], sTmp, T[3]))
    A("v_xor_b32 v%d, 32, v%d" % (T[4], T[3]))
    A("ds_read_b128 %s, v%d offset:%d" % (vr(C + 16, 4), T[3], LML))
    A("ds_read_b128 %s, v%d offset:%d" % (vr(C + 20, 4), T[3], LML + 16))
    A("ds_read_b128 %s, v%d offset:%d" % (vr(C + 24, 4), T[4], LML))
    A("ds_read_b128 %s, v%d offset:%d" % (vr(C + 28, 4), T[4], LML + 16))
    for k in range(4):
        A("ds_read_b128 %s, v%d offset:%d" % (vr(C + 4 * k, 4), T[1], LC + 1024 * k))
    A("v_lshl_add_u32 v%d, v%d, 3, v%d" % (T[5], vG, T[0]))
    A("v_lshlrev_b32 v%d, 3, v%d" % (T[5], T[5]))
    if opt.get("bswap"):
        A("s_xor_b32 s%d, s%d, s%d" % (sTmp2, sCB, sH))
        A("s_and_b32 s%d, s%d, 1" % (sTmp2, sTmp2))
        A("s_lshl_b32 s%d, s%d, 3" % (sTmp2, sTmp2))
    else:
        A("s_lshl_b32 s%d, s%d, 3" % (sTmp2, sCB))
    A("s_add_u32 s%d, s%d, s%d" % (sTmp2, sTmp2, sT))
    A("s_lshl_b32 s%d, s%d, 4" % (sTmp, sH))
    A("s_add_u32 s%d, s%d, s%d" % (sTmp2, sTmp2, sTmp))
    A("s_lshl_b32 s%d, s%d, 8" % (sTmp, sTmp2))
    A("s_lshl_b32 s%d, s%d, 7" % (sTmp2, sTmp2))
    A("s_add_u32 s%d, s%d, 0x%x" % (sTmp2, sTmp2, WS_ST))
    A("v_add_u32 v%d, s%d, v%d" % (T[5], sTmp, T[5]))
    A("v_cmp_eq_u32 vcc, 8, v%d" % vLane)
    A("v_mov_b32 v%d, s%d" % (T[18], sTmp2))
    g.nop(1)
    A("v_cndmask_b32 v%d, v%d, v%d, vcc" % (T[5], T[5], T[18]))
    A("s_waitcnt lgkmcnt(4)")
    Mx, Ls = T[6], T[7]
    A("v_max3_f32 v%d, v%d, v%d, v%d" % (Mx, C + 16, C + 18, C + 20))
    A("v_max3_f32 v%d, v%d, v%d, v%d" % (T[8], C + 22, C + 24, C + 26))
    A("v_max3_f32 v%d, v%d, v%d, v%d" % (Mx, Mx, C + 28, C + 30))
    A("v_max_f32 v%d, v%d, v%d" % (Mx, Mx, T[8]))
    Fk = T[8:12]
    for k in range(4):
        A("v_sub_f32 v%d, v%d, v%d" % (Fk[k], C + 16 + 2 * k, Mx))
    for k in range(4):
        A("v_mul_f32 v%d, s%d, v%d" % (Fk[k], sL2E, Fk[k]))
    for k in range(4):
        A("v_exp_f32 v%d, v%d" % (Fk[k], Fk[k]))
    A("s_waitcnt lgkmcnt(0)")
    A("v_mul_f32 v%d, v%d, v%d" % (Ls, Fk[0], C + 17))
    O = [T[12], T[13], T[16], T[17]]
    for r in range(4):
        A("v_mul_f32 v%d, v%d, v%d" % (O[r], Fk[0], C + r))
    for k in range(1, 4):
        A("v_fmac_f32 v%d, v%d, v%d" % (Ls, Fk[k], C + 17 + 2 * k))
        for r in range(4):
            A("v_fmac_f32 v%d, v%d, v%d" % (O[r], Fk[k], C + 4 * k + r))
    dpp("v_add_f32", Ls, Ls, Ls, "row_ror:8")
    g.nop(1)
    for r in range(4):
        dpp("v_add_f32", O[r], O[r], O[r], "row_ror:8")
    P0 = T[18]
    A("v_cvt_pk_bf16_f32 v%d, v%d, v%d" % (P0, O[0], O[1]))
    A("v_cvt_pk_bf16_f32 v%d, v%d, v%d" % (P0 + 1, O[2], O[3]))
    A("v_cndmask_b32 v%d, v%d, v%d, vcc" % (P0, P0, Mx))
    A("v_cndmask_b32 v%d, v%d, v%d, vcc" % (P0 + 1, P0 + 1, Ls))
    A("v_min_u32 v%d, -2, v%d" % (P0, P0))
    A("v_min_u32 v%d, -2, v%d" % (P0 + 1, P0 + 1))
    exec_set(0x00ff01ff, 0x00ff00ff)
    A("buffer_store_dwordx2 %s, v%d, %s, 0 offen sc1" % (vr(P0, 2), T[5], srd(rWS)))
    exec_all()
    A("s_setpc_b64 s[%d:%d]" % (sRet, sRet + 1))

    g.lab("L_prep")
    lb2, lbd = g.newlab("b2"), g.newlab("bd")
    if opt.get("nowl"):
        A("s_branch %s" % lbd)
    vr_, vc_, vLW, vTR = T[3], T[4], T[2], T[5]
    A("s_setprio 2")
    A("v_bfe_u32 v%d, v%d, 2, 2" % (vr_, vLane))
    A("v_and_b32 v%d, 3, v%d" % (vc_, vLane))
    A("s_mul_i32 s%d, s%d, %d" % (sLB, sW, LWS))
    A("v_add_u32 v%d, s%d, v%d" % (vLW, sLB, vV))
    A("v_lshrrev_b32 v%d, 3, v%d" % (T[6], vLane))
    A("v_and_b32 v%d, 7, v%d" % (T[7], vLane))
    A("v_lshlrev_b32 v%d, 4, v%d" % (T[7], T[7]))
    lb1 = g.newlab("b1")
    A("s_cmp_lg_u32 s%d, 1" % sRole)
    A("s_cbranch_scc1 %s" % lb1)
    mk_srd(rB, pWO, 4 << 20)
    A("v_lshl_add_u32 v%d, v%d, 10, v%d" % (T[8], T[6], T[7]))
    A("s_and_b32 s%d, s%d, 24" % (sTmp, sH))
    A("s_add_u32 s%d, s%d, s%d" % (sTmp, sTmp, sW))
    A("s_lshl_b32 s%d, s%d, 17" % (sTmp, sTmp))
    A("s_and_b32 s%d, s%d, 7" % (sTmp2, sH))
    A("s_lshl_b32 s%d, s%d, 7" % (sTmp2, sTmp2))
    A("s_add_u32 s%d, s%d, s%d" % (sTmp, sTmp, sTmp2))
    for k in range(16):
        A("buffer_load_dwordx4 %s, v%d, %s, s%d offen %s" % (vr(vW + 4 * k, 4), T[8], srd(rB), sTmp, WNT))
        if k < 15:
            A("s_add_u32 s%d, s%d, 0x2000" % (sTmp, sTmp))
    A("v_lshlrev_b32 v%d, 1, v%d" % (vTR, vG))
    A("v_lshl_add_u32 v%d, v%d, 3, v%d" % (vTR, vr_, vTR))
    A("v_lshlrev_b32 v%d, 7, v%d" % (vTR, vTR))
    A("v_lshl_add_u32 v%d, v%d, 3, v%d" % (vTR, vc_, vTR))
    A("v_add_u32 v%d, s%d, v%d" % (vTR, sLB, vTR))

    def w_transpose(younger):
        for half in range(2):
            A("s_waitcnt vmcnt(%d)" % (younger + (8 if half == 0 else 0)))
            for k in range(8):
                A("ds_write_b128 v%d, %s offset:%d" % (vLW, vr(vW + 32 * half + 4 * k, 4), LW + 1024 * k))
            A("s_waitcnt lgkmcnt(0)")
            for jj in range(2):
                for c in range(4):
                    d = vW + 32 * half + 16 * jj + 4 * c
                    A("ds_read_b64_tr_b16 %s, v%d offset:%d" % (vr(d, 2), vTR, LW + 4096 * jj + 32 * c))
                    A("ds_read_b64_tr_b16 %s, v%d offset:%d" % (vr(d + 2, 2), vTR, LW + 4096 * jj + 32 * c + 128))
            A("s_waitcnt lgkmcnt(0)")

    w_transpose(0)
    A("s_branch %s" % lbd)
    g.lab(lb1)
    A("s_cmp_eq_u32 s%d, 3" % sRole)
    A("s_cbranch_scc1 %s" % lb2)
    mk_srd(rB, pW1, 512 * 2752)
    A("v_mul_u32_u24 v%d, 43, v%d" % (T[6], vLane))
    A("v_lshrrev_b32 v%d, 9, v%d" % (T[6], T[6]))
    A("v_mul_u32_u24 v%d, 12, v%d" % (T[7], T[6]))
    A("v_sub_u32 v%d, v%d, v%d" % (T[7], vLane, T[7]))
    A("v_mul_u32_u24 v%d, 2752, v%d" % (T[8], T[6]))
    A("v_lshl_add_u32 v%d, v%d, 4, v%d" % (T[8], T[7], T[8]))
    A("s_mul_i32 s%d, s%d, %d" % (sTmp, sW, 64 * 2752))
    A("s_mul_i32 s%d, s%d, 176" % (sTmp2, sRA))
    A("s_add_u32 s%d, s%d, s%d" % (sTmp, sTmp, sTmp2))
    stg = W2 + [P + 28]
    for k in range(13):
        A("buffer_load_dwordx4 %s, v%d, %s, s%d offen %s" % (vr(stg[k], 4), T[8], srd(rB), sTmp, WNT))
        if k < 12:
            A("s_add_u32 s%d, s%d, %d" % (sTmp, sTmp, 5 * 2752))
    A("v_and_b32 v%d, 1, v%d" % (T[9], vI))
    A("v_lshlrev_b32 v%d, 10, v%d" % (T[9], T[9]))
    A("v_bfe_u32 v%d, v%d, 1, 1" % (T[10], vI))
    A("v_lshl_add_u32 v%d, v%d, 4, v%d" % (T[10], T[10], T[9]))
    A("v_lshl_add_u32 v%d, v%d, 2, v%d" % (T[10], vG, T[10]))
    A("s_lshl_b32 s%d, s%d, 7" % (sTmp, sW))
    for r in range(4):
        A("buffer_load_dword v%d, v%d, %s, s%d offen offset:%d" % (vXR + r, T[10], srd(rA), sTmp, 32 * r))
    mk_srd(rB, pB1, 2752)
    A("v_lshrrev_b32 v%d, 1, v%d" % (T[10], vG))
    A("v_lshlrev_b32 v%d, 1, v%d" % (T[9], vI))
    A("v_lshl_add_u32 v%d, v%d, 5, v%d" % (T[9], T[10], T[9]))
    A("s_lshl_b32 s%d, s%d, 6" % (sTmp, sW))
    A("s_add_u32 s%d, s%d, s%d" % (sTmp, sTmp, sTmp2))
    A("buffer_load_ushort v%d, v%d, %s, s%d offen" % (vBias, T[9], srd(rB), sTmp))
    A("v_lshlrev_b32 v%d, 1, v%d" % (vTR, vG))
    A("v_lshl_add_u32 v%d, v%d, 4, v%d" % (vTR, vr_, vTR))
    A("v_mul_u32_u24 v%d, 192, v%d" % (vTR, vTR))
    A("v_lshl_add_u32 v%d, v%d, 3, v%d" % (vTR, vc_, vTR))
    A("v_add_u32 v%d, s%d, v%d" % (vTR, sLB, vTR))
    A("s_waitcnt vmcnt(0)")
    for k in range(13):
        A("ds_write_b128 v%d, %s offset:%d" % (vLW, vr(stg[k], 4), LW + 960 * k))
    A("s_waitcnt lgkmcnt(0)")
    for jj in range(2):
        for c in range(6):
            d = W2[6 * jj + c]
            A("ds_read_b64_tr_b16 %s, v%d offset:%d" % (vr(d, 2), vTR, LW + 1536 * jj + 32 * c))
            A("ds_read_b64_tr_b16 %s, v%d offset:%d" % (vr(d + 2, 2), vTR, LW + 1536 * jj + 32 * c + 192))
    for r in range(4):
        A("v_lshlrev_b32 v%d, 16, v%d" % (XF + r, vXR + r))
        A("v_and_b32 v%d, 0xffff0000, v%d" % (XF + 4 + r, vXR + r))
    A("v_lshlrev_b32 v%d, 16, v%d" % (vBias, vBias))
    for d in range(4):
        A("v_mov_b32 v%d, 0x3f803f80" % (vBa + d))
    A("s_waitcnt lgkmcnt(0)")
    for c in range(6):
        mfma(P + 4 * c, vBa, W2[c], None)
    for c in range(6):
        mfma(P + 4 * c, vBa, W2[6 + c], P + 4 * c)
    A("s_lshl_b32 s%d, s%d, 2" % (sTmp, sW))
    A("v_lshlrev_b32 v%d, 5, v%d" % (T[2], vI))
    A("v_add_u32 v%d, s%d, v%d" % (T[2], sTmp, T[2]))
    g.nop(8)
    for c in range(6):
        A("ds_write_b32 v%d, v%d offset:%d" % (T[2], P + 4 * c, LCS + 512 * c))
    A("s_waitcnt lgkmcnt(0)")
    A("s_branch %s" % lbd)
    g.lab(lb2)
    mk_srd(rB, pW2, 1376 * 1024)
    A("v_lshrrev_b32 v%d, 2, v%d" % (T[8], vLane))
    A("v_lshlrev_b32 v%d, 10, v%d" % (T[8], T[8]))
    A("v_lshl_add_u32 v%d, v%d, 4, v%d" % (T[8], vc_, T[8]))
    A("s_lshl_b32 s%d, s%d, 15" % (sTmp, sW))
    A("s_lshl_b32 s%d, s%d, 6" % (sTmp2, sRA))
    A("s_add_u32 s%d, s%d, s%d" % (sTmp, sTmp, sTmp2))
    for k in range(6):
        A("buffer_load_dwordx4 %s, v%d, %s, s%d offen %s" % (vr(W2[2 * k], 4), T[8], srd(rB), sTmp, WNT))
        A("s_add_u32 s%d, s%d, 0x4000" % (sTmp, sTmp))
        A("buffer_load_dwordx4 %s, v%d, %s, s%d offen %s" % (vr(W2[2 * k + 1], 4), T[8], srd(rB), sTmp, WNT))
        if k < 5:
            A("s_add_u32 s%d, s%d, 0x3c000" % (sTmp, sTmp))
    A("v_lshrrev_b32 v%d, 1, v%d" % (T[10], vG))
    A("v_lshlrev_b32 v%d, 1, v%d" % (T[9], vI))
    A("v_lshl_add_u32 v%d, v%d, 5, v%d" % (T[9], T[10], T[9]))
    A("v_and_b32 v%d, 1, v%d" % (T[10], vG))
    A("v_lshl_add_u32 v%d, v%d, 10, v%d" % (T[10], T[10], T[9]))
    A("buffer_load_ushort v%d, v%d, %s, s%d offen" % (vXs, T[10], srd(rA), sTmp2))
    mk_srd(rB, pB2, 1024)
    A("buffer_load_ushort v%d, v%d, %s, s%d offen" % (vBias, T[9], srd(rB), sTmp2))
    A("v_lshl_add_u32 v%d, v%d, 3, v%d" % (vTR, vG, vr_))
    A("v_lshlrev_b32 v%d, 6, v%d" % (vTR, vTR))
    A("v_lshl_add_u32 v%d, v%d, 3, v%d" % (vTR, vc_, vTR))
    A("v_add_u32 v%d, s%d, v%d" % (vTR, sLB, vTR))
    A("s_waitcnt vmcnt(0)")
    for k in range(12):
        A("ds_write_b128 v%d, %s offset:%d" % (vLW, vr(W2[k], 4), LW + 1024 * k))
    A("s_waitcnt lgkmcnt(0)")
    for k in range(6):
        for c in range(2):
            d = W2[2 * k + c]
            A("ds_read_b64_tr_b16 %s, v%d offset:%d" % (vr(d, 2), vTR, LW + 2048 * k + 32 * c))
            A("ds_read_b64_tr_b16 %s, v%d offset:%d" % (vr(d + 2, 2), vTR, LW + 2048 * k + 32 * c + 256))
    A("v_lshlrev_b32 v%d, 16, v%d" % (vXs, vXs))
    A("v_lshlrev_b32 v%d, 16, v%d" % (vBias, vBias))
    A("s_waitcnt lgkmcnt(0)")
    g.lab(lbd)
    A("s_setprio 0")
    A("s_setpc_b64 s[%d:%d]" % (sRet, sRet + 1))
    g.lab("L_codeend")

    tail = ['.section .rodata,"a"', ".p2align 6", ".amdhsa_kernel %s_kernel" % NAME,
            "  .amdhsa_next_free_vgpr 256", "  .amdhsa_next_free_sgpr 102", "  .amdhsa_accum_offset 256",
            "  .amdhsa_group_segment_fixed_size 0", "  .amdhsa_kernarg_size 104", "  .amdhsa_user_sgpr_count 2",
            "  .amdhsa_user_sgpr_kernarg_segment_ptr 1", "  .amdhsa_system_sgpr_workgroup_id_x 1",
            "  .amdhsa_float_denorm_mode_32 3", ".end_amdhsa_kernel"]
    return "\n".join(hdr + g.L + tail) + "\n"


if __name__ == "__main__":
    out = sys.argv[1]
    opt = {}
    for a in sys.argv[2:]:
        k, _, v = a.partition("=")
        opt[k] = v if v else True
    open(out, "w").write(gen(opt))
```

```python
import sys, struct

NAME = "sequential_preLN__mha_block_cached__dense_activation_gelu__decode"


def f32(x):
    return "0x%08x" % struct.unpack("<I", struct.pack("<f", x))[0]


WS_OP = 0x00000
WS_AP = 0x20000
WS_APL = 0x24000
WS_G = 0x28000
WS_GL = 0x2a000
WS_XS = 0x2b800
WS_ST = 0x30000
WS_TK = 0x40000
WS_EP = 0x44000
WS_QF = 0x48000
WS_QP = 0x80000
WS_TS = 0x100000
WS_BYTES = 0x10000000

LR = 0
LR2 = 8192
LQF = 14336
LML = 14848
LCNT = 14976
LST = 15040
LCS = 15360
LC = 18432
LW = 34816
LWS = 13312
LDS_BYTES = LW + 8 * LWS

POLL_LIMIT = 1 << 18
DPPALL = "row_mask:0xf bank_mask:0xf"


class G:
    def __init__(self, opt):
        self.L = []
        self.opt = opt
        self.nlab = 0

    def __call__(self, s):
        self.L.append("    " + s)

    def lab(self, name):
        self.L.append(name + ":")

    def newlab(self, base):
        self.nlab += 1
        return "L_%s_%d" % (base, self.nlab)

    def nop(self, n):
        while n > 0:
            k = min(n, 16)
            self("s_nop %d" % (k - 1))
            n -= k

    def ts(self, idx):
        if self.opt.get("ts") and (not self.opt.get("tsmin") or idx in (5, 11)):
            self("s_memrealtime s[76:77]")
            self("s_waitcnt lgkmcnt(0)")
            self("s_mov_b32 s%d, s76" % (80 + idx))


def vr(a, n=1):
    return "v%d" % a if n == 1 else "v[%d:%d]" % (a, a + n - 1)


def gen(opt):
    g = G(opt)
    A = g
    NT = opt.get("nt", "nt")
    WNT = opt.get("wnt", "nt")
    NPF = int(opt.get("npf", 3))
    PACE = int(opt.get("pace", 2))
    NS = int(opt.get("ns", 35))
    TAP = int(opt.get("tap", 0))
    ROT = int(opt.get('rot', 8))
    NP0 = 7 * NPF + 1
    assert NS >= NP0 and 5 * NS + 24 <= 256
    NA = 256 - 5 * NS - 24
    NL = NA + 256
    vLane, vI, vG = 1, 2, 3
    vKX, vKY, vV, vTkA = 4, 5, 6, 7
    vMask = 8
    vQ0, vQ1, vSel = 12, 16, 16
    vAcc, vM, vL = 20, 24, 25
    T = list(range(26, 48))
    vBa, vBb = 48, 52
    vH = 57
    vXR, vBias, vXs = 58, 62, 63
    P = 64
    PL = 112
    XF = 120
    SB = 128
    vW = SB + 32
    W2 = [SB + 96 + 4 * k for k in range(8)] + [96 + 4 * k for k in range(4)]
    sW, sH, sT, sBA = 3, 4, 5, 6
    sTmp, sTmp2, sPh, sNext, sOff = 7, 8, 9, 10, 11
    sHB, sCnt, sRole, sRA = 12, 13, 14, 15
    pX, pK, pV, pWQ, pWO, pW1, pB1, pW2, pB2, pOUT, pDBG, pWS = 16, 18, 20, 22, 24, 28, 30, 32, 34, 36, 38, 40
    sLB, sQU = 42, 43
    rK, rV, rWS, rA, rB, rDBG = 44, 48, 52, 56, 60, 64
    sScale, sL2E = 68, 69
    sMi1, sRet, sMg1 = 70, 72, 74
    sCB, sSBW, sTag, sPo = 94, 95, 96, 97
    sTkA = 98
    sDry, sOS = 100, 101
    DRY = bool(opt.get('dry'))

    def srd(r):
        return "s[%d:%d]" % (r, r + 3)

    def mk_srd(r, p, nbytes):
        A("s_mov_b32 s%d, s%d" % (r, p))
        A("s_and_b32 s%d, s%d, 0xffff" % (r + 1, p + 1))
        A("s_mov_b32 s%d, 0x%x" % (r + 2, nbytes))
        A("s_mov_b32 s%d, 0x20000" % (r + 3))

    def exec_set(lo, hi=0):
        A("s_mov_b32 exec_lo, 0x%x" % lo)
        A("s_mov_b32 exec_hi, 0x%x" % hi)

    def exec_all():
        A("s_mov_b64 exec, -1")

    def bf16_round(dst, src):
        A("v_cvt_pk_bf16_f32 v%d, v%d, v%d" % (dst, src, src))
        A("v_and_b32 v%d, 0xffff0000, v%d" % (dst, dst))

    def dpp(op, dst, src0, src1, ctrl, bank="0xf"):
        A("%s_dpp v%d, v%d, v%d %s row_mask:0xf bank_mask:%s" % (op, dst, src0, src1, ctrl, bank))

    def multi_xrow(kind, op, xs, ts):
        ins = "v_permlane16_swap_b32" if kind == 16 else "v_permlane32_swap_b32"
        for x, t in zip(xs, ts):
            A("v_mov_b32 v%d, v%d" % (t, x))
        g.nop(2 if len(xs) < 3 else 1)
        for x, t in zip(xs, ts):
            A("%s v%d, v%d" % (ins, x, t))
        g.nop(1)
        for x, t in zip(xs, ts):
            A("%s v%d, v%d, v%d" % (op, x, x, t))

    def xrow16(op, x, t):
        multi_xrow(16, op, [x], [t])

    def xrow32(op, x, t):
        multi_xrow(32, op, [x], [t])

    def mfma(d, a, b, c):
        A("v_mfma_f32_16x16x32_bf16 %s, %s, %s, %s" % (vr(d, 4), vr(a, 4), vr(b, 4), "0" if c is None else vr(c, 4)))

    def issue_K(kb, soff):
        A("buffer_load_dwordx4 %s, v%d, %s, s%d offen %s" % (vr(kb, 4), vKX, srd(rK), soff, NT))
        A("buffer_load_dwordx4 %s, v%d, %s, s%d offen offset:1024 %s" % (vr(kb + 4, 4), vKX, srd(rK), soff, NT))
        A("buffer_load_dwordx4 %s, v%d, %s, s%d offen %s" % (vr(kb + 8, 4), vKY, srd(rK), soff, NT))
        A("buffer_load_dwordx4 %s, v%d, %s, s%d offen offset:1024 %s" % (vr(kb + 12, 4), vKY, srd(rK), soff, NT))

    def issue_V(vb, soff):
        for j in range(4):
            A("buffer_load_dwordx4 %s, v%d, %s, s%d offen offset:%d %s" % (vr(vb + 4 * j, 4), vV, srd(rV), soff, 1024 * j, NT))

    def ln_scalars(vmean, vvar):
        bf16_round(vmean, vmean)
        bf16_round(vvar, vvar)
        A("v_add_f32 v%d, %s, v%d" % (vvar, f32(1e-5), vvar))
        bf16_round(vvar, vvar)
        A("v_sqrt_f32 v%d, v%d" % (vvar, vvar))
        g.nop(1)
        bf16_round(vvar, vvar)

    def div_refined(q, a, b, rb, t):
        A("v_mul_f32 v%d, v%d, v%d" % (q, a, rb))
        A("v_fma_f32 v%d, -v%d, v%d, v%d" % (t, q, b, a))
        A("v_fmac_f32 v%d, v%d, v%d" % (q, t, rb))

    def sentinel_check(regs, t, lab_ok, t2=None, spec=()):
        regs = list(regs)
        spec = list(spec)
        ops = []
        if t2 is not None and len(regs) >= 8:
            h = (len(regs) // 2) | 1
            parts = [(t, regs[:h]), (t2, regs[h:])]
        else:
            parts = [(t, regs)]
        chains = []
        for tt, rr in parts:
            c = []
            if len(rr) >= 3:
                c.append("v_max3_u32 v%d, v%d, v%d, v%d" % (tt, rr[0], rr[1], rr[2]))
                rr = rr[3:]
            else:
                c.append("v_max_u32 v%d, v%d, v%d" % (tt, rr[0], rr[1]))
                rr = rr[2:]
            while rr:
                if len(rr) >= 2:
                    c.append("v_max3_u32 v%d, v%d, v%d, v%d" % (tt, tt, rr[0], rr[1]))
                    rr = rr[2:]
                else:
                    c.append("v_max_u32 v%d, v%d, v%d" % (tt, tt, rr[0]))
                    rr = []
            chains.append(c)
        n = max(len(c) for c in chains)
        for k in range(n):
            if spec:
                spec.pop(0)()
            for c in chains:
                if k < len(c):
                    A(c[k])
        for f_ in spec:
            f_()
        if len(chains) == 2:
            A("v_max_u32 v%d, v%d, v%d" % (t, t, t2))
        A("v_cmp_eq_u32 vcc, -1, v%d" % t)
        A("s_cbranch_vccz %s" % lab_ok)

    def poll(loads, regs, t, name, toggle=None, t2=None, spec=()):
        lp, lok = g.newlab(name + "p"), g.newlab(name + "ok")
        if toggle:
            A("s_mov_b32 s%d, s%d" % (sLB, toggle[0]))
        g.lab(lp)
        loads()
        if toggle:
            A("s_and_b32 s%d, s%d, s%d" % (sNext, sCnt, sCB))
            A("s_cselect_b32 s%d, 0, 0x%x" % (sNext, toggle[1]))
            A("s_xor_b32 s%d, s%d, s%d" % (toggle[0], sLB, sNext))
        exec_all()
        A("s_sub_u32 s%d, s%d, 1" % (sCnt, sCnt))
        A("s_waitcnt vmcnt(0)")
        sentinel_check(regs, t, lok, t2, spec)
        A("s_mov_b64 exec, vcc")
        A("s_cmp_gt_i32 s%d, 0" % sCnt)
        A("s_cbranch_scc1 %s" % lp)
        exec_all()
        g.lab(lok)

    def tail_barrier():
        if DRY:
            lb_ = g.newlab("nb")
            A("s_cmp_eq_u32 s%d, 1" % sDry)
            A("s_cbranch_scc1 %s" % lb_)
            A("s_barrier")
            g.lab(lb_)
        else:
            A("s_barrier")

    hdr = ["; generated by work/gen18.py - fused preLN + cached MHA decode + GELU FFN, one persistent launch",
           "; @launch grid=(256,1,1) block=(512,1,1) lds=%d" % LDS_BYTES,
           '.amdgcn_target "amdgcn-amd-amdhsa--gfx950"', ".text", ".globl %s_kernel" % NAME, ".p2align 8",
           ".type %s_kernel,@function" % NAME, "%s_kernel:" % NAME]

    vFl, vFA = T[20], T[21]
    A("s_cmp_ge_u32 s2, 256")
    A("s_cbranch_scc1 L_end")
    A("s_load_dwordx16 s[16:31], s[0:1], 0")
    A("s_load_dwordx8 s[32:39], s[0:1], 64")
    A("s_load_dwordx2 s[40:41], s[0:1], 96")
    if opt.get("ts"):
        A("s_memrealtime s[78:79]")
    A("v_and_b32 v%d, 63, v0" % vLane)
    A("v_lshrrev_b32 v%d, 6, v0" % T[0])
    A("v_lshlrev_b32 v%d, 4, v%d" % (vV, vLane))
    A("v_readfirstlane_b32 s%d, v%d" % (sW, T[0]))
    for k in range(4):
        A("v_mov_b32 v%d, 0" % (T[6] + k))
    A("ds_write_b128 v%d, %s offset:%d" % (T[6], vr(T[6], 4), LCNT))
    A("ds_write_b32 v%d, v%d offset:%d" % (T[6], T[6], LCNT + 16))
    if not opt.get("nopf"):
        lpf = g.newlab("nopf")
        A("s_cmp_lt_u32 s%d, 4" % sW)
        A("s_cbranch_scc1 %s" % lpf)
        A("s_getpc_b64 s[%d:%d]" % (rB, rB + 1))
        g.lab("L_pcref")
        A("s_sub_u32 s%d, s%d, L_pcref-%s_kernel" % (rB, rB, NAME))
        A("s_subb_u32 s%d, s%d, 0" % (rB + 1, rB + 1))
        A("s_and_b32 s%d, s%d, 0xffff" % (rB + 1, rB + 1))
        A("s_mov_b32 s%d, L_codeend-%s_kernel" % (rB + 2, NAME))
        A("s_mov_b32 s%d, 0x20000" % (rB + 3))
        A("s_sub_u32 s%d, s%d, 4" % (sTmp, sW))
        A("s_lshl_b32 s%d, s%d, 12" % (sTmp, sTmp))
        for k in range(4):
            A("buffer_load_dwordx4 %s, v%d, %s, s%d offen offset:%d" % (vr(P + 4 * k, 4), vV, srd(rB), sTmp, 1024 * k))
        g.lab(lpf)
    A("v_and_b32 v%d, 8, v0" % T[1])
    A("v_lshlrev_b32 v%d, 8, v%d" % (T[1], T[1]))
    A("v_add_u32 v%d, v%d, v%d" % (vKX, vV, T[1]))
    A("v_sub_u32 v%d, v%d, v%d" % (vKY, vV, T[1]))
    A("v_add_u32 v%d, 0x800, v%d" % (vKY, vKY))
    A("v_and_b32 v%d, 15, v0" % vI)
    A("v_bfe_u32 v%d, v0, 4, 2" % vG)
    A("s_lshr_b32 s%d, s2, 3" % sH)
    A("s_and_b32 s%d, s2, 7" % sT)
    sLt = sOS
    A("s_cmp_lt_u32 s%d, 5" % sT)
    A("s_cselect_b32 s%d, 1, 0" % sLt)
    A("s_andn2_b32 s%d, s%d, s%d" % (sLt, sLt, sT))
    A("s_sub_u32 s%d, s%d, 1" % (sSBW, sT))
    A("s_cmp_gt_u32 s%d, 2" % sT)
    A("s_subb_u32 s%d, s%d, 0" % (sSBW, sSBW))
    A("s_cmp_gt_u32 s%d, 4" % sT)
    A("s_subb_u32 s%d, s%d, 0" % (sSBW, sSBW))
    A("s_mul_i32 s%d, s%d, %d" % (sSBW, sSBW, NS))
    A("s_lshl_b32 s%d, s%d, 2" % (sTmp2, sT))
    A("s_add_u32 s%d, s%d, %d" % (sTmp2, sTmp2, 5 * NS + 1))
    A("s_cmp_eq_u32 s%d, 1" % sLt)
    A("s_cselect_b32 s%d, s%d, s%d" % (sSBW, sTmp2, sSBW))
    A("s_cselect_b32 s%d, -1, %d" % (sQU, 7 * NPF))
    sH0 = sDry
    A("s_mul_i32 s%d, s%d, %d" % (sTmp, sH, ROT))
    A("s_add_u32 s%d, s%d, s%d" % (sSBW, sSBW, sTmp))
    A("s_add_u32 s%d, s%d, s%d" % (sQU, sQU, sSBW))
    A("s_lshl_b32 s%d, s%d, 20" % (sH0, sH))
    if opt.get("bswap"):
        A("s_and_b32 s%d, s%d, 1" % (sTmp, sH))
        A("s_lshl_b32 s%d, s%d, 25" % (sTmp, sTmp))
        A("s_add_u32 s%d, s%d, s%d" % (sH0, sH0, sTmp))
    A("s_lshl_b32 s%d, s%d, 12" % (sSBW, sSBW))
    A("s_lshl_b32 s%d, s%d, 12" % (sQU, sQU))
    A("s_and_b32 s%d, s%d, 0xfffff" % (sQU, sQU))
    A("s_add_u32 s%d, s%d, s%d" % (sQU, sQU, sH0))
    A("v_cmp_eq_u32 vcc, 0, v%d" % vLane)
    A("v_mov_b32 v%d, 0x%x" % (T[5], WS_BYTES))
    A("s_sub_u32 s%d, s%d, 1" % (sTmp, sW))
    A("s_lshl_b32 s%d, s%d, 12" % (sTmp, sTmp))
    A("s_add_u32 s%d, s%d, s%d" % (sNext, sSBW, sTmp))
    A("s_and_b32 s%d, s%d, 0xfffff" % (sOff, sNext))
    A("s_add_u32 s%d, s%d, s%d" % (sOff, sOff, sH0))
    A("v_cndmask_b32 v%d, v%d, 0, vcc" % (vTkA, T[5]))
    A("s_waitcnt lgkmcnt(0)")
    mk_srd(rK, pK, 64 << 20)
    mk_srd(rV, pV, 64 << 20)
    mk_srd(rWS, pWS, WS_BYTES)
    mk_srd(rDBG, pDBG, 256)
    lQ, lsetup, lq2, lwaitq = g.newlab("qpath"), g.newlab("setup"), g.newlab("q2"), g.newlab("waitq")
    A("s_cmp_eq_u32 s%d, 0" % sW)
    A("s_cbranch_scc1 %s" % lQ)
    lsk, lpre = g.newlab("skipclr"), g.newlab("pre")
    A("s_cmp_lg_u32 s%d, 4" % sT)
    A("s_cbranch_scc1 %s" % lsk)
    A("s_cmp_lg_u32 s%d, 1" % sW)
    A("s_cbranch_scc1 %s" % lsk)
    CV = T[8]
    for k in range(4):
        A("v_mov_b32 v%d, -1" % (CV + k))
    A("v_mov_b32 v%d, 0" % T[12])
    A("v_mov_b32 v%d, 1" % T[13])
    A("s_mul_i32 s%d, s%d, 6144" % (sTmp, sH))
    A("s_add_u32 s%d, s%d, 4096" % (sTmp2, sTmp))
    for k in range(6):
        A("buffer_store_dwordx4 %s, v%d, %s, s%d offen offset:%d sc1" % (vr(CV, 4), vV, srd(rWS), sTmp if k < 4 else sTmp2, 1024 * (k & 3)))
    A("s_lshl_b32 s%d, s%d, 11" % (sTmp, sH))
    A("s_add_u32 s%d, s%d, 0x%x" % (sTmp, sTmp, WS_ST))
    A("v_lshlrev_b32 v%d, 7, v%d" % (T[14], vLane))
    exec_set(0xffff)
    A("buffer_store_dwordx2 %s, v%d, %s, s%d offen sc1" % (vr(CV, 2), T[14], srd(rWS), sTmp))
    exec_all()
    A("s_lshl_b32 s%d, s%d, 8" % (sTmp, sH))
    A("s_add_u32 s%d, s%d, 0x%x" % (sTmp, sTmp, WS_TK))
    A("buffer_store_dword v%d, v%d, %s, s%d offen sc1" % (T[12], vTkA, srd(rWS), sTmp))
    A("s_lshl_b32 s%d, s%d, 2" % (sTmp, sH))
    A("s_add_u32 s%d, s%d, 128" % (sTmp, sTmp))
    A("s_barrier")
    A("s_waitcnt vmcnt(0)")
    A("buffer_store_dword v%d, v%d, %s, s%d offen sc1" % (T[13], vTkA, srd(rDBG), sTmp))
    A("s_branch %s" % lpre)
    g.lab(lsk)
    A("s_barrier")
    g.lab(lpre)
    A("s_cmp_eq_u32 s%d, 1" % sLt)
    A("s_cbranch_scc1 %s" % lsetup)
    B0N = int(opt.get("b0n", 1))
    n_ = 0
    for k in range(NPF):
        bb = SB + 32 * k
        for kind in ("K", "V"):
            if n_ == B0N:
                A("s_barrier")
            elif n_ > B0N:
                A("s_waitcnt vmcnt(%d)" % PACE)
            if kind == "K":
                issue_K(bb, sOff)
            else:
                issue_V(bb + 16, sOff)
            n_ += 1
        if k < NPF - 1:
            A("s_add_u32 s%d, s%d, 0x7000" % (sNext, sNext))
            A("s_and_b32 s%d, s%d, 0xfffff" % (sOff, sNext))
            A("s_add_u32 s%d, s%d, s%d" % (sOff, sOff, sH0))
    A("s_branch %s" % lsetup)

    g.lab(lQ)
    A("s_setprio 3")
    A("s_load_dword s%d, s[%d:%d], 0x%x" % (sTag, pWS, pWS + 1, WS_EP))
    mk_srd(rA, pX, 2048)
    mk_srd(rB, pWQ, 4 << 20)
    vWQ = 64
    vXA, vXE = SB + 96, SB + 104
    F = [SB + 108 + k for k in range(16)]
    vAx, vAxe, vAwq = T[2], T[3], T[4]
    A("v_lshlrev_b32 v%d, 5, v%d" % (vAx, vLane))
    A("buffer_load_dwordx4 %s, v%d, %s, 0 offen" % (vr(vXA, 4), vAx, srd(rA)))
    A("buffer_load_dwordx4 %s, v%d, %s, 0 offen offset:16" % (vr(vXA + 4, 4), vAx, srd(rA)))
    A("v_lshl_add_u32 v%d, v%d, 2, v%d" % (vAxe, vI, vG))
    A("v_lshlrev_b32 v%d, 1, v%d" % (vAxe, vAxe))
    A("s_lshl_b32 s%d, s%d, 7" % (sTmp, sT))
    A("buffer_load_ushort v%d, v%d, %s, s%d offen" % (vXE, vAxe, srd(rA), sTmp))
    A("buffer_load_ushort v%d, v%d, %s, s%d offen offset:1024" % (vXE + 1, vAxe, srd(rA), sTmp))
    A("v_lshlrev_b32 v%d, 13, v%d" % (vAwq, vG))
    A("v_lshl_add_u32 v%d, v%d, 4, v%d" % (vAwq, vI, vAwq))
    A("s_lshl_b32 s%d, s%d, 19" % (sTmp, sT))
    A("s_lshl_b32 s%d, s%d, 8" % (sTmp2, sH))
    A("s_add_u32 s%d, s%d, s%d" % (sTmp, sTmp, sTmp2))
    for j in range(16):
        A("buffer_load_dwordx4 %s, v%d, %s, s%d offen %s" % (vr(vWQ + 4 * j, 4), vAwq, srd(rB), sTmp, WNT))
        if j < 15:
            A("s_add_u32 s%d, s%d, 0x8000" % (sTmp, sTmp))
    if opt.get("late"):
        A("s_waitcnt vmcnt(%d)" % int(opt.get("late")))
    A("s_barrier")

    g.lab(lsetup)
    if opt.get("ts"):
        A("s_mov_b32 s80, s78")
        for k in range(81, 94):
            A("s_mov_b32 s%d, 0" % k)
    mk_srd(rA, pX, 2048)
    A("s_lshl_b32 s%d, s%d, 8" % (sTmp, sH))
    A("s_add_u32 s%d, s%d, 0x%x" % (sTmp, sTmp, WS_TK))
    A("s_add_u32 s%d, s%d, s%d" % (sTkA, pWS, sTmp))
    A("s_addc_u32 s%d, s%d, 0" % (sTkA + 1, pWS + 1))
    A("s_mul_i32 s%d, s%d, %d" % (sBA, sH, ROT))
    A("s_add_u32 s%d, s%d, %d" % (sBA, sBA, 256 - NA))
    A("s_xor_b32 s%d, s%d, 0x2000000" % (sHB, sH0))
    A("s_mov_b32 s%d, %s" % (sScale, f32(128 ** -0.5)))
    A("s_mov_b32 s%d, %s" % (sL2E, f32(1.4426950408889634)))
    A("s_mov_b32 s%d, %d" % (sCnt, POLL_LIMIT))
    A("s_and_b32 s%d, s%d, 15" % (sRA, sH))
    A("s_cmp_lt_u32 s%d, 16" % sH)
    A("s_cselect_b32 s%d, 2, 3" % sRole)
    A("s_cmp_eq_u32 s%d, 2" % sT)
    A("s_cselect_b32 s%d, s%d, 0" % (sRole, sRole))
    A("s_cmp_eq_u32 s%d, 0" % sT)
    A("s_cselect_b32 s%d, 1, s%d" % (sRole, sRole))
    A("v_and_b32 v%d, 1, v%d" % (T[2], vG))
    A("v_cmp_eq_u32 s[%d:%d], 1, v%d" % (sMg1, sMg1 + 1, T[2]))
    A("v_and_b32 v%d, 1, v0" % T[3])
    A("v_cmp_eq_u32 s[%d:%d], 1, v%d" % (sMi1, sMi1 + 1, T[3]))
    A("v_lshlrev_b32 v%d, 4, v%d" % (T[3], T[3]))
    A("v_mov_b32 v%d, 0xffff" % T[4])
    A("v_lshlrev_b32 v%d, v%d, v%d" % (T[4], T[3], T[4]))
    A("v_bfe_u32 v%d, v0, 1, 2" % T[5])
    for d in range(4):
        A("v_cmp_eq_u32 vcc, %d, v%d" % (d, T[5]))
        g.nop(2)
        A("v_cndmask_b32 v%d, 0, v%d, vcc" % (vMask + d, T[4]))
    A("s_cmp_eq_u32 s%d, 0" % sW)
    A("s_cbranch_scc1 %s" % lq2)
    A("s_cmp_eq_u32 s%d, 0" % sLt)
    A("s_cbranch_scc1 %s" % lwaitq)
    A("s_barrier")
    issue_K(SB, sOff)
    issue_V(SB + 16, sOff)
    A("s_cmp_eq_u32 s%d, 0" % sRole)
    A("s_cbranch_scc1 %s" % lwaitq)
    A("s_call_b64 s[%d:%d], L_prep" % (sRet, sRet + 1))
    A("s_branch %s" % lwaitq)

    g.lab(lq2)
    A("v_and_b32 v%d, 31, v%d" % (vFA, vLane))
    A("v_lshlrev_b32 v%d, 2, v%d" % (vFA, vFA))
    A("v_lshrrev_b32 v%d, 3, v%d" % (T[6], vI))
    A("v_mul_u32_u24 v%d, 0x0202, v%d" % (T[6], T[6]))
    A("v_add_u32 v%d, 0x0100, v%d" % (T[6], T[6]))
    A("v_lshl_or_b32 v%d, v%d, 16, v%d" % (T[6], T[6], T[6]))
    A("v_mov_b32 v%d, 0x0c0c0c0c" % T[7])
    for d in range(4):
        A("v_bfi_b32 v%d, v%d, v%d, v%d" % (vSel + d, vMask + d, T[6], T[7]))
    A("s_waitcnt vmcnt(18)")
    for k in range(8):
        A("v_lshlrev_b32 v%d, 16, v%d" % (F[2 * k], vXA + k))
        A("v_and_b32 v%d, 0xffff0000, v%d" % (F[2 * k + 1], vXA + k))
    S = T[0:8]
    for k in range(8):
        A("v_add_f32 v%d, v%d, v%d" % (S[k], F[2 * k], F[2 * k + 1]))
    for st in (4, 2, 1):
        for k in range(st):
            A("v_add_f32 v%d, v%d, v%d" % (S[k], S[k], S[k + st]))

    def reduce32_add(x, t):
        for ctrl in ("quad_perm:[1,0,3,2]", "quad_perm:[2,3,0,1]", "row_half_mirror", "row_mirror"):
            g.nop(2)
            dpp("v_add_f32", x, x, x, ctrl)
        xrow16("v_add_f32", x, t)

    vMean, vVar = T[8], T[9]
    reduce32_add(S[0], T[10])
    A("v_mul_f32 v%d, %s, v%d" % (vMean, f32(1.0 / 512), S[0]))
    for k in range(16):
        A("v_sub_f32 v%d, v%d, v%d" % (F[k], F[k], vMean))
    for k in range(4):
        A("v_mul_f32 v%d, v%d, v%d" % (S[k], F[k], F[k]))
    for k in range(4, 16):
        A("v_fmac_f32 v%d, v%d, v%d" % (S[k & 3], F[k], F[k]))
    A("v_add_f32 v%d, v%d, v%d" % (S[0], S[0], S[1]))
    A("v_add_f32 v%d, v%d, v%d" % (S[2], S[2], S[3]))
    A("v_add_f32 v%d, v%d, v%d" % (S[0], S[0], S[2]))
    reduce32_add(S[0], T[10])
    A("v_mul_f32 v%d, %s, v%d" % (vVar, f32(1.0 / 512), S[0]))
    ln_scalars(vMean, vVar)
    A("v_mov_b32 v%d, v%d" % (T[10], vMean))
    A("v_mov_b32 v%d, v%d" % (T[11], vVar))
    g.nop(2)
    A("v_permlane32_swap_b32 v%d, v%d" % (vMean, T[10]))
    A("v_permlane32_swap_b32 v%d, v%d" % (vVar, T[11]))
    g.nop(1)
    A("v_rcp_f32 v%d, v%d" % (T[12], vVar))
    A("v_rcp_f32 v%d, v%d" % (T[13], T[11]))
    A("s_waitcnt vmcnt(16)")
    xn = [T[14], T[15]]
    vXN = T[18]
    for b in range(2):
        mm_, ss_, rr_ = (vMean, vVar, T[12]) if b == 0 else (T[10], T[11], T[13])
        A("v_lshlrev_b32 v%d, 16, v%d" % (T[16], vXE + b))
        A("v_sub_f32 v%d, v%d, v%d" % (T[16], T[16], mm_))
        bf16_round(T[16], T[16])
        div_refined(xn[b], T[16], ss_, rr_, T[17])
    A("v_cvt_pk_bf16_f32 v%d, v%d, v%d" % (vXN, xn[0], xn[1]))
    A("s_waitcnt lgkmcnt(0)")
    A("s_add_u32 s%d, s%d, 1" % (sTag, sTag))
    for j in range(16):
        B = vBa if j % 2 == 0 else vBb
        A("v_mov_b32_dpp v%d, v%d row_newbcast:%d %s" % (T[0], vXN, j, DPPALL))
        for d in range(4):
            A("v_perm_b32 v%d, v%d, v%d, v%d" % (B + d, T[0], T[0], vSel + d))
        A("s_waitcnt vmcnt(%d)" % (15 - j))
        g.nop(1)
        mfma(vAcc, vWQ + 4 * j, B, None if j == 0 else vAcc)
    A("v_lshrrev_b32 v%d, 3, v%d" % (T[4], vI))
    A("v_lshlrev_b32 v%d, 8, v%d" % (T[4], T[4]))
    A("v_lshl_add_u32 v%d, v%d, 6, v%d" % (T[4], vG, T[4]))
    A("v_and_b32 v%d, 7, v%d" % (T[5], vI))
    A("v_lshl_add_u32 v%d, v%d, 1, v%d" % (T[4], T[5], T[4]))
    A("s_lshl_b32 s%d, s2, 11" % sTmp)
    A("s_add_u32 s%d, s%d, 0x%x" % (sTmp, sTmp, WS_QP))
    A("s_lshl_b32 s%d, s%d, 14" % (sTmp2, sH))
    A("s_add_u32 s%d, s%d, 0x%x" % (sTmp2, sTmp2, WS_QP))
    QS = T[6]
    for r in range(4):
        A("v_mov_b32 v%d, s%d" % (QS + 2 * r + 1, sTag))
    for r in range(4):
        A("v_mov_b32 v%d, v%d" % (QS + 2 * r, vAcc + r))
    A("buffer_store_dwordx4 %s, v%d, %s, s%d offen sc1" % (vr(QS, 4), vV, srd(rWS), sTmp))
    A("buffer_store_dwordx4 %s, v%d, %s, s%d offen offset:1024 sc1" % (vr(QS + 4, 4), vV, srd(rWS), sTmp))
    g.ts(2)
    lqf, lqdone = g.newlab("qf"), g.newlab("qdone")
    A("v_lshlrev_b32 v%d, 3, v%d" % (T[19], vLane))
    A("s_cmp_lg_u32 s%d, 4" % sT)
    A("s_cbranch_scc1 %s" % lqf)
    lp, lok = g.newlab("qp"), g.newlab("qok")
    sPend = sPh
    QR = 64
    A("s_mov_b32 s%d, 0x1ff" % sPend)
    g.lab(lp)
    for k in range(8):
        lk = g.newlab("qs")
        A("s_bitcmp0_b32 s%d, %d" % (sPend, k))
        A("s_cbranch_scc1 %s" % lk)
        A("s_add_u32 s%d, s%d, %d" % (sOff, sTmp2, 2048 * k))
        A("buffer_load_dwordx4 %s, v%d, %s, s%d offen sc1" % (vr(QR + 8 * k, 4), vV, srd(rWS), sOff))
        A("buffer_load_dwordx4 %s, v%d, %s, s%d offen offset:1024 sc1" % (vr(QR + 8 * k + 4, 4), vV, srd(rWS), sOff))
        g.lab(lk)
    lk = g.newlab("qs")
    A("s_bitcmp0_b32 s%d, 8" % sPend)
    A("s_cbranch_scc1 %s" % lk)
    A("buffer_load_dword v%d, v%d, %s, 0 offen offset:128 sc1" % (vFl, vFA, srd(rDBG)))
    g.lab(lk)
    A("s_waitcnt vmcnt(0)")
    A("v_cmp_ne_u32 vcc, 1, v%d" % vFl)
    A("s_cmp_lg_u64 vcc, 0")
    A("s_cselect_b32 s%d, 0x100, 0" % sPend)
    for k in range(8):
        q_ = QR + 8 * k
        A("v_xor_b32 v%d, s%d, v%d" % (T[5], sTag, q_ + 1))
        A("v_xor_b32 v%d, s%d, v%d" % (T[16], sTag, q_ + 3))
        A("v_xor_b32 v%d, s%d, v%d" % (T[17], sTag, q_ + 5))
        A("v_xor_b32 v%d, s%d, v%d" % (T[18], sTag, q_ + 7))
        A("v_or3_b32 v%d, v%d, v%d, v%d" % (T[5], T[5], T[16], T[17]))
        A("v_or_b32 v%d, v%d, v%d" % (T[5], T[5], T[18]))
        A("v_cmp_ne_u32 vcc, 0, v%d" % T[5])
        A("s_cmp_lg_u64 vcc, 0")
        A("s_cselect_b32 s%d, %d, 0" % (sNext, 1 << k))
        A("s_or_b32 s%d, s%d, s%d" % (sPend, sPend, sNext))
    A("s_cmp_eq_u32 s%d, 0" % sPend)
    A("s_cbranch_scc1 %s" % lok)
    A("s_sub_u32 s%d, s%d, 1" % (sCnt, sCnt))
    A("s_cmp_gt_i32 s%d, 0" % sCnt)
    A("s_cbranch_scc1 %s" % lp)
    g.lab(lok)
    for st in (4, 2, 1):
        for k in range(st):
            for r in range(4):
                A("v_add_f32 v%d, v%d, v%d" % (QR + 8 * k + 2 * r, QR + 8 * k + 2 * r, QR + 8 * (k + st) + 2 * r))
    A("v_cvt_pk_bf16_f32 v%d, v%d, v%d" % (T[10], QR, QR + 2))
    A("v_cvt_pk_bf16_f32 v%d, v%d, v%d" % (T[11], QR + 4, QR + 6))
    A("v_mov_b32 v%d, 1" % T[2])
    A("v_mov_b32 v%d, 0" % T[3])
    A("ds_write_b16 v%d, v%d offset:%d" % (T[4], T[10], LQF))
    A("ds_write_b16_d16_hi v%d, v%d offset:%d" % (T[4], T[10], LQF + 16))
    A("ds_write_b16 v%d, v%d offset:%d" % (T[4], T[11], LQF + 32))
    A("ds_write_b16_d16_hi v%d, v%d offset:%d" % (T[4], T[11], LQF + 48))
    A("ds_read_b64 %s, v%d offset:%d" % (vr(T[10], 2), T[19], LQF))
    A("s_lshl_b32 s%d, s%d, 10" % (sTmp2, sH))
    A("s_add_u32 s%d, s%d, 0x%x" % (sTmp2, sTmp2, WS_QF))
    A("s_waitcnt lgkmcnt(0)")
    A("v_mov_b32 v%d, v%d" % (QS, T[10]))
    A("v_mov_b32 v%d, v%d" % (QS + 2, T[11]))
    A("buffer_store_dwordx4 %s, v%d, %s, s%d offen sc1" % (vr(QS, 4), vV, srd(rWS), sTmp2))
    A("s_barrier")
    A("s_branch %s" % lqdone)
    g.lab(lqf)
    A("s_barrier")
    A("s_lshl_b32 s%d, s%d, 10" % (sTmp2, sH))
    A("s_add_u32 s%d, s%d, 0x%x" % (sTmp2, sTmp2, WS_QF))
    A("s_add_u32 s%d, s%d, s%d" % (sRet, pWS, sTmp2))
    A("s_addc_u32 s%d, s%d, 0" % (sRet + 1, pWS + 1))
    lpr, lprd = g.newlab("probe"), g.newlab("probed")
    A("s_mov_b32 s%d, 400" % sPend)
    g.lab(lpr)
    A("s_load_dword s%d, s[%d:%d], 0x3fc glc" % (sTmp, sRet, sRet + 1))
    A("s_waitcnt lgkmcnt(0)")
    A("s_cmp_eq_u32 s%d, s%d" % (sTmp, sTag))
    A("s_cbranch_scc1 %s" % lprd)
    A("s_sleep 1")
    A("s_sub_u32 s%d, s%d, 1" % (sPend, sPend))
    A("s_cmp_gt_i32 s%d, 0" % sPend)
    A("s_cbranch_scc1 %s" % lpr)
    g.lab(lprd)
    g.ts(1)
    lf1, lf2 = g.newlab("qfl"), g.newlab("qfok")
    g.lab(lf1)
    A("buffer_load_dwordx4 %s, v%d, %s, s%d offen sc1" % (vr(QS, 4), vV, srd(rWS), sTmp2))
    A("s_waitcnt vmcnt(0)")
    A("v_xor_b32 v%d, s%d, v%d" % (T[16], sTag, QS + 1))
    A("v_xor_b32 v%d, s%d, v%d" % (T[17], sTag, QS + 3))
    A("v_or_b32 v%d, v%d, v%d" % (T[16], T[16], T[17]))
    A("v_cmp_ne_u32 vcc, 0, v%d" % T[16])
    A("s_cbranch_vccz %s" % lf2)
    A("s_sub_u32 s%d, s%d, 1" % (sCnt, sCnt))
    A("s_cmp_gt_i32 s%d, 0" % sCnt)
    A("s_cbranch_scc1 %s" % lf1)
    g.lab(lf2)
    A("v_add_u32 v%d, %d, v%d" % (T[19], LQF, T[19]))
    A("v_mov_b32 v%d, 1" % T[2])
    A("v_mov_b32 v%d, 0" % T[3])
    A("ds_write2_b32 v%d, v%d, v%d offset0:0 offset1:1" % (T[19], QS, QS + 2))
    g.lab(lqdone)
    A("ds_write_b32 v%d, v%d offset:%d" % (T[3], T[2], LCNT + 12))
    A("s_setprio 0")
    issue_K(SB + 0, sQU)
    issue_V(SB + 16, sQU)

    g.lab(lwaitq)
    A("v_mov_b32 v%d, 0" % T[3])
    A("v_lshlrev_b32 v%d, 4, v%d" % (T[4], vI))
    lsp, lgo = g.newlab("qspin"), g.newlab("qgo")
    g.lab(lsp)
    A("ds_read_b32 v%d, v%d offset:%d" % (T[2], T[3], LCNT + 12))
    A("s_waitcnt lgkmcnt(0)")
    A("v_cmp_eq_u32 vcc, 1, v%d" % T[2])
    A("s_cbranch_vccnz %s" % lgo)
    A("s_sleep 1")
    A("s_branch %s" % lsp)
    g.lab(lgo)
    if opt.get("bswap"):
        A("s_and_b32 s%d, s%d, 1" % (sTmp, sH))
        A("s_lshl_b32 s%d, s%d, 8" % (sTmp, sTmp))
        A("v_add_u32 v%d, s%d, v%d" % (T[4], sTmp, T[4]))
        A("v_xor_b32 v%d, 0x100, v%d" % (T[5], T[4]))
        A("ds_read_b128 %s, v%d offset:%d" % (vr(vQ0, 4), T[4], LQF))
        A("ds_read_b128 %s, v%d offset:%d" % (vr(vQ1, 4), T[5], LQF))
    else:
        A("ds_read_b128 %s, v%d offset:%d" % (vr(vQ0, 4), T[4], LQF))
        A("ds_read_b128 %s, v%d offset:%d" % (vr(vQ1, 4), T[4], LQF + 256))

    def reset_state():
        for r in range(4):
            A("v_mov_b32 v%d, 0" % (vAcc + r))
        A("v_mov_b32 v%d, 0xff7fffff" % vM)
        A("v_mov_b32 v%d, 0" % vL)

    reset_state()
    A("s_waitcnt lgkmcnt(0)")
    g.ts(3)
    if opt.get("prog"):
        A("s_mov_b32 m0, 0")
        A("v_mov_b32 v56, 0")

    tX0, tX1, tY0, tY1 = T[0], T[1], T[2], T[3]
    r0, r1, u = T[4], T[5], T[6]
    sv, mx, tm, al, p, pd, ps = T[7], T[8], T[9], T[10], T[11], T[12], T[13]

    def H1(kb, q, kwait, filler=None):
        if kwait is not None:
            A("s_waitcnt vmcnt(%d)" % kwait)
        accs = [tX0, tX1, tY0, tY1]
        for e in range(4):
            for a in range(4):
                c = "0" if e == 0 else "v%d" % accs[a]
                A("v_dot2_f32_bf16 v%d, v%d, v%d, %s" % (accs[a], kb + 4 * a + e, q + e, c))
        if filler:
            filler()
        else:
            g.nop(3)
        dpp("v_add_f32", r0, tY0, tX0, "row_ror:8")
        dpp("v_add_f32", r1, tY1, tX1, "row_ror:8")

    def H2(vb, vwait_base):
        dpp("v_add_f32", u, r0, r0, "row_shl:4", "0x5")
        dpp("v_add_f32", u, r1, r1, "row_shr:4", "0xa")
        g.nop(2)
        dpp("v_add_f32", u, u, u, "quad_perm:[2,3,0,1]")
        g.nop(2)
        dpp("v_add_f32", u, u, u, "quad_perm:[1,0,3,2]")
        bf16_round(sv, u)
        A("v_mul_f32 v%d, s%d, v%d" % (sv, sScale, sv))
        bf16_round(sv, sv)
        g.nop(2)
        dpp("v_max_f32", mx, sv, sv, "row_ror:4")
        g.nop(2)
        dpp("v_max_f32", mx, mx, mx, "row_ror:8")
        xrow16("v_max_f32", mx, tm)
        xrow32("v_max_f32", mx, tm)
        A("v_max_f32 v%d, v%d, v%d" % (mx, mx, vM))
        A("v_sub_f32 v%d, v%d, v%d" % (p, sv, mx))
        A("v_sub_f32 v%d, v%d, v%d" % (al, vM, mx))
        A("v_mul_f32 v%d, s%d, v%d" % (p, sL2E, p))
        A("v_mul_f32 v%d, s%d, v%d" % (al, sL2E, al))
        A("v_exp_f32 v%d, v%d" % (p, p))
        A("v_exp_f32 v%d, v%d" % (al, al))
        A("v_mov_b32 v%d, v%d" % (vM, mx))
        A("v_cvt_pk_bf16_f32 v%d, v%d, v%d" % (pd, p, p))
        for r in range(4):
            A("v_mul_f32 v%d, v%d, v%d" % (vAcc + r, vAcc + r, al))
        dpp("v_add_f32", ps, p, p, "row_ror:4")
        for d in range(4):
            dpp("v_and_b32", vBa + d, pd, vMask + d, "row_newbcast:0")
        dpp("v_add_f32", ps, ps, ps, "row_ror:8")
        for d in range(4):
            dpp("v_and_b32", vBb + d, pd, vMask + d, "row_newbcast:4")
        xrow16("v_add_f32", ps, tm)
        xrow32("v_add_f32", ps, tm)
        A("v_fma_f32 v%d, v%d, v%d, v%d" % (vL, vL, al, ps))
        for j in range(4):
            B = vBa if j % 2 == 0 else vBb
            if j >= 2:
                for d in range(4):
                    dpp("v_and_b32", B + d, pd, vMask + d, "row_newbcast:%d" % (4 * j))
                g.nop(1)
            if vwait_base is not None:
                A("s_waitcnt vmcnt(%d)" % (vwait_base + 3 - j))
            else:
                g.nop(1)
            mfma(vAcc, vb + 4 * j, B, vAcc)
        if opt.get("prog"):
            A("s_memrealtime s[76:77]")
            A("s_waitcnt lgkmcnt(0)")
            A("v_writelane_b32 v56, s76, m0")
            A("s_add_u32 m0, m0, 1")

    def dump_and_combine(b):
        C = P
        A("s_lshl_b32 s%d, s%d, 10" % (sTmp, sW))
        A("v_add_u32 v%d, s%d, v%d" % (T[8], sTmp, vV))
        A("s_lshl_b32 s%d, s%d, 3" % (sTmp, sW))
        A("v_mov_b32 v%d, s%d" % (T[9], sTmp))
        A("v_mov_b32 v%d, 1" % T[10])
        A("v_and_b32 v%d, 7, v%d" % (T[0], vI))
        A("v_lshl_add_u32 v%d, v%d, 4, v%d" % (T[1], vG, T[0]))
        A("v_lshrrev_b32 v%d, 3, v%d" % (T[2], vI))
        A("ds_write_b64 v%d, %s offset:%d" % (T[9], vr(vM, 2), LML + 64 * b))
        A("ds_write_b128 v%d, %s offset:%d" % (T[8], vr(vAcc, 4), LC + 8192 * b))
        A("v_lshlrev_b32 v%d, 5, v%d" % (T[3], T[2]))
        A("v_lshlrev_b32 v%d, 4, v%d" % (T[1], T[1]))
        exec_set(1)
        A("ds_add_rtn_u32 v%d, v%d, v%d offset:%d" % (T[10], vLA, T[10], LCNT + 4 * b))
        exec_all()
        A("v_xor_b32 v%d, 32, v%d" % (T[4], T[3]))
        A("v_lshl_add_u32 v%d, v%d, 12, v%d" % (T[1], T[2], T[1]))
        A("ds_read_b128 %s, v%d offset:%d" % (vr(C + 16, 4), T[3], LML + 64 * b))
        A("ds_read_b128 %s, v%d offset:%d" % (vr(C + 20, 4), T[3], LML + 64 * b + 16))
        A("ds_read_b128 %s, v%d offset:%d" % (vr(C + 24, 4), T[4], LML + 64 * b))
        A("ds_read_b128 %s, v%d offset:%d" % (vr(C + 28, 4), T[4], LML + 64 * b + 16))
        for k in range(4):
            A("ds_read_b128 %s, v%d offset:%d" % (vr(C + 4 * k, 4), T[1], LC + 8192 * b + 1024 * k))
        A("s_mov_b32 s%d, %d" % (sCB, b))
        A("s_waitcnt lgkmcnt(8)")
        A("v_readfirstlane_b32 s%d, v%d" % (sTmp, T[10]))
        lno = g.newlab("nocomb")
        g.nop(1)
        A("s_cmp_lg_u32 s%d, 7" % sTmp)
        A("s_cbranch_scc1 %s" % lno)
        A("s_call_b64 s[%d:%d], L_combine" % (sRet, sRet + 1))
        g.lab(lno)
        A("s_waitcnt lgkmcnt(0)")

    vLT, vLA = T[14], T[15]
    vLT, vLA = T[14], T[15]
    A("v_mov_b32 v%d, 0" % vLA)
    A("s_mov_b32 s%d, 2" % sPh)
    A("s_cmp_eq_u32 s%d, 1" % sLt)
    A("s_cselect_b32 s%d, 1, %d" % (sPo, 0 if NS > NP0 else 1))
    lloop, lexit, lsw, lextra, lcont = (g.newlab(n) for n in ("loop", "exit", "switch", "extra", "cont"))
    lg1, lg2, lg3, lg4 = (g.newlab(n) for n in ("tk", "tk", "tk", "tk"))
    g.lab(lloop)
    A("s_mov_b32 s%d, 1" % sNext)
    A("s_cmp_eq_u32 s%d, 0" % sPo)
    A("s_cbranch_scc1 %s" % lg1)
    A("s_atomic_add s%d, s[%d:%d], 0 glc" % (sNext, sTkA, sTkA + 1))
    A("s_branch %s" % lg2)
    g.lab(lg1)
    A("v_mov_b32 v%d, 1" % vLT)
    exec_set(1)
    A("ds_add_rtn_u32 v%d, v%d, v%d offset:%d" % (vLT, vLA, vLT, LCNT + 8))
    exec_all()
    g.lab(lg2)

    def fill():
        A("s_waitcnt lgkmcnt(0)")
        A("s_cmp_eq_u32 s%d, 1" % sPo)
        A("s_cbranch_scc1 %s" % lg3)
        A("v_readfirstlane_b32 s%d, v%d" % (sTmp, vLT))
        g.nop(1)
        A("s_add_u32 s%d, s%d, %d" % (sTmp, sTmp, NP0))
        A("s_lshl_b32 s%d, s%d, 12" % (sOff, sTmp))
        A("s_add_u32 s%d, s%d, s%d" % (sOff, sOff, sSBW))
        A("s_and_b32 s%d, s%d, 0xfffff" % (sOff, sOff))
        A("s_add_u32 s%d, s%d, s%d" % (sOff, sOff, sH0))
        A("s_mov_b32 s%d, -1" % sNext)
        A("s_cmp_lt_u32 s%d, %d" % (sTmp, NS))
        A("s_cbranch_scc1 %s" % lg4)
        A("s_mov_b32 s%d, 1" % sPo)
        A("s_mov_b32 s%d, 1" % sNext)
        A("s_atomic_add s%d, s[%d:%d], 0 glc" % (sNext, sTkA, sTkA + 1))
        A("s_waitcnt lgkmcnt(0)")
        g.lab(lg3)
        A("s_cmp_lt_u32 s%d, %d" % (sNext, NA))
        A("s_cselect_b32 s%d, s%d, s%d" % (sTmp, sH0, sHB))
        A("s_add_u32 s%d, s%d, s%d" % (sOff, sNext, sBA))
        A("s_and_b32 s%d, s%d, 255" % (sOff, sOff))
        A("s_lshl_b32 s%d, s%d, 12" % (sOff, sOff))
        A("s_add_u32 s%d, s%d, s%d" % (sOff, sOff, sTmp))
        A("s_cmp_lt_u32 s%d, %d" % (sNext, NL))
        A("s_cselect_b32 s%d, s%d, 0x4000000" % (sOff, sOff))
        g.lab(lg4)

    H1(SB + 0, vQ0, 4, fill)
    lfinal = g.newlab("final")
    if TAP:
        A("s_cmp_lg_u32 s%d, 0x4000000" % sOff)
        A("s_cselect_b32 s%d, 0, s%d" % (sTmp, sPh))
        A("s_cmp_eq_u32 s%d, 1" % sTmp)
        A("s_cbranch_scc1 %s" % lfinal)
    issue_K(SB + 0, sOff)
    H2(SB + 16, 4)
    issue_V(SB + 16, sOff)
    A("s_cmp_eq_u32 s%d, 2" % sPh)
    A("s_cbranch_scc1 %s" % lextra)
    g.lab(lcont)
    A("s_cmp_lt_i32 s%d, %d" % (sNext, NA))
    A("s_cbranch_scc1 %s" % lloop)
    A("s_cmp_eq_u32 s%d, 0" % sPh)
    A("s_cbranch_scc1 %s" % lsw)
    llast = g.newlab("last")
    lchk = g.newlab("chk")
    g.lab(lchk)
    if TAP:
        A("s_cmp_lt_u32 s%d, %d" % (sNext, NL - TAP))
        A("s_cbranch_scc1 %s" % lloop)
        A("s_cmp_ge_u32 s%d, %d" % (sNext, NL))
        A("s_cbranch_scc1 %s" % lexit)
        A("s_cmp_lt_u32 s%d, 4" % sW)
        A("s_cbranch_scc1 %s" % lloop)
        H1(SB + 0, vQ0, 4)
        g.nop(1)
        g.lab(lfinal)
        H2(SB + 16, 0)
        A("s_branch %s" % lexit)
    else:
        A("s_cmp_lt_u32 s%d, %d" % (sNext, NL))
        A("s_cbranch_scc1 %s" % lloop)
        A("s_branch %s" % lexit)
    g.lab(lextra)
    lqw, lj = g.newlab("qw"), g.newlab("join")
    A("s_cmp_eq_u32 s%d, 0" % sW)
    A("s_cbranch_scc1 %s" % lqw)
    A("s_cmp_eq_u32 s%d, 1" % sLt)
    A("s_cbranch_scc1 %s" % lj)
    for k in range(1, NPF):
        bb = SB + 32 * k
        H1(bb, vQ0, 8)
        g.nop(1)
        H2(bb + 16, None)
    A("s_branch %s" % lj)
    g.lab(lqw)
    A("s_cmp_eq_u32 s%d, 0" % sRole)
    A("s_cbranch_scc1 %s" % lj)
    A("s_call_b64 s[%d:%d], L_prep" % (sRet, sRet + 1))
    A("s_cmp_lg_u32 s%d, 2" % sRole)
    A("s_cbranch_scc1 %s" % lj)
    A("s_getreg_b32 s%d, hwreg(HW_REG_XCC_ID)" % sTmp)
    A("s_and_b32 s%d, s%d, 15" % (sTmp, sTmp))
    A("v_mov_b32 v%d, s%d" % (T[0], sTmp))
    A("s_lshl_b32 s%d, s%d, 2" % (sTmp, sRA))
    A("s_add_u32 s%d, s%d, 0x%x" % (sTmp, sTmp, WS_XS))
    A("buffer_store_dword v%d, v%d, %s, s%d offen sc1" % (T[0], vTkA, srd(rWS), sTmp))
    g.lab(lj)
    A("s_mov_b32 s%d, 0" % sPh)
    A("s_branch %s" % lcont)
    g.lab(lsw)
    dump_and_combine(0)
    g.ts(4)
    reset_state()
    for d in range(4):
        A("v_mov_b32 v%d, v%d" % (vQ0 + d, vQ1 + d))
    A("s_mov_b32 s%d, 1" % sPh)
    A("s_branch %s" % lchk)
    g.lab(lexit)
    g.ts(5)
    dump_and_combine(1)
    g.ts(6)

    lF2, lfin, lnext = g.newlab("roleF2"), g.newlab("fin"), g.newlab("next")
    A("s_cmp_eq_u32 s%d, 0" % sRole)
    A("s_cbranch_scc1 %s" % lfin)
    g.lab("L_tail")
    A("s_mov_b32 s%d, %d" % (sCnt, POLL_LIMIT - 1))
    if opt.get("pf2"):
        A("s_getpc_b64 s[%d:%d]" % (rB, rB + 1))
        g.lab("L_pcref2")
        A("s_and_b32 s%d, s%d, 0xffff" % (rB + 1, rB + 1))
        A("s_mov_b32 s%d, L_combine-L_pcref2" % (rB + 2))
        A("s_mov_b32 s%d, 0x20000" % (rB + 3))
        A("s_lshl_b32 s%d, s%d, 10" % (sTmp, sW))
        A("buffer_load_dwordx4 %s, v%d, %s, s%d offen" % (vr(P + 20, 4), vV, srd(rB), sTmp))
    A("s_cmp_lg_u32 s%d, 1" % sRole)
    A("s_cbranch_scc1 %s" % lnext)
    DD = SB
    A("v_lshlrev_b32 v%d, 8, v%d" % (T[0], vI))
    A("v_lshl_add_u32 v%d, v%d, 4, v%d" % (T[0], vG, T[0]))
    A("s_and_b32 s%d, s%d, 24" % (sTmp, sH))
    A("s_add_u32 s%d, s%d, s%d" % (sTmp, sTmp, sW))
    A("s_lshl_b32 s%d, s%d, 11" % (sTmp2, sTmp))
    A("s_add_u32 s%d, s%d, 0x%x" % (sTmp2, sTmp2, WS_ST))
    A("s_lshl_b32 s%d, s%d, 12" % (sTmp, sTmp))
    A("v_and_b32 v%d, 7, v%d" % (T[1], vI))
    A("v_and_b32 v%d, 1, v%d" % (T[2], vG))
    A("v_lshlrev_b32 v%d, 2, v%d" % (T[2], T[2]))
    A("v_xor_b32 v%d, v%d, v%d" % (T[1], T[1], T[2]))
    A("v_lshlrev_b32 v%d, 7, v%d" % (T[1], T[1]))
    A("v_lshrrev_b32 v%d, 1, v%d" % (T[2], vG))
    A("v_lshl_add_u32 v%d, v%d, 10, v%d" % (T[1], T[2], T[1]))

    A("v_mov_b32 v%d, 1" % T[13])
    A("v_mov_b32 v%d, 0" % T[19])

    def ldW():
        for j in range(4):
            A("buffer_load_dwordx4 %s, v%d, %s, s%d offen offset:%d sc1" % (vr(P + 4 * j, 4), T[0], srd(rWS), sTmp, 64 * j))
        A("buffer_load_dwordx2 %s, v%d, %s, s%d offen sc1" % (vr(P + 16, 2), T[1], srd(rWS), sTmp2))
    if opt.get("wgate"):
        def ldS():
            A("buffer_load_dwordx2 %s, v%d, %s, s%d offen sc1" % (vr(P + 16, 2), T[1], srd(rWS), sTmp2))
        A("v_mov_b32 v%d, 0" % (P + 18))
        poll(ldS, range(P + 16, P + 19), T[5], "ws")
        g.ts(9)

        def ldD():
            for j in range(4):
                A("buffer_load_dwordx4 %s, v%d, %s, s%d offen offset:%d sc1" % (vr(P + 4 * j, 4), T[0], srd(rWS), sTmp, 64 * j))
        poll(ldD, range(P, P + 16), T[5], "wd")
    else:
        poll(ldW, range(P, P + 18), T[5], "w", None, T[6],
             [(lambda j=j: mfma(DD, P + 4 * j, vW + 16 * j, None if j == 0 else DD)) for j in range(4)])
    g.ts(7)
    mm, ee, ll = T[10], T[11], T[12]
    chain = [
        lambda: dpp("v_max_f32", mm, P + 16, P + 16, "quad_perm:[1,0,3,2]"),
        lambda: A("s_lshl_b32 s%d, s%d, 10" % (sOff, sW)),
        lambda: dpp("v_max_f32", mm, mm, mm, "quad_perm:[2,3,0,1]"),
        lambda: A("v_add_u32 v%d, s%d, v%d" % (T[4], sOff, vV)),
        lambda: dpp("v_max_f32", mm, mm, mm, "row_half_mirror"),
        lambda: A("v_sub_f32 v%d, v%d, v%d" % (ee, P + 16, mm)),
        lambda: A("v_mul_f32 v%d, s%d, v%d" % (ee, sL2E, ee)),
        lambda: A("v_exp_f32 v%d, v%d" % (ee, ee)),
        lambda: A("v_mul_f32 v%d, v%d, v%d" % (ll, ee, P + 17)),
        lambda: A("v_lshlrev_b32 v%d, 11, v%d" % (T[0], T[2])),
        lambda: dpp("v_add_f32", ll, ll, ll, "quad_perm:[1,0,3,2]"),
        lambda: A("v_lshl_add_u32 v%d, v%d, 4, v%d" % (T[0], vI, T[0])),
        lambda: dpp("v_add_f32", ll, ll, ll, "quad_perm:[2,3,0,1]"),
        lambda: A("s_lshr_b32 s%d, s%d, 3" % (sTmp, sH)),
        lambda: dpp("v_add_f32", ll, ll, ll, "row_half_mirror"),
        lambda: A("v_rcp_f32 v%d, v%d" % (ll, ll))]
    chain += [lambda: A("s_lshl_b32 s%d, s%d, 12" % (sTmp, sTmp)),
              lambda: A("v_mul_f32 v%d, v%d, v%d" % (ee, ee, ll)),
              lambda: A("s_and_b32 s%d, s%d, 7" % (sTmp2, sH)),
              lambda: A("s_lshl_b32 s%d, s%d, 8" % (sTmp2, sTmp2))]
    Y = T[14]

    def scale(c):
        out = [lambda: dpp("v_mul_f32", Y + c, ee, DD + 4 * c, "row_newbcast:0")]
        for r in range(1, 4):
            out.append(lambda r=r: dpp("v_fmac_f32", Y + c, ee, DD + 4 * c + r, "row_newbcast:%d" % r))
        return out
    fill_ = chain + scale(0) + scale(1)
    for c in range(1, 4):
        for j in range(4):
            mfma(DD + 4 * c, P + 4 * j, vW + 16 * j + 4 * c, None if j == 0 else DD + 4 * c)
            for _ in range(2 if len(fill_) > 8 else 4):
                if fill_:
                    fill_.pop(0)()
    assert not fill_
    for f_ in scale(2):
        f_()
    for f_ in scale(3):
        f_()
    A("ds_write_b128 v%d, %s offset:%d" % (T[4], vr(Y, 4), LR))
    exec_set(1)
    A("ds_add_rtn_u32 v%d, v%d, v%d offset:%d" % (T[13], T[19], T[13], LCNT + 16))
    exec_all()
    for k in range(8):
        A("ds_read_b128 %s, v%d offset:%d" % (vr(P + 4 * k, 4), vV, LR + 1024 * k))
    A("s_add_u32 s%d, s%d, s%d" % (sTmp, sTmp, sTmp2))
    A("s_add_u32 s%d, s%d, 0x%x" % (sTmp2, sTmp, WS_AP))
    A("s_waitcnt lgkmcnt(8)")
    A("v_readfirstlane_b32 s%d, v%d" % (sTmp, T[13]))
    g.nop(1)
    A("s_cmp_lg_u32 s%d, 7" % sTmp)
    A("s_cbranch_scc1 %s" % lfin)
    A("s_waitcnt lgkmcnt(6)")
    for r in range(4):
        A("v_add_f32 v%d, v%d, v%d" % (P + r, P + r, P + 4 + r))
    A("s_waitcnt lgkmcnt(4)")
    for r in range(4):
        A("v_add_f32 v%d, v%d, v%d" % (P + 8 + r, P + 8 + r, P + 12 + r))
    A("s_waitcnt lgkmcnt(2)")
    for r in range(4):
        A("v_add_f32 v%d, v%d, v%d" % (P + 16 + r, P + 16 + r, P + 20 + r))
    for r in range(4):
        A("v_add_f32 v%d, v%d, v%d" % (P + r, P + r, P + 8 + r))
    A("s_waitcnt lgkmcnt(0)")
    for r in range(4):
        A("v_add_f32 v%d, v%d, v%d" % (P + 24 + r, P + 24 + r, P + 28 + r))
    for r in range(4):
        A("v_add_f32 v%d, v%d, v%d" % (P + 16 + r, P + 16 + r, P + 24 + r))
    for r in range(4):
        A("v_add_f32 v%d, v%d, v%d" % (P + r, P + r, P + 16 + r))
    multi_xrow(16, "v_add_f32", [P + r for r in range(4)], [T[6 + r] for r in range(4)])
    for r in range(4):
        A("v_min_u32 v%d, -2, v%d" % (P + r, P + r))
    exec_set(0x0000ffff, 0x0000ffff)
    A("buffer_store_dwordx4 %s, v%d, %s, s%d offen sc1" % (vr(P, 4), T[0], srd(rWS), sTmp2))
    exec_all()
    g.ts(8)
    A("s_branch %s" % lfin)
    g.lab(lnext)
    A("s_cmp_eq_u32 s%d, 3" % sRole)
    A("s_cbranch_scc1 %s" % lF2)

    A("v_lshrrev_b32 v%d, 2, v%d" % (T[0], vI))
    A("v_lshlrev_b32 v%d, 12, v%d" % (T[0], T[0]))
    A("v_and_b32 v%d, 1, v%d" % (T[1], vI))
    A("v_lshl_add_u32 v%d, v%d, 11, v%d" % (T[0], T[1], T[0]))
    A("v_bfe_u32 v%d, v%d, 1, 1" % (T[2], vI))
    A("v_lshl_add_u32 v%d, v%d, 7, v%d" % (T[0], T[2], T[0]))
    A("v_lshl_add_u32 v%d, v%d, 5, v%d" % (T[0], vG, T[0]))
    A("s_lshl_b32 s%d, s%d, 8" % (sTmp, sW))
    A("s_add_u32 s%d, s%d, 0x%x" % (sTmp, sTmp, WS_AP))
    A("v_and_b32 v%d, 31, v%d" % (T[4], vLane))
    A("v_lshlrev_b32 v%d, 5, v%d" % (T[4], T[4]))
    A("s_lshl_b32 s%d, s%d, 2" % (sOff, sW))
    A("v_add_u32 v%d, s%d, v%d" % (T[4], sOff, T[4]))
    A("v_lshlrev_b32 v%d, 6, v%d" % (T[5], T[1]))
    A("s_lshl_b32 s%d, s%d, 3" % (sOff, sW))
    A("v_add_u32 v%d, s%d, v%d" % (T[5], sOff, T[5]))
    A("v_lshlrev_b32 v%d, 5, v%d" % (T[3], vLane))
    A("s_lshl_b32 s%d, s%d, 11" % (sOff, sW))
    A("v_add_u32 v%d, s%d, v%d" % (T[3], sOff, T[3]))
    A("v_lshrrev_b32 v%d, 1, v%d" % (T[21], vG))
    A("v_lshlrev_b32 v%d, 5, v%d" % (T[20], vI))
    A("v_lshl_add_u32 v%d, v%d, 9, v%d" % (T[20], T[21], T[20]))
    A("s_lshl_b32 s%d, s%d, 10" % (sOff, sW))
    A("v_add_u32 v%d, s%d, v%d" % (T[20], sOff, T[20]))
    for d in range(4):
        A("v_mov_b32 v%d, 0x3f803f80" % (vBa + d))
    A("v_lshl_add_u32 v%d, v%d, 4, v%d" % (T[21], T[21], vI))
    A("s_lshl_b32 s%d, s%d, 5" % (sOff, sW))
    A("v_add_u32 v%d, s%d, v%d" % (T[21], sOff, T[21]))
    A("v_cmp_gt_u32 vcc, 88, v%d" % T[21])
    A("s_mul_i32 s%d, s%d, 88" % (sOff, sRA))
    A("v_add_u32 v%d, s%d, v%d" % (T[21], sOff, T[21]))
    A("v_lshrrev_b32 v%d, 5, v%d" % (T[1], T[21]))
    A("v_and_b32 v%d, 30, v%d" % (T[2], T[21]))
    A("v_lshlrev_b32 v%d, 1, v%d" % (T[2], T[2]))
    A("v_lshl_add_u32 v%d, v%d, 7, v%d" % (T[1], T[1], T[2]))
    A("v_and_b32 v%d, 1, v%d" % (T[2], vG))
    A("v_lshl_add_u32 v%d, v%d, 6, v%d" % (T[1], T[2], T[1]))
    A("v_mov_b32 v%d, 0x%x" % (T[19], WS_BYTES))
    A("v_cndmask_b32 v%d, v%d, v%d, vcc" % (T[1], T[19], T[1]))
    A("v_cmp_gt_u32 vcc, 1376, v%d" % T[21])
    A("v_lshlrev_b32 v%d, 6, v%d" % (T[2], T[2]))
    g.nop(1)
    A("v_cndmask_b32 v%d, v%d, v%d, vcc" % (T[21], T[19], T[1]))

    def ldF1():
        A("buffer_load_dwordx4 %s, v%d, %s, s%d offen sc1" % (vr(PL, 4), T[0], srd(rWS), sTmp))
        A("buffer_load_dwordx4 %s, v%d, %s, s%d offen offset:16 sc1" % (vr(PL + 4, 4), T[0], srd(rWS), sTmp))
    poll(ldF1, range(PL, PL + 8), T[6], "f1", None, T[7])
    g.ts(9)
    CS2 = SB + 16
    A("ds_read_b128 %s, v%d offset:%d" % (vr(CS2, 4), T[20], LCS))
    A("ds_read_b128 %s, v%d offset:%d" % (vr(CS2 + 4, 4), T[20], LCS + 16))
    for k in range(8):
        dpp("v_add_f32", P + k, PL + k, PL + k, "row_ror:4")
    for k in range(8):
        dpp("v_add_f32", P + k, P + k, P + k, "row_ror:8")
    HP, AP_ = T[6], T[10]
    for k in range(4):
        A("v_cvt_pk_bf16_f32 v%d, v%d, v%d" % (AP_ + k, P + 2 * k, P + 2 * k + 1))
    for k in range(4):
        A("v_lshlrev_b32 v%d, 16, v%d" % (P + 2 * k, AP_ + k))
        A("v_and_b32 v%d, 0xffff0000, v%d" % (P + 2 * k + 1, AP_ + k))
    for k in range(8):
        A("v_add_f32 v%d, v%d, v%d" % (P + k, P + k, XF + k))
    for k in range(4):
        A("v_cvt_pk_bf16_f32 v%d, v%d, v%d" % (HP + k, P + 2 * k, P + 2 * k + 1))
    g.nop(2)
    DF = vW
    DS, DQ = vW + 48, vW + 52
    mfma(DS, HP, vBa, None)
    mfma(DQ, HP, HP, None)
    SS, QQ = T[14], T[15]
    A("s_waitcnt lgkmcnt(0)")
    for st in (4, 2, 1):
        for k in range(st):
            A("v_add_f32 v%d, v%d, v%d" % (CS2 + k, CS2 + k, CS2 + k + st))
    post = []
    post.append(["v_add_f32 v%d, v%d, v%d" % (T[16], DS, DS + 2),
                 "v_add_f32 v%d, v%d, v%d" % (T[17], DS + 1, DS + 3),
                 "v_cndmask_b32 v%d, v%d, v%d, s[%d:%d]" % (T[18], DQ, DQ + 1, sMi1, sMi1 + 1),
                 "v_cndmask_b32 v%d, v%d, v%d, s[%d:%d]" % (T[19], DQ + 2, DQ + 3, sMi1, sMi1 + 1),
                 "v_cndmask_b32 v%d, v%d, v%d, s[%d:%d]" % (SS, T[16], T[17], sMi1, sMi1 + 1),
                 "s_nop 0",
                 "v_add_f32_dpp v%d, v%d, v%d quad_perm:[2,3,0,1] %s" % (QQ, T[19], T[18], DPPALL),
                 "s_mov_b32 exec_lo, 3", "s_mov_b32 exec_hi, 0",
                 "ds_write_b64 v%d, %s offset:%d" % (T[5], vr(SS, 2), LST),
                 "s_mov_b64 exec, -1"])
    for c in range(6):
        post.append(["v_add_f32 v%d, v%d, v%d" % (T[18], DF + 4 * c, DF + 24 + 4 * c + 2),
                     "v_add_f32 v%d, v%d, v%d" % (T[19], DF + 4 * c + 1, DF + 24 + 4 * c + 3),
                     "v_cndmask_b32 v%d, v%d, v%d, s[%d:%d]" % (P + 12 + c, T[18], T[19], sMg1, sMg1 + 1),
                     "ds_write_b32 v%d, v%d offset:%d" % (T[4], P + 12 + c, LR2 + 1024 * c)])
    for c in range(6):
        for j in range(2):
            mfma(DF + 24 * j + 4 * c, HP, W2[6 * j + c], None)
        if c >= 4:
            for s_ in post[c - 4]:
                A(s_)
    for k in range(2, 7):
        for s_ in post[k]:
            A(s_)
    A("s_waitcnt lgkmcnt(0)")
    tail_barrier()
    A("s_cmp_ge_u32 s%d, 3" % sW)
    A("s_cbranch_scc1 %s" % lfin)
    Z, SQ, CSr = P, P + 12, T[8]
    for k in range(4):
        A("ds_read_b128 %s, v%d offset:%d" % (vr(SQ + 4 * k, 4), T[2], LST + 16 * k))
    A("ds_read_b128 %s, v%d offset:%d" % (vr(Z, 4), T[3], LR2))
    A("ds_read_b128 %s, v%d offset:%d" % (vr(Z + 4, 4), T[3], LR2 + 16))
    A("s_mov_b32 s%d, 0x%x" % (sTmp, WS_GL))
    A("s_mov_b32 s%d, 0x%x" % (sTmp2, WS_G))
    A("s_waitcnt lgkmcnt(2)")
    for st in (8, 4, 2):
        for k in range(st):
            A("v_add_f32 v%d, v%d, v%d" % (SQ + k, SQ + k, SQ + k + st))
    mean, var = T[5], T[6]
    A("v_mul_f32 v%d, %s, v%d" % (mean, f32(1.0 / 512), SQ))
    A("v_mul_f32 v%d, %s, v%d" % (var, f32(1.0 / 512), SQ + 1))
    A("v_fma_f32 v%d, -v%d, v%d, v%d" % (var, mean, mean, var))
    A("v_max_f32 v%d, 0, v%d" % (var, var))
    A("s_waitcnt lgkmcnt(0)")
    zs = []
    for st in (4, 2, 1):
        for k in range(st):
            zs.append("v_add_f32 v%d, v%d, v%d" % (Z + k, Z + k, Z + k + st))
    A("v_cvt_pk_bf16_f32 v%d, v%d, v%d" % (var, var, var))
    A(zs[0])
    A("v_and_b32 v%d, 0xffff0000, v%d" % (var, var))
    A(zs[1])
    A("v_add_f32 v%d, %s, v%d" % (var, f32(1e-5), var))
    A(zs[2])
    A("v_cvt_pk_bf16_f32 v%d, v%d, v%d" % (var, var, var))
    A(zs[3])
    A("v_and_b32 v%d, 0xffff0000, v%d" % (var, var))
    A("v_cvt_pk_bf16_f32 v%d, v%d, v%d" % (mean, mean, mean))
    A("v_sqrt_f32 v%d, v%d" % (var, var))
    A(zs[4])
    A(zs[5])
    A("v_cvt_pk_bf16_f32 v%d, v%d, v%d" % (var, var, var))
    A("v_and_b32 v%d, 0xffff0000, v%d" % (mean, mean))
    A("v_and_b32 v%d, 0xffff0000, v%d" % (var, var))
    A(zs[6])
    A("v_rcp_f32 v%d, v%d" % (T[7], var))
    A("v_fma_f32 v%d, -v%d, v%d, v%d" % (Z, mean, CS2, Z))
    div_refined(T[8], Z, var, T[7], T[9])
    bf16_round(T[8], T[8])
    A("v_add_f32 v%d, v%d, v%d" % (T[8], T[8], vBias))
    bf16_round(T[8], T[8])
    kk = 2.0 * 0.7978845608028654 * 1.4426950408889634
    A("v_mul_f32 v%d, v%d, v%d" % (T[9], T[8], T[8]))
    A("v_mov_b32 v%d, %s" % (T[10], f32(-kk)))
    A("v_fmac_f32 v%d, %s, v%d" % (T[10], f32(-kk * 0.044715), T[9]))
    A("v_mul_f32 v%d, v%d, v%d" % (T[9], T[10], T[8]))
    A("v_exp_f32 v%d, v%d" % (T[9], T[9]))
    g.nop(1)
    A("v_add_f32 v%d, 1.0, v%d" % (T[9], T[9]))
    A("v_rcp_f32 v%d, v%d" % (T[9], T[9]))
    g.nop(1)
    A("v_mul_f32 v%d, v%d, v%d" % (T[8], T[8], T[9]))
    g.nop(2)
    A("v_mov_b32_dpp v%d, v%d quad_perm:[1,1,3,3] %s" % (T[10], T[8], DPPALL))
    A("v_cvt_pk_bf16_f32 v%d, v%d, v%d" % (T[9], T[8], T[10]))
    A("v_min_u32 v%d, -2, v%d" % (T[9], T[9]))
    exec_set(0x55555555, 0x55555555)
    if not opt.get("nolocal"):
        A("buffer_store_dword v%d, v%d, %s, s%d offen" % (T[9], T[21], srd(rWS), sTmp))
    A("buffer_store_dword v%d, v%d, %s, s%d offen sc1" % (T[9], T[21], srd(rWS), sTmp2))
    exec_all()
    g.ts(10)
    A("s_branch %s" % lfin)

    g.lab(lF2)
    rO = rDBG
    mk_srd(rO, pOUT, 2048)
    A("v_lshlrev_b32 v%d, 2, v%d" % (T[0], vI))
    A("s_mov_b32 s%d, 0x%x" % (sTmp, WS_XS))
    A("buffer_load_dword v%d, v%d, %s, s%d offen sc1" % (T[1], T[0], srd(rWS), sTmp))
    A("s_getreg_b32 s%d, hwreg(HW_REG_XCC_ID)" % sTmp)
    A("s_and_b32 s%d, s%d, 15" % (sTmp, sTmp))
    A("s_waitcnt vmcnt(0)")
    A("v_cmp_ne_u32 vcc, s%d, v%d" % (sTmp, T[1]))
    A("s_cmp_eq_u64 vcc, 0")
    A("s_cselect_b32 s%d, %d, 0" % (sCB, int(opt.get("lr", 31))))
    A("v_and_b32 v%d, 1, v%d" % (T[0], vI))
    A("v_lshlrev_b32 v%d, 6, v%d" % (T[0], T[0]))
    A("v_lshl_add_u32 v%d, v%d, 4, v%d" % (T[0], vG, T[0]))
    A("s_lshl_b32 s%d, s%d, 7" % (sTmp, sW))
    A("v_add_u32 v%d, s%d, v%d" % (T[0], sTmp, T[0]))
    A("v_add_u32 v%d, 0x1000, v%d" % (T[1], T[0]))
    A("s_cmp_lt_u32 s%d, 3" % sW)
    A("s_cselect_b32 s%d, 0x1400, 0x%x" % (sTmp, 0) if False else "s_cselect_b32 s%d, 0, 1" % sTmp)
    A("s_lshl_b32 s%d, s%d, 28" % (sTmp, sTmp))
    A("s_add_u32 s%d, s%d, 0x1400" % (sTmp, sTmp))
    A("v_add_u32 v%d, s%d, v%d" % (T[2], sTmp, T[0]))
    A("v_and_b32 v%d, 31, v%d" % (T[3], vLane))
    A("v_lshlrev_b32 v%d, 5, v%d" % (T[3], T[3]))
    A("s_lshl_b32 s%d, s%d, 2" % (sOff, sW))
    A("v_add_u32 v%d, s%d, v%d" % (T[4], sOff, T[3]))
    A("v_lshlrev_b32 v%d, 5, v%d" % (T[3], vLane))
    lnh = g.newlab("noh")
    A("s_cmp_lg_u32 s%d, 0" % sW)
    A("s_cbranch_scc1 %s" % lnh)
    A("v_and_b32 v%d, 1, v%d" % (T[5], vG))
    A("v_lshlrev_b32 v%d, 11, v%d" % (T[5], T[5]))
    A("v_lshl_add_u32 v%d, v%d, 4, v%d" % (T[5], vI, T[5]))
    A("v_lshrrev_b32 v%d, 1, v%d" % (T[6], vG))
    A("v_lshl_add_u32 v%d, v%d, 2, v%d" % (T[5], T[6], T[5]))
    A("v_add_u32 v%d, 0x1000, v%d" % (T[7], T[5]))
    A("v_add_u32 v%d, 0x2000, v%d" % (T[8], T[5]))
    A("v_add_u32 v%d, 0x3000, v%d" % (T[9], T[5]))
    A("s_lshr_b32 s%d, s%d, 1" % (sTmp, sRA))
    A("s_lshl_b32 s%d, s%d, 8" % (sTmp, sTmp))
    A("s_and_b32 s%d, s%d, 1" % (sTmp2, sRA))
    A("s_lshl_b32 s%d, s%d, 3" % (sTmp2, sTmp2))
    A("s_add_u32 s%d, s%d, s%d" % (sTmp, sTmp, sTmp2))
    A("s_add_u32 s%d, s%d, 0x%x" % (sTmp, sTmp, WS_AP))

    def ldH():
        for k, a_ in enumerate((T[5], T[7], T[8], T[9])):
            A("buffer_load_dword v%d, v%d, %s, s%d offen sc1" % (PL + k, a_, srd(rWS), sTmp))
    poll(ldH, range(PL, PL + 4), T[6], "h")
    A("v_add_f32 v%d, v%d, v%d" % (PL, PL, PL + 3))
    A("v_add_f32 v%d, v%d, v%d" % (PL + 2, PL + 2, PL + 1))
    A("v_add_f32 v%d, v%d, v%d" % (PL, PL, PL + 2))
    bf16_round(PL, PL)
    A("v_add_f32 v%d, v%d, v%d" % (vH, PL, vXs))
    bf16_round(vH, vH)
    A("v_lshlrev_b32 v%d, 2, v%d" % (T[5], vLane))
    A("ds_write_b32 v%d, v%d offset:%d" % (T[5], vH, LR))
    g.lab(lnh)
    A("v_lshlrev_b32 v%d, 2, v%d" % (T[5], vLane))
    A("v_mov_b32 v%d, 1" % T[13])
    A("v_mov_b32 v%d, 0" % T[19])
    A("s_mov_b32 s%d, 0x%x" % (sTmp, WS_G if opt.get("nolocal") else WS_GL))

    def ldF2():
        for k in range(6):
            a_, o_ = (T[0], 1024 * k) if k < 4 else ((T[1], 0) if k == 4 else (T[2], 0))
            A("buffer_load_dwordx4 %s, v%d, %s, s%d offen offset:%d sc1" % (vr(P + 4 * k, 4), a_, srd(rWS), sTmp, o_))
    poll(ldF2, range(P, P + 24), T[6], "f2", None if opt.get("nolocal") else (sTmp, WS_G ^ WS_GL), T[7],
         [(lambda k=k, c=c: mfma(DD + 4 * c, P + 4 * k, W2[2 * k + c], None if k == 0 else DD + 4 * c)) for k in range(2) for c in range(2)])
    g.ts(9)
    for k in range(2, 6):
        for c in range(2):
            mfma(DD + 4 * c, P + 4 * k, W2[2 * k + c], DD + 4 * c)
    A("v_and_b32 v%d, 1, v%d" % (T[0], vG))
    A("v_lshlrev_b32 v%d, 10, v%d" % (T[0], T[0]))
    A("v_lshl_add_u32 v%d, v%d, 1, v%d" % (T[0], vI, T[0]))
    A("v_lshrrev_b32 v%d, 1, v%d" % (T[1], vG))
    A("v_lshl_add_u32 v%d, v%d, 5, v%d" % (T[0], T[1], T[0]))
    A("s_lshl_b32 s%d, s%d, 6" % (sTmp, sRA))
    g.nop(1)
    A("v_cndmask_b32 v%d, v%d, v%d, s[%d:%d]" % (T[10], DD, DD + 1, sMg1, sMg1 + 1))
    A("ds_write_b32 v%d, v%d offset:%d" % (T[4], T[10], LR2))
    A("v_cndmask_b32 v%d, v%d, v%d, s[%d:%d]" % (T[11], DD + 4, DD + 5, sMg1, sMg1 + 1))
    A("ds_write_b32 v%d, v%d offset:%d" % (T[4], T[11], LR2 + 1024))
    exec_set(1)
    A("ds_add_rtn_u32 v%d, v%d, v%d offset:%d" % (T[13], T[19], T[13], LCNT + 16))
    exec_all()
    A("ds_read_b128 %s, v%d offset:%d" % (vr(P, 4), T[3], LR2))
    A("ds_read_b128 %s, v%d offset:%d" % (vr(P + 4, 4), T[3], LR2 + 16))
    A("ds_read_b32 v%d, v%d offset:%d" % (vH, T[5], LR))
    lep = g.newlab("noep")
    A("s_or_b32 s%d, s%d, s%d" % (sTmp2, sRA, sW))
    A("s_cmp_lg_u32 s%d, 0" % sTmp2)
    A("s_cbranch_scc1 %s" % lep)
    A("v_mov_b32 v%d, s%d" % (T[10], sTag))
    A("s_mov_b32 s%d, 0x%x" % (sTmp2, WS_EP))
    A("buffer_store_dword v%d, v%d, %s, s%d offen" % (T[10], vTkA, srd(rWS), sTmp2))
    g.lab(lep)
    A("s_waitcnt lgkmcnt(3)")
    A("v_readfirstlane_b32 s%d, v%d" % (sTmp2, T[13]))
    g.nop(1)
    A("s_cmp_lg_u32 s%d, 7" % sTmp2)
    A("s_cbranch_scc1 %s" % lfin)
    A("s_waitcnt lgkmcnt(0)")
    for st in (4, 2, 1):
        for k in range(st):
            A("v_add_f32 v%d, v%d, v%d" % (P + k, P + k, P + k + st))
    bf16_round(P, P)
    A("v_add_f32 v%d, v%d, v%d" % (P, P, vBias))
    bf16_round(P, P)
    A("v_add_f32 v%d, v%d, v%d" % (P, P, vH))
    g.nop(2)
    A("v_mov_b32_dpp v%d, v%d quad_perm:[1,1,3,3] %s" % (T[10], P, DPPALL))
    A("v_cvt_pk_bf16_f32 v%d, v%d, v%d" % (T[9], P, T[10]))
    exec_set(0x55555555, 0x55555555)
    A("buffer_store_dword v%d, v%d, %s, s%d offen" % (T[9], T[0], srd(rO), sTmp))
    exec_all()
    g.ts(10)
    if opt.get("dbgspan"):
        mk_srd(rB, pDBG, 256)
        A("s_cmp_lt_u32 s%d, 8" % sRA)
        A("s_cselect_b32 s%d, s90, s85" % sTmp)
        A("s_sub_u32 s%d, s%d, s80" % (sTmp, sTmp))
        A("v_mov_b32 v%d, s%d" % (T[10], sTmp))
        A("s_lshl_b32 s%d, s%d, 2" % (sTmp, sRA))
        A("buffer_store_dword v%d, v%d, %s, s%d offen" % (T[10], vTkA, srd(rB), sTmp))

    if opt.get("dbl"):
        idx = int(opt.get("dbl"))
        A("s_memrealtime s[76:77]")
        A("s_waitcnt lgkmcnt(0)")
        A("s_mov_b32 s90, s76")
        A("s_sub_u32 s%d, s%d, s80" % (sTmp, 80 + idx))
        A("s_add_u32 s%d, s%d, s76" % (sTmp, sTmp))
        ld_ = g.newlab("dly")
        g.lab(ld_)
        A("s_memrealtime s[76:77]")
        A("s_waitcnt lgkmcnt(0)")
        A("s_sub_u32 s%d, s76, s%d" % (sTmp2, sTmp))
        A("s_cmp_lt_i32 s%d, 0" % sTmp2)
        A("s_cbranch_scc1 %s" % ld_)
    g.lab(lfin)
    if DRY:
        A("s_cmp_eq_u32 s%d, 1" % sDry)
        A("s_cbranch_scc1 L_resume")
    if opt.get("ts"):
        g.ts(11)
        A("s_waitcnt vmcnt(0)")
        A("s_lshl_b32 s%d, s2, 3" % sTmp)
        A("s_add_u32 s%d, s%d, s%d" % (sTmp, sTmp, sW))
        A("s_lshl_b32 s%d, s%d, 6" % (sTmp, sTmp))
        A("s_add_u32 s%d, s%d, 0x%x" % (sTmp, sTmp, WS_TS))
        for k in range(12):
            A("v_mov_b32 v%d, s%d" % (P + k, 80 + k))
        for k in range(3):
            A("buffer_store_dwordx4 %s, v%d, %s, s%d offen offset:%d" % (vr(P + 4 * k, 4), vTkA, srd(rWS), sTmp, 16 * k))
    if opt.get("prog"):
        A("s_lshl_b32 s%d, s2, 3" % sTmp)
        A("s_add_u32 s%d, s%d, s%d" % (sTmp, sTmp, sW))
        A("s_lshl_b32 s%d, s%d, 8" % (sTmp, sTmp))
        A("s_add_u32 s%d, s%d, 0x200000" % (sTmp, sTmp))
        A("v_lshlrev_b32 v%d, 2, v%d" % (T[0], vLane))
        A("buffer_store_dword v56, v%d, %s, s%d offen" % (T[0], srd(rWS), sTmp))
    g.lab("L_end")
    A("s_endpgm")

    g.lab("L_combine")
    C = P
    A("v_lshl_add_u32 v%d, v%d, 3, v%d" % (T[5], vG, T[0]))
    A("v_lshlrev_b32 v%d, 3, v%d" % (T[5], T[5]))
    if opt.get("bswap"):
        A("s_xor_b32 s%d, s%d, s%d" % (sTmp2, sCB, sH))
        A("s_and_b32 s%d, s%d, 1" % (sTmp2, sTmp2))
        A("s_lshl_b32 s%d, s%d, 3" % (sTmp2, sTmp2))
    else:
        A("s_lshl_b32 s%d, s%d, 3" % (sTmp2, sCB))
    A("s_add_u32 s%d, s%d, s%d" % (sTmp2, sTmp2, sT))
    A("s_lshl_b32 s%d, s%d, 4" % (sTmp, sH))
    A("s_add_u32 s%d, s%d, s%d" % (sTmp2, sTmp2, sTmp))
    A("s_lshl_b32 s%d, s%d, 8" % (sTmp, sTmp2))
    A("s_lshl_b32 s%d, s%d, 7" % (sTmp2, sTmp2))
    A("s_add_u32 s%d, s%d, 0x%x" % (sTmp2, sTmp2, WS_ST))
    A("v_add_u32 v%d, s%d, v%d" % (T[5], sTmp, T[5]))
    A("v_cmp_eq_u32 vcc, 8, v%d" % vLane)
    A("v_mov_b32 v%d, s%d" % (T[18], sTmp2))
    g.nop(1)
    A("v_cndmask_b32 v%d, v%d, v%d, vcc" % (T[5], T[5], T[18]))
    A("s_waitcnt lgkmcnt(4)")
    Mx, Ls = T[6], T[7]
    A("v_max3_f32 v%d, v%d, v%d, v%d" % (Mx, C + 16, C + 18, C + 20))
    A("v_max3_f32 v%d, v%d, v%d, v%d" % (T[8], C + 22, C + 24, C + 26))
    A("v_max3_f32 v%d, v%d, v%d, v%d" % (Mx, Mx, C + 28, C + 30))
    A("v_max_f32 v%d, v%d, v%d" % (Mx, Mx, T[8]))
    Fk = T[8:12]
    for k in range(4):
        A("v_sub_f32 v%d, v%d, v%d" % (Fk[k], C + 16 + 2 * k, Mx))
    for k in range(4):
        A("v_mul_f32 v%d, s%d, v%d" % (Fk[k], sL2E, Fk[k]))
    for k in range(4):
        A("v_exp_f32 v%d, v%d" % (Fk[k], Fk[k]))
    A("s_waitcnt lgkmcnt(0)")
    A("v_mul_f32 v%d, v%d, v%d" % (Ls, Fk[0], C + 17))
    O = [T[12], T[13], T[16], T[17]]
    for r in range(4):
        A("v_mul_f32 v%d, v%d, v%d" % (O[r], Fk[0], C + r))
    for k in range(1, 4):
        A("v_fmac_f32 v%d, v%d, v%d" % (Ls, Fk[k], C + 17 + 2 * k))
        for r in range(4):
            A("v_fmac_f32 v%d, v%d, v%d" % (O[r], Fk[k], C + 4 * k + r))
    dpp("v_add_f32", Ls, Ls, Ls, "row_ror:8")
    g.nop(1)
    for r in range(4):
        dpp("v_add_f32", O[r], O[r], O[r], "row_ror:8")
    P0 = T[18]
    A("v_cvt_pk_bf16_f32 v%d, v%d, v%d" % (P0, O[0], O[1]))
    A("v_cvt_pk_bf16_f32 v%d, v%d, v%d" % (P0 + 1, O[2], O[3]))
    A("v_cndmask_b32 v%d, v%d, v%d, vcc" % (P0, P0, Mx))
    A("v_cndmask_b32 v%d, v%d, v%d, vcc" % (P0 + 1, P0 + 1, Ls))
    A("v_min_u32 v%d, -2, v%d" % (P0, P0))
    A("v_min_u32 v%d, -2, v%d" % (P0 + 1, P0 + 1))
    exec_set(0x00ff01ff, 0x00ff00ff)
    A("buffer_store_dwordx2 %s, v%d, %s, 0 offen sc1" % (vr(P0, 2), T[5], srd(rWS)))
    exec_all()
    A("s_setpc_b64 s[%d:%d]" % (sRet, sRet + 1))

    g.lab("L_prep")
    lb2, lbd = g.newlab("b2"), g.newlab("bd")
    if opt.get("nowl"):
        A("s_branch %s" % lbd)
    vr_, vc_, vLW, vTR = T[3], T[4], T[2], T[5]
    A("s_setprio 2")
    A("v_bfe_u32 v%d, v%d, 2, 2" % (vr_, vLane))
    A("v_and_b32 v%d, 3, v%d" % (vc_, vLane))
    A("s_mul_i32 s%d, s%d, %d" % (sLB, sW, LWS))
    A("v_add_u32 v%d, s%d, v%d" % (vLW, sLB, vV))
    A("v_lshrrev_b32 v%d, 3, v%d" % (T[6], vLane))
    A("v_and_b32 v%d, 7, v%d" % (T[7], vLane))
    A("v_lshlrev_b32 v%d, 4, v%d" % (T[7], T[7]))
    lb1 = g.newlab("b1")
    A("s_cmp_lg_u32 s%d, 1" % sRole)
    A("s_cbranch_scc1 %s" % lb1)
    mk_srd(rB, pWO, 4 << 20)
    A("v_lshl_add_u32 v%d, v%d, 10, v%d" % (T[8], T[6], T[7]))
    A("s_and_b32 s%d, s%d, 24" % (sTmp, sH))
    A("s_add_u32 s%d, s%d, s%d" % (sTmp, sTmp, sW))
    A("s_lshl_b32 s%d, s%d, 17" % (sTmp, sTmp))
    A("s_and_b32 s%d, s%d, 7" % (sTmp2, sH))
    A("s_lshl_b32 s%d, s%d, 7" % (sTmp2, sTmp2))
    A("s_add_u32 s%d, s%d, s%d" % (sTmp, sTmp, sTmp2))
    for k in range(16):
        A("buffer_load_dwordx4 %s, v%d, %s, s%d offen %s" % (vr(vW + 4 * k, 4), T[8], srd(rB), sTmp, WNT))
        if k < 15:
            A("s_add_u32 s%d, s%d, 0x2000" % (sTmp, sTmp))
    A("v_lshlrev_b32 v%d, 1, v%d" % (vTR, vG))
    A("v_lshl_add_u32 v%d, v%d, 3, v%d" % (vTR, vr_, vTR))
    A("v_lshlrev_b32 v%d, 7, v%d" % (vTR, vTR))
    A("v_lshl_add_u32 v%d, v%d, 3, v%d" % (vTR, vc_, vTR))
    A("v_add_u32 v%d, s%d, v%d" % (vTR, sLB, vTR))

    def w_transpose(younger):
        for half in range(2):
            A("s_waitcnt vmcnt(%d)" % (younger + (8 if half == 0 else 0)))
            for k in range(8):
                A("ds_write_b128 v%d, %s offset:%d" % (vLW, vr(vW + 32 * half + 4 * k, 4), LW + 1024 * k))
            A("s_waitcnt lgkmcnt(0)")
            for jj in range(2):
                for c in range(4):
                    d = vW + 32 * half + 16 * jj + 4 * c
                    A("ds_read_b64_tr_b16 %s, v%d offset:%d" % (vr(d, 2), vTR, LW + 4096 * jj + 32 * c))
                    A("ds_read_b64_tr_b16 %s, v%d offset:%d" % (vr(d + 2, 2), vTR, LW + 4096 * jj + 32 * c + 128))
            A("s_waitcnt lgkmcnt(0)")

    w_transpose(0)
    A("s_branch %s" % lbd)
    g.lab(lb1)
    A("s_cmp_eq_u32 s%d, 3" % sRole)
    A("s_cbranch_scc1 %s" % lb2)
    mk_srd(rB, pW1, 512 * 2752)
    A("v_mul_u32_u24 v%d, 43, v%d" % (T[6], vLane))
    A("v_lshrrev_b32 v%d, 9, v%d" % (T[6], T[6]))
    A("v_mul_u32_u24 v%d, 12, v%d" % (T[7], T[6]))
    A("v_sub_u32 v%d, v%d, v%d" % (T[7], vLane, T[7]))
    A("v_mul_u32_u24 v%d, 2752, v%d" % (T[8], T[6]))
    A("v_lshl_add_u32 v%d, v%d, 4, v%d" % (T[8], T[7], T[8]))
    A("s_mul_i32 s%d, s%d, %d" % (sTmp, sW, 64 * 2752))
    A("s_mul_i32 s%d, s%d, 176" % (sTmp2, sRA))
    A("s_add_u32 s%d, s%d, s%d" % (sTmp, sTmp, sTmp2))
    stg = W2 + [P + 28]
    for k in range(13):
        A("buffer_load_dwordx4 %s, v%d, %s, s%d offen %s" % (vr(stg[k], 4), T[8], srd(rB), sTmp, WNT))
        if k < 12:
            A("s_add_u32 s%d, s%d, %d" % (sTmp, sTmp, 5 * 2752))
    A("v_and_b32 v%d, 1, v%d" % (T[9], vI))
    A("v_lshlrev_b32 v%d, 10, v%d" % (T[9], T[9]))
    A("v_bfe_u32 v%d, v%d, 1, 1" % (T[10], vI))
    A("v_lshl_add_u32 v%d, v%d, 4, v%d" % (T[10], T[10], T[9]))
    A("v_lshl_add_u32 v%d, v%d, 2, v%d" % (T[10], vG, T[10]))
    A("s_lshl_b32 s%d, s%d, 7" % (sTmp, sW))
    for r in range(4):
        A("buffer_load_dword v%d, v%d, %s, s%d offen offset:%d" % (vXR + r, T[10], srd(rA), sTmp, 32 * r))
    mk_srd(rB, pB1, 2752)
    A("v_lshrrev_b32 v%d, 1, v%d" % (T[10], vG))
    A("v_lshlrev_b32 v%d, 1, v%d" % (T[9], vI))
    A("v_lshl_add_u32 v%d, v%d, 5, v%d" % (T[9], T[10], T[9]))
    A("s_lshl_b32 s%d, s%d, 6" % (sTmp, sW))
    A("s_add_u32 s%d, s%d, s%d" % (sTmp, sTmp, sTmp2))
    A("buffer_load_ushort v%d, v%d, %s, s%d offen" % (vBias, T[9], srd(rB), sTmp))
    A("v_lshlrev_b32 v%d, 1, v%d" % (vTR, vG))
    A("v_lshl_add_u32 v%d, v%d, 4, v%d" % (vTR, vr_, vTR))
    A("v_mul_u32_u24 v%d, 192, v%d" % (vTR, vTR))
    A("v_lshl_add_u32 v%d, v%d, 3, v%d" % (vTR, vc_, vTR))
    A("v_add_u32 v%d, s%d, v%d" % (vTR, sLB, vTR))
    A("s_waitcnt vmcnt(0)")
    for k in range(13):
        A("ds_write_b128 v%d, %s offset:%d" % (vLW, vr(stg[k], 4), LW + 960 * k))
    A("s_waitcnt lgkmcnt(0)")
    for jj in range(2):
        for c in range(6):
            d = W2[6 * jj + c]
            A("ds_read_b64_tr_b16 %s, v%d offset:%d" % (vr(d, 2), vTR, LW + 1536 * jj + 32 * c))
            A("ds_read_b64_tr_b16 %s, v%d offset:%d" % (vr(d + 2, 2), vTR, LW + 1536 * jj + 32 * c + 192))
    for r in range(4):
        A("v_lshlrev_b32 v%d, 16, v%d" % (XF + r, vXR + r))
        A("v_and_b32 v%d, 0xffff0000, v%d" % (XF + 4 + r, vXR + r))
    A("v_lshlrev_b32 v%d, 16, v%d" % (vBias, vBias))
    for d in range(4):
        A("v_mov_b32 v%d, 0x3f803f80" % (vBa + d))
    A("s_waitcnt lgkmcnt(0)")
    g.nop(1)
    for c in range(6):
        mfma(P + 4 * c, vBa, W2[c], None)
    for c in range(6):
        mfma(P + 4 * c, vBa, W2[6 + c], P + 4 * c)
    A("s_lshl_b32 s%d, s%d, 2" % (sTmp, sW))
    A("v_lshlrev_b32 v%d, 5, v%d" % (T[2], vI))
    A("v_add_u32 v%d, s%d, v%d" % (T[2], sTmp, T[2]))
    g.nop(8)
    for c in range(6):
        A("ds_write_b32 v%d, v%d offset:%d" % (T[2], P + 4 * c, LCS + 512 * c))
    A("s_waitcnt lgkmcnt(0)")
    A("s_branch %s" % lbd)
    g.lab(lb2)
    mk_srd(rB, pW2, 1376 * 1024)
    A("v_lshrrev_b32 v%d, 2, v%d" % (T[8], vLane))
    A("v_lshlrev_b32 v%d, 10, v%d" % (T[8], T[8]))
    A("v_lshl_add_u32 v%d, v%d, 4, v%d" % (T[8], vc_, T[8]))
    A("s_lshl_b32 s%d, s%d, 15" % (sTmp, sW))
    A("s_lshl_b32 s%d, s%d, 6" % (sTmp2, sRA))
    A("s_add_u32 s%d, s%d, s%d" % (sTmp, sTmp, sTmp2))
    for k in range(6):
        A("buffer_load_dwordx4 %s, v%d, %s, s%d offen %s" % (vr(W2[2 * k], 4), T[8], srd(rB), sTmp, WNT))
        A("s_add_u32 s%d, s%d, 0x4000" % (sTmp, sTmp))
        A("buffer_load_dwordx4 %s, v%d, %s, s%d offen %s" % (vr(W2[2 * k + 1], 4), T[8], srd(rB), sTmp, WNT))
        if k < 5:
            A("s_add_u32 s%d, s%d, 0x3c000" % (sTmp, sTmp))
    A("v_lshrrev_b32 v%d, 1, v%d" % (T[10], vG))
    A("v_lshlrev_b32 v%d, 1, v%d" % (T[9], vI))
    A("v_lshl_add_u32 v%d, v%d, 5, v%d" % (T[9], T[10], T[9]))
    A("v_and_b32 v%d, 1, v%d" % (T[10], vG))
    A("v_lshl_add_u32 v%d, v%d, 10, v%d" % (T[10], T[10], T[9]))
    A("buffer_load_ushort v%d, v%d, %s, s%d offen" % (vXs, T[10], srd(rA), sTmp2))
    mk_srd(rB, pB2, 1024)
    A("buffer_load_ushort v%d, v%d, %s, s%d offen" % (vBias, T[9], srd(rB), sTmp2))
    A("v_lshl_add_u32 v%d, v%d, 3, v%d" % (vTR, vG, vr_))
    A("v_lshlrev_b32 v%d, 6, v%d" % (vTR, vTR))
    A("v_lshl_add_u32 v%d, v%d, 3, v%d" % (vTR, vc_, vTR))
    A("v_add_u32 v%d, s%d, v%d" % (vTR, sLB, vTR))
    A("s_waitcnt vmcnt(0)")
    for k in range(12):
        A("ds_write_b128 v%d, %s offset:%d" % (vLW, vr(W2[k], 4), LW + 1024 * k))
    A("s_waitcnt lgkmcnt(0)")
    for k in range(6):
        for c in range(2):
            d = W2[2 * k + c]
            A("ds_read_b64_tr_b16 %s, v%d offset:%d" % (vr(d, 2), vTR, LW + 2048 * k + 32 * c))
            A("ds_read_b64_tr_b16 %s, v%d offset:%d" % (vr(d + 2, 2), vTR, LW + 2048 * k + 32 * c + 256))
    A("v_lshlrev_b32 v%d, 16, v%d" % (vXs, vXs))
    A("v_lshlrev_b32 v%d, 16, v%d" % (vBias, vBias))
    A("s_waitcnt lgkmcnt(0)")
    g.lab(lbd)
    A("s_setprio 0")
    A("s_setpc_b64 s[%d:%d]" % (sRet, sRet + 1))
    g.lab("L_codeend")

    tail = ['.section .rodata,"a"', ".p2align 6", ".amdhsa_kernel %s_kernel" % NAME,
            "  .amdhsa_next_free_vgpr 256", "  .amdhsa_next_free_sgpr 102", "  .amdhsa_accum_offset 256",
            "  .amdhsa_group_segment_fixed_size 0", "  .amdhsa_kernarg_size 104", "  .amdhsa_user_sgpr_count 2",
            "  .amdhsa_user_sgpr_kernarg_segment_ptr 1", "  .amdhsa_system_sgpr_workgroup_id_x 1",
            "  .amdhsa_float_denorm_mode_32 3", ".end_amdhsa_kernel"]
    return "\n".join(hdr + g.L + tail) + "\n"


if __name__ == "__main__":
    out = sys.argv[1]
    opt = {}
    for a in sys.argv[2:]:
        k, _, v = a.partition("=")
        opt[k] = v if v else True
    open(out, "w").write(gen(opt))
```
